```python
import torch

def _softmax(x, axis=-1):
    return torch.softmax(x, dim=axis)
def _gelu(x):
    return torch.nn.functional.gelu(x, approximate="tanh")
def _silu(x):
    return torch.nn.functional.silu(x)
def _sigmoid(x):
    return torch.sigmoid(x)
def _layernorm(x, axis=-1, eps=1e-5):
    m = x.mean(dim=axis, keepdim=True)
    v = x.var(dim=axis, keepdim=True, unbiased=False)
    return (x - m) / torch.sqrt(v + eps)
def _scatter_add(tgt, idx, src, axis=0):
    return tgt.clone().index_add_(axis, idx, src)
def _segment_sum(src, seg, n):
    out = torch.zeros((n,) + src.shape[1:], dtype=src.dtype)
    return out.index_add_(0, seg, src)
def _pad(x, pw):
    flat = tuple(v for pair in reversed(pw) for v in pair)
    return torch.nn.functional.pad(x, flat)

kernel_name = 'interleave_layers__ssm_conv_h3__swiglu_ffn__prompt'

def setup_inputs():

    _w = (lambda a: (lambda t: t.to(torch.bfloat16) if t.is_floating_point() else t)(torch.as_tensor(a)))
    def _A_setup():
        B, S, D = 1, 2048, 448
        ks = 4
        return {
            "q": _w((lambda *s: torch.randn(*s, dtype=torch.bfloat16) * 0.05)(B, S, D)),
            "k": _w((lambda *s: torch.randn(*s, dtype=torch.bfloat16) * 0.8)(B, S, D)),
            "v": _w((lambda *s: torch.randn(*s, dtype=torch.bfloat16) * 0.8)(B, S, D)),
            "shift_k": _w((lambda *s: torch.randn(*s, dtype=torch.bfloat16) * 0.8)(D, ks) * 0.5),
            "ssm_k": _w((lambda *s: torch.randn(*s, dtype=torch.bfloat16) * 0.8)(D, S) * (1.0 / S ** 0.5)),
            "ssm_D": _w((lambda *s: torch.randn(*s, dtype=torch.bfloat16) * 0.8)(D)),
        }
    _A_in = _A_setup()

    def _B_setup():
        B, S, D, F = 1, 2048, 448, 1792
        return {
            "x": _w((lambda *s: torch.randn(*s, dtype=torch.bfloat16) * 0.05)(B, S, D)),
            "w_gate": _w((lambda *s: torch.randn(*s, dtype=torch.bfloat16) * 0.1)(D, F)),
            "w_up": _w((lambda *s: torch.randn(*s, dtype=torch.bfloat16) * 0.1)(D, F)),
            "w_down": _w((lambda *s: torch.randn(*s, dtype=torch.bfloat16) * 0.1)(F, D)),
        }
    _B_in = _B_setup()

    return {
        "A_q": _A_in["q"],
        "A_k": _A_in["k"],
        "A_v": _A_in["v"],
        "A_shift_k": _A_in["shift_k"],
        "A_ssm_k": _A_in["ssm_k"],
        "A_ssm_D": _A_in["ssm_D"],
        "B_x": _B_in["x"],
        "B_w_gate": _B_in["w_gate"],
        "B_w_up": _B_in["w_up"],
        "B_w_down": _B_in["w_down"],
    }

def reference(A_q, A_k, A_v, A_shift_k, A_ssm_k, A_ssm_D, B_x, B_w_gate, B_w_up, B_w_down):
    def _A_ref(q, k, v, shift_k, ssm_k, ssm_D):
        B, S, D = q.shape
        ks = shift_k.shape[-1]
        k_pad = _pad(k, ((0, 0), (ks - 1, 0), (0, 0)))
        k_shift = torch.zeros_like(k)
        for t in range(ks):
            k_shift = k_shift + k_pad[:, t:t + S, :] * shift_k[:, ks - 1 - t][None, None, :]
        kv = k_shift * v
        L = 2 * S
        kv_pad = _pad(kv, ((0, 0), (0, S), (0, 0)))
        kf_pad = _pad(ssm_k, ((0, 0), (0, S)))
        kv_f = (lambda x, axes=(-2,-1): torch.fft.rfft2(x.float(), dim=axes))(kv_pad[:, None, :, :], axes=(1, 2))
        kf_f = (lambda x, axes=(-2,-1): torch.fft.rfft2(x.float(), dim=axes))(kf_pad[:, None, :], axes=(1, 2))
        kf_f = (lambda x, *d: x.permute(*d))(kf_f, 1, 2, 0)
        y_f = kv_f * kf_f[None, :, :, :]
        y = (lambda x, s, axes=(-2,-1): torch.fft.irfft2(x, s=s, dim=axes).to(torch.bfloat16))(y_f, (1, L), axes=(1, 2))[:, 0, :S, :]
        y = y + kv * ssm_D[None, None, :]
        return q * y

    def _B_ref(x, w_gate, w_up, w_down):
        g = _silu(x @ w_gate)
        u = x @ w_up
        return (g * u) @ w_down

    x = A_q
    x = x + _A_ref(_layernorm(x, axis=-1), A_k, A_v, A_shift_k, A_ssm_k, A_ssm_D)
    x = x + _B_ref(_layernorm(x, axis=-1), B_w_gate, B_w_up, B_w_down)
    x = x + _A_ref(_layernorm(x, axis=-1), A_k, A_v, A_shift_k, A_ssm_k, A_ssm_D)
    x = x + _B_ref(_layernorm(x, axis=-1), B_w_gate, B_w_up, B_w_down)
    return x
```

```python
import re

REG_RE = re.compile(r'^(-|\|)?(abs\()?([vas])(\d+|\[(\d+):(\d+)\])\)?\|?$')

def parse_reg(tok):
    tok = tok.strip()
    if tok in ('vcc',): return [('s', 106), ('s', 107)]
    if tok == 'vcc_lo': return [('s', 106)]
    if tok == 'vcc_hi': return [('s', 107)]
    if tok == 'exec': return [('s', 126), ('s', 127)]
    if tok == 'exec_lo': return [('s', 126)]
    if tok == 'exec_hi': return [('s', 127)]
    if tok == 'm0': return [('s', 124)]
    if tok == 'scc': return []
    m = REG_RE.match(tok)
    if not m: return []
    k = m.group(3)
    if m.group(5) is not None:
        return [(k, i) for i in range(int(m.group(5)), int(m.group(6)) + 1)]
    return [(k, int(m.group(4)))]

def split_ops(rest):
    ops = []; depth = 0; cur = ''
    for ch in rest:
        if ch == '[': depth += 1
        if ch == ']': depth -= 1
        if ch == ',' and depth == 0:
            ops.append(cur.strip()); cur = ''
        else: cur += ch
    if cur.strip(): ops.append(cur.strip())
    return ops

TRANS = ('v_exp_f32', 'v_log_f32', 'v_rcp_f32', 'v_rsq_f32', 'v_sqrt_f32', 'v_sin_f32', 'v_cos_f32', 'v_rcp_iflag_f32')

class Ins:
    __slots__ = ('text', 'mn', 'kind', 'rd', 'wr', 'srcC', 'srcAB', 'passes', 'dpp', 'store_data', 'states', 'is_label', 'wide_store', 'lds_dma', 'mods')
    def __init__(self, text):
        self.text = text
        t = text.split(';')[0].strip()
        self.rd = []; self.wr = []; self.srcC = []; self.srcAB = []; self.passes = 0
        self.dpp = False; self.store_data = []; self.states = 1; self.is_label = False; self.wide_store = False
        self.lds_dma = False
        if not t:
            self.mn = ''; self.kind = 'none'; self.states = 0; return
        if t.endswith(':'):
            self.mn = t; self.kind = 'label'; self.is_label = True; self.states = 0; return
        if t.startswith('.'):
            self.mn = t; self.kind = 'dir'; self.states = 0; return
        parts = t.split(None, 1)
        mn = parts[0]; rest = parts[1] if len(parts) > 1 else ''
        mn = re.sub(r'_(e32|e64|dpp|sdwa)$', '', mn)
        self.mn = mn
        ops = split_ops(rest)
        mods = ''
        if ops:
            last = ops[-1].split()
            if len(last) > 1:
                ops[-1] = last[0]; mods = ' '.join(last[1:])
        self.mods = mods
        R = lambda i: parse_reg(ops[i]) if i < len(ops) else []
        allregs = lambda lo: [r for i in range(lo, len(ops)) for r in parse_reg(ops[i])]
        if mn == 's_nop':
            self.kind = 'nop'; self.states = int(ops[0], 0) + 1; return
        if mn.startswith('v_mfma'):
            self.kind = 'mfma'
            self.wr = R(0); self.srcAB = R(1) + R(2); self.srcC = R(3); self.rd = self.srcAB + self.srcC
            self.passes = 8 if '32x32' in mn else 4
            return
        if mn.startswith('v_'):
            self.kind = 'valu'
            if 'row_' in mods or 'quad_perm' in mods or 'wave_' in mods or 'row_' in rest: self.dpp = True
            if mn.startswith('v_cmp'):
                self.wr = R(0); self.rd = allregs(1)
                if mn.startswith('v_cmpx'): self.wr += parse_reg('exec')
            elif mn in ('v_readfirstlane_b32', 'v_readlane_b32'):
                self.wr = R(0); self.rd = allregs(1)
            elif mn.startswith('v_permlane') and 'swap' in mn:
                self.wr = R(0) + R(1); self.rd = R(0) + R(1)
            elif mn in ('v_add_co_u32', 'v_sub_co_u32', 'v_addc_co_u32', 'v_subb_co_u32', 'v_subrev_co_u32'):
                self.wr = R(0) + R(1); self.rd = allregs(2)
            elif mn in ('v_fmac_f32', 'v_pk_fmac_f16', 'v_fmac_f16', 'v_dot2c_f32_bf16', 'v_dot2c_f32_f16', 'v_writelane_b32'):
                self.wr = R(0); self.rd = allregs(0)
            elif mn == 'v_cndmask_b32':
                self.wr = R(0); self.rd = allregs(1)
                if len(ops) == 3: self.rd += parse_reg('vcc')
            else:
                self.wr = R(0); self.rd = allregs(1)
                if self.dpp: self.rd += R(0)
            return
        if mn.startswith('ds_'):
            self.kind = 'ds'
            if mn.startswith('ds_read') or mn.startswith('ds_bpermute') or mn.startswith('ds_swizzle') or mn.startswith('ds_permute'):
                self.wr = R(0); self.rd = allregs(1)
            else:
                self.rd = allregs(0)
            return
        if mn.startswith('buffer_') or mn.startswith('global_'):
            self.kind = 'vmem'
            words = (rest.replace(',', ' ')).split()
            if mn.startswith('buffer_load') or mn.startswith('global_load'):
                if 'lds' in words or 'lds' in mn.split('_'):
                    self.lds_dma = True; self.rd = allregs(0) + parse_reg('m0')
                else:
                    self.wr = R(0); self.rd = allregs(1)
            elif 'store' in mn:
                self.rd = allregs(0)
                self.store_data = R(0) if mn.startswith('buffer') else R(1)
                if 'x4' in mn or 'x3' in mn: self.wide_store = True
            elif 'atomic' in mn:
                self.rd = allregs(0)
                if 'sc0' in words: self.wr = R(0) if mn.startswith('buffer') else R(0)
            else:
                self.rd = allregs(0)
            return
        if mn.startswith('s_'):
            self.kind = 'salu'
            if mn.startswith('s_cmp') or mn.startswith('s_cbranch') or mn in ('s_branch', 's_waitcnt', 's_barrier', 's_endpgm', 's_setprio', 's_sleep'):
                self.rd = allregs(0)
                if mn.startswith('s_cbranch') or mn == 's_branch': self.kind = 'branch'
            elif mn.startswith('s_load') or mn.startswith('s_buffer_load') or mn in ('s_memtime', 's_memrealtime'):
                self.kind = 'smem'; self.wr = R(0); self.rd = allregs(1)
            elif 'saveexec' in mn:
                self.wr = R(0) + parse_reg('exec'); self.rd = allregs(1) + parse_reg('exec')
            else:
                self.wr = R(0); self.rd = allregs(1)
            return
        raise ValueError('unknown instr: ' + text)

def fix_hazards(lines):
    out = []
    hist = []
    pos = 0
    def need(ins):
        req = 0
        for (p, ppos) in reversed(hist):
            d = pos - ppos - p.states
            d = pos - (ppos + p.states)
            if d >= 20: break
            n = 0
            pw = set(p.wr);
            rd = set(ins.rd); wr = set(ins.wr)
            vw = {r for r in pw if r[0] in 'va'}
            sw = {r for r in pw if r[0] == 's'}
            if p.kind == 'valu':
                if ins.kind == 'mfma' and vw & rd: n = max(n, 2)
                if ins.kind == 'valu' and ins.dpp and vw & rd: n = max(n, 2)
                if ins.kind == 'valu' and ins.mn.startswith('v_permlane') and vw & rd: n = max(n, 2)
                if ins.kind == 'valu' and ins.mn in ('v_readfirstlane_b32', 'v_readlane_b32') and vw & rd: n = max(n, 1)
                if p.mn in TRANS and ins.kind in ('valu', 'mfma') and vw & rd and ins.mn not in TRANS: n = max(n, 1)
                if p.mn in TRANS and ins.kind in ('valu',) and vw & rd: n = max(n, 1)
                if sw:
                    if ins.kind == 'vmem' and sw & rd: n = max(n, 5)
                    if ins.kind == 'valu' and sw & rd: n = max(n, 2)
                    if ins.mn in ('v_readlane_b32', 'v_writelane_b32') and sw & rd: n = max(n, 4)
                    if ('s', 126) in sw or ('s', 127) in sw:
                        if ins.kind == 'mfma': n = max(n, 4)
                        if ins.kind == 'valu' and ins.dpp: n = max(n, 5)
                        if ins.mn in ('v_readfirstlane_b32', 'v_readlane_b32', 'v_writelane_b32') or ins.mn.startswith('v_permlane'): n = max(n, 4)
                    if ins.kind in ('salu', 'branch', 'smem') and sw & rd: n = max(n, 3)
                    if ins.kind == 'branch' and ins.mn in ('s_cbranch_vccz', 's_cbranch_vccnz', 's_cbranch_execz', 's_cbranch_execnz'): n = max(n, 5)
                if ('sdwa' in p.text or 'op_sel' in p.text) and ins.kind == 'valu' and vw & (rd | wr): n = max(n, 1)
            if p.kind == 'mfma':
                D = set(p.wr)
                big = p.passes == 8
                if ins.kind == 'mfma':
                    if D & set(ins.srcAB): n = max(n, 12 if big else 8)
                    c = set(ins.srcC)
                    if D & c:
                        if not (c == D and ins.passes == p.passes): n = max(n, 10 if big else 6)
                    if D & set(ins.wr) and not (D & c): n = max(n, 10 if big else 6)
                elif ins.kind in ('valu', 'ds', 'vmem'):
                    if D & (rd | wr): n = max(n, 12 if big else 8)
                if ins.kind == 'valu' and set(p.srcC) & wr: n = max(n, 7 if big else 3)
            if p.kind == 'vmem' and p.store_data and p.wide_store:
                sd = set(p.store_data)
                if sd & wr: n = max(n, 2 if ins.kind == 'valu' else 1)
            if p.kind == 'salu':
                if ('s', 124) in sw and (ins.lds_dma or ins.mn.startswith('s_movrel') or 'addtid' in ins.mn): n = max(n, 1)
                if (('s', 126) in sw or ('s', 127) in sw) and ins.kind == 'valu' and ins.dpp: n = max(n, 0)
            req = max(req, n - d)
        return req
    for ln in lines:
        for sub in ln.split('\n'):
            ins = Ins(sub)
            if ins.kind in ('none', 'label', 'dir'):
                out.append(sub); continue
            r = need(ins)
            while r > 0:
                k = min(r, 16)
                nop = Ins(f's_nop {k-1}')
                out.append(f'  s_nop {k-1}')
                hist.append((nop, pos)); pos += k; r -= k
            out.append(sub if sub.startswith(' ') else '  ' + sub)
            hist.append((ins, pos)); pos += ins.states
            if len(hist) > 64: hist = hist[-48:]
    return out

class Kern:
    def __init__(self, name, vgprs=256, agprs=0, sgprs=96):
        self.name = name; self.L = []; self.vgprs = vgprs; self.agprs = agprs; self.sgprs = sgprs
        self.extra_entries = []
    def __call__(self, s): self.L.append(s)
    def emit(self):
        body = fix_hazards(self.L)
        txt = []
        txt.append(f'.globl {self.name}\n.p2align 8\n.type {self.name},@function\n{self.name}:')
        txt += body
        return '\n'.join(txt)
    def desc(self, name=None):
        name = name or self.name
        acc = (self.vgprs + 3) // 4 * 4
        nfv = acc + self.agprs if self.agprs else self.vgprs
        return f""".amdhsa_kernel {name}
  .amdhsa_next_free_vgpr {nfv}
  .amdhsa_next_free_sgpr {self.sgprs}
  .amdhsa_accum_offset {acc}
  .amdhsa_group_segment_fixed_size 0
  .amdhsa_kernarg_size 104
  .amdhsa_user_sgpr_count 2
  .amdhsa_user_sgpr_kernarg_segment_ptr 1
  .amdhsa_system_sgpr_workgroup_id_x 1
  .amdhsa_float_denorm_mode_32 3
  .amdhsa_float_denorm_mode_16_64 3
.end_amdhsa_kernel"""
```

```python
import sys
from asmlib import *

S = 2048; D = 448; F = 1792
OFF_XR = 0x0;       SZ_XR = 448 * 4160
OFF_YT = 0x200000;  SZ_ACT = 2048 * 448 * 2
OFF_YF = 0x400000
OFF_X1 = 0x600000
OFF_XN = 0x800000
OFF_X2 = 0xA00000
OFF_WGU = 0xC00000; SZ_WGU = 56 * 28 * 2 * 1024
OFF_WD = 0x1000000; SZ_WD = 14 * 112 * 1024
OFF_H = 0x1200000;  SZ_H = 64 * 112 * 1024
ARG = dict(q=0, k=8, v=16, shift=24, ssmk=32, ssmD=40, bx=48, wg=56, wu=64, wd=72, out=80, dbg=88, ws=96)

def load_ptr(k, sreg, name):
    k(f's_load_dwordx2 s[{sreg}:{sreg+1}], s[0:1], {ARG[name]}')

def srd(k, d, p, off, size):
    if off:
        k(f's_add_u32 s{d}, s{p}, {off:#x}')
        k(f's_addc_u32 s{d+1}, s{p+1}, 0')
    else:
        k(f's_mov_b32 s{d}, s{p}')
        k(f's_mov_b32 s{d+1}, s{p+1}')
    k(f's_mov_b32 s{d+2}, {size:#x}')
    k(f's_mov_b32 s{d+3}, 0x20000')

def udiv_magic(k, dst, src, d):
    m = (2**32 + d - 1) // d
    k(f's_mul_hi_u32 s{dst}, s{src}, {m:#x}')

def gen_pre():
    k = Kern('pre_kernel', vgprs=96, sgprs=64)
    k('s_cmp_ge_u32 s2, 518')
    k('s_cbranch_scc1 L_pre_end')
    k('s_cmp_ge_u32 s2, 224')
    k('s_cbranch_scc1 L_pre_w')
    load_ptr(k, 4, 'k'); load_ptr(k, 6, 'v'); load_ptr(k, 8, 'shift'); load_ptr(k, 10, 'ws')
    udiv_magic(k, 12, 2, 7)
    k('s_mul_i32 s13, s12, 7')
    k('s_sub_u32 s13, s2, s13')
    k('v_and_b32 v1, 31, v0')
    k('v_lshrrev_b32 v2, 5, v0')
    k('s_lshl_b32 s14, s13, 7')
    k('v_lshl_add_u32 v3, v1, 2, s14')
    k('s_mul_i32 s15, s12, 64*896')
    k('v_mul_u32_u24 v4, 8*896, v2')
    k('v_add3_u32 v4, v4, v3, s15')
    k('v_add_u32 v5, 5*896, v4')
    k('v_subrev_u32 v6, 3*896, v4')
    k('v_lshlrev_b32 v7, 2, v3')
    k('s_waitcnt lgkmcnt(0)')
    srd(k, 16, 4, 0, SZ_ACT)
    srd(k, 20, 6, 0, SZ_ACT)
    srd(k, 24, 8, 0, 448 * 8)
    srd(k, 28, 10, OFF_XR, SZ_XR)
    K0 = 16
    V0 = 28
    for j in range(3): k(f'buffer_load_dword v{K0+j}, v6, s[16:19], 0 offen offset:{896*j}')
    for j in range(5): k(f'buffer_load_dword v{K0+3+j}, v4, s[16:19], 0 offen offset:{896*j}')
    for j in range(3): k(f'buffer_load_dword v{K0+8+j}, v5, s[16:19], 0 offen offset:{896*j}')
    for j in range(5): k(f'buffer_load_dword v{V0+j}, v4, s[20:23], 0 offen offset:{896*j}')
    for j in range(3): k(f'buffer_load_dword v{V0+5+j}, v5, s[20:23], 0 offen offset:{896*j}')
    k('buffer_load_dwordx4 v[36:39], v7, s[24:27], 0 offen')
    k('v_mul_u32_u24 v8, 2080, v3')
    k('s_lshl_b32 s32, s12, 7')
    k('v_lshlrev_b32 v9, 4, v2')
    k('v_add_u32 v9, s32, v9')
    k('v_sub_u32 v9, 4080, v9')
    k('v_add_u32 v9, v8, v9')
    k('s_movk_i32 s33, 4160')
    k('s_waitcnt vmcnt(0)')
    SK = 40
    for c in range(2):
        k(f'v_lshlrev_b32 v{SK+4*c+0}, 16, v{36+2*c}')
        k(f'v_and_b32 v{SK+4*c+1}, 0xffff0000, v{36+2*c}')
        k(f'v_lshlrev_b32 v{SK+4*c+2}, 16, v{37+2*c}')
        k(f'v_and_b32 v{SK+4*c+3}, 0xffff0000, v{37+2*c}')
    KF = 48
    for c in range(2):
        for j in range(11):
            if c == 0: k(f'v_lshlrev_b32 v{KF+j}, 16, v{K0+j}')
            else: k(f'v_and_b32 v{KF+j}, 0xffff0000, v{K0+j}')
        for t in range(8):
            r = 60 + t
            k(f'v_mul_f32 v{r}, v{SK+4*c+3}, v{KF+t}')
            k(f'v_fmac_f32 v{r}, v{SK+4*c+2}, v{KF+t+1}')
            k(f'v_fmac_f32 v{r}, v{SK+4*c+1}, v{KF+t+2}')
            k(f'v_fmac_f32 v{r}, v{SK+4*c+0}, v{KF+t+3}')
            if c == 0: k(f'v_lshlrev_b32 v68, 16, v{V0+t}')
            else: k(f'v_and_b32 v68, 0xffff0000, v{V0+t}')
            k(f'v_mul_f32 v{r}, v{r}, v68')
        o = 72 + 4 * c
        for i in range(4):
            k(f'v_cvt_pk_bf16_f32 v{o+i}, v{60+7-2*i}, v{60+6-2*i}')
        if c == 0: k(f'buffer_store_dwordx4 v[{o}:{o+3}], v9, s[28:31], 0 offen')
        else: k(f'buffer_store_dwordx4 v[{o}:{o+3}], v9, s[28:31], s33 offen')
    k('s_cmp_lg_u32 s12, 0')
    k('s_cbranch_scc1 L_pre_end')
    k('v_lshlrev_b32 v10, 4, v2')
    k('v_add3_u32 v10, v10, v8, 0')
    k('v_add_u32 v10, 4096, v10')
    for i in range(4): k(f'v_mov_b32 v{80+i}, 0')
    k('v_cmp_gt_u32 vcc, 4, v2')
    k('s_and_saveexec_b64 s[34:35], vcc')
    k('s_cbranch_execz L_pre_end')
    k('buffer_store_dwordx4 v[80:83], v10, s[28:31], 0 offen')
    k('buffer_store_dwordx4 v[80:83], v10, s[28:31], s33 offen')
    k('s_endpgm')
    k('L_pre_w:')
    load_ptr(k, 4, 'wg'); load_ptr(k, 6, 'wu'); load_ptr(k, 8, 'wd'); load_ptr(k, 10, 'ws')
    k('v_lshrrev_b32 v1, 6, v0')
    k('v_and_b32 v2, 63, v0')
    k('v_readfirstlane_b32 s12, v1')
    k('s_sub_u32 s13, s2, 224')
    k('s_lshl_b32 s13, s13, 2')
    k('s_add_u32 s13, s13, s12')
    k('v_and_b32 v3, 31, v2')
    k('v_lshrrev_b32 v4, 5, v2')
    k('v_lshlrev_b32 v5, 4, v2')
    k('s_waitcnt lgkmcnt(0)')
    k('s_cmp_ge_u32 s13, 784')
    k('s_cbranch_scc1 L_pre_wd')
    srd(k, 16, 4, 0, 448 * 1792 * 2)
    srd(k, 20, 6, 0, 448 * 1792 * 2)
    srd(k, 24, 10, OFF_WGU, SZ_WGU)
    udiv_magic(k, 14, 13, 14)
    k('s_mul_i32 s15, s14, 14')
    k('s_sub_u32 s15, s13, s15')
    k('s_mul_i32 s28, s15, 2*16*3584')
    k('s_lshl_b32 s29, s14, 6')
    k('s_add_u32 s28, s28, s29')
    k('s_add_u32 s29, s28, 16*3584')
    k('v_mul_u32_u24 v6, 8*3584, v4')
    k('v_lshl_add_u32 v6, v3, 1, v6')
    for j in range(1, 8): k(f'v_add_u32 v{6+j}, {j*3584}, v6')
    fr = [(28, 16), (28, 20), (29, 16), (29, 20)]
    for f, (so, sr) in enumerate(fr):
        for j in range(8):
            k(f'buffer_load_ushort v{16+8*f+j}, v{6+j}, s[{sr}:{sr+3}], s{so} offen')
    k('s_lshl_b32 s30, s13, 12')
    for f in range(4):
        k(f's_waitcnt vmcnt({8*(3-f)+f})')
        for i in range(4):
            k(f'v_lshl_or_b32 v{48+4*f+i}, v{16+8*f+2*i+1}, 16, v{16+8*f+2*i}')
        k(f'buffer_store_dwordx4 v[{48+4*f}:{51+4*f}], v5, s[24:27], s30 offen offset:{1024*f}')
    k('s_endpgm')
    k('L_pre_wd:')
    srd(k, 16, 8, 0, 1792 * 448 * 2)
    srd(k, 24, 10, OFF_WD, SZ_WD)
    k('s_sub_u32 s13, s13, 784')
    udiv_magic(k, 14, 13, 28)
    k('s_mul_i32 s15, s14, 28')
    k('s_sub_u32 s15, s13, s15')
    k('s_mul_i32 s28, s15, 4*16*896')
    k('s_lshl_b32 s29, s14, 6')
    k('s_add_u32 s28, s28, s29')
    k('v_mul_u32_u24 v6, 4*896, v4')
    k('v_lshl_add_u32 v6, v3, 1, v6')
    k('v_add_u32 v7, 8*896, v6')
    for f in range(4):
        for j in range(8):
            k(f'buffer_load_ushort v{16+8*f+j}, v{6 + (j>>2)}, s[16:19], s28 offen offset:{896*(j&3)}')
        if f < 3: k('s_add_u32 s28, s28, 16*896')
    k('s_lshl_b32 s30, s13, 12')
    for f in range(4):
        k(f's_waitcnt vmcnt({8*(3-f)+f})')
        for i in range(4):
            k(f'v_lshl_or_b32 v{48+4*f+i}, v{16+8*f+2*i+1}, 16, v{16+8*f+2*i}')
        k(f'buffer_store_dwordx4 v[{48+4*f}:{51+4*f}], v5, s[24:27], s30 offen offset:{1024*f}')
    k('L_pre_end:')
    k('s_endpgm')
    return k, (518, 256, 0)

CH_STRIDE = 37888
S_OFF = 33280
CONV_SCR = 2 * CH_STRIDE
CONV_LDS = CONV_SCR + 16384

def gen_conv():
    k = Kern('conv_kernel', vgprs=224, sgprs=64)
    k('s_cmp_ge_u32 s2, 224')
    k('s_cbranch_scc1 L_conv_end')
    load_ptr(k, 4, 'ssmk'); load_ptr(k, 6, 'ssmD'); load_ptr(k, 8, 'ws')
    k('v_lshrrev_b32 v1, 6, v0')
    k('v_and_b32 v2, 63, v0')
    k('v_readfirstlane_b32 s12, v1')
    k('s_lshr_b32 s13, s12, 1')
    k('s_and_b32 s14, s12, 1')
    k('s_lshl_b32 s15, s2, 1')
    k('s_add_u32 s15, s15, s13')
    k('s_mul_i32 s33, s13, %d' % CH_STRIDE)
    k('v_lshlrev_b32 v3, 4, v2')
    k('s_waitcnt lgkmcnt(0)')
    srd(k, 16, 8, OFF_XR, SZ_XR)
    srd(k, 20, 4, 0, 448 * 4096)
    srd(k, 24, 8, OFF_YT, SZ_ACT)
    k('s_lshl_b32 s34, s2, 2')
    k('s_load_dword s35, s[6:7], s34')
    k('s_mul_i32 s36, s15, 4160')
    k('s_lshl_b32 s37, s14, 3')
    k('s_sub_u32 s36, s36, s37')
    k('s_add_u32 s36, s36, 14')
    k('s_mul_i32 s38, s14, 4*4160')
    k('s_add_u32 s38, s38, s33')
    for c in range(4):
        k('s_mov_b32 m0, s38')
        for ck in range(4):
            k(f'buffer_load_dwordx4 v3, s[16:19], s36 offen offset:{1024*ck} lds')
        if c < 3:
            k('s_sub_u32 s36, s36, 2')
            k('s_add_u32 s38, s38, 4160')
    k('s_lshl_b32 s39, s15, 12')
    k('s_lshl_b32 s40, s14, 11')
    k('s_add_u32 s39, s39, s40')
    k('s_add_u32 s40, s40, s33')
    k('s_add_u32 s40, s40, %d' % (S_OFF + 480))
    k('s_mov_b32 m0, s40')
    k('s_nop 0')
    for ck in range(2):
        k(f'buffer_load_dwordx4 v3, s[20:23], s39 offen offset:{1024*ck} lds')
    for i in range(4): k(f'v_mov_b32 v{8+i}, 0')
    k('v_cmp_eq_u32 vcc, 0, v2')
    k('s_cmp_eq_u32 s14, 0')
    k('s_cbranch_scc0 L_conv_z1')
    k('v_add_u32 v4, s33, v3')
    k('v_add_u32 v4, %d, v4' % S_OFF)
    k('v_cmp_gt_u32 vcc, 30, v2')
    k('s_and_saveexec_b64 s[42:43], vcc')
    k('ds_write_b128 v4, v[8:11]')
    k('s_mov_b64 exec, s[42:43]')
    k('s_branch L_conv_z2')
    k('L_conv_z1:')
    k('v_mul_u32_u24 v4, 4160, v2')
    k('v_add_u32 v4, s33, v4')
    k('v_add_u32 v4, 4096, v4')
    k('v_cmp_gt_u32 vcc, 8, v2')
    k('s_and_saveexec_b64 s[42:43], vcc')
    k('ds_write_b128 v4, v[8:11]')
    k('s_mov_b64 exec, s[42:43]')
    k('L_conv_z2:')
    k('v_and_b32 v5, 15, v2')
    k('v_lshrrev_b32 v6, 4, v2')
    k('v_lshlrev_b32 v7, 5, v5')
    k('v_lshl_add_u32 v7, v6, 4, v7')
    k('s_xor_b32 s41, s14, 1')
    k('s_lshl_b32 s41, s41, 6')
    k('s_add_u32 s41, s41, s33')
    k('s_add_u32 s41, s41, %d' % S_OFF)
    k('v_add_u32 v7, s41, v7')
    k('v_and_b32 v12, 7, v5')
    k('v_mul_u32_u24 v12, 4160, v12')
    k('v_lshrrev_b32 v13, 3, v5')
    k('v_sub_u32 v13, v6, v13')
    k('v_lshlrev_b32 v13, 4, v13')
    k('v_add_u32 v12, v12, v13')
    k('s_lshl_b32 s41, s14, 6')
    k('s_sub_u32 s41, s33, s41')
    k('s_add_u32 s41, s41, %d' % (16 * 253 - 128 * 31))
    k('v_add_u32 v12, s41, v12')
    ACC = 16
    FR = 48
    AR = 176
    for i in range(32): k(f'v_mov_b32 v{ACC+i}, 0')
    k('s_waitcnt vmcnt(0) lgkmcnt(0)')
    k('s_barrier')
    order = list(range(31, -1, -1))
    NA = 8
    used = []
    def frags(jj): return [(at, 4 * at - jj + 3) for at in range(jj // 4, 8)]
    pend = []
    def issue(tag, txt):
        k(txt); pend.append(tag)
    def wait_for(tags):
        last = max(pend.index(t) for t in tags if t in pend) if any(t in pend for t in tags) else -1
        if last >= 0:
            n = len(pend) - 1 - last
            k(f's_waitcnt lgkmcnt({min(n,15)})')
            keep = pend[len(pend) - min(n, 15):] if min(n, 15) > 0 else []
            pend[:] = keep
    loadedF = set()
    def issueA(idx):
        jj = order[idx]; r = AR + 4 * (idx % NA)
        issue(('A', jj), f'ds_read_b128 v[{r}:{r+3}], v12 offset:{128*(31-jj)}')
    def issueF(idx):
        jj = order[idx]
        for at, n in frags(jj):
            if n not in loadedF:
                loadedF.add(n)
                issue(('F', n), f'ds_read_b128 v[{FR+4*n}:{FR+4*n+3}], v7 offset:{128*n}')
    LA = 4
    for idx in range(LA):
        issueA(idx); issueF(idx)
    for idx, jj in enumerate(order):
        if idx + LA < 32:
            issueA(idx + LA); issueF(idx + LA)
        wait_for([('A', jj)] + [('F', n) for _, n in frags(jj)])
        r = AR + 4 * (idx % NA)
        for at, n in frags(jj):
            k(f'v_mfma_f32_16x16x32_bf16 v[{ACC+4*at}:{ACC+4*at+3}], v[{r}:{r+3}], v[{FR+4*n}:{FR+4*n+3}], v[{ACC+4*at}:{ACC+4*at+3}]')
    k('s_lshl_b32 s41, s12, 12')
    k('s_add_u32 s41, s41, %d' % CONV_SCR)
    k('v_add_u32 v8, s41, v3')
    k('s_xor_b32 s42, s12, 1')
    k('s_lshl_b32 s42, s42, 12')
    k('s_add_u32 s42, s42, %d' % CONV_SCR)
    k('v_add_u32 v9, s42, v3')
    k('v_lshlrev_b32 v10, 5, v5')
    k('v_lshl_add_u32 v10, v6, 3, v10')
    k('s_lshl_b32 s43, s14, 11')
    k('s_sub_u32 s43, s33, s43')
    k('s_add_u32 s43, s43, %d' % (7 * 4160 + 4088 - 512 * 3))
    k('v_sub_u32 v11, s43, v10')
    k('s_lshl_b32 s44, s15, 12')
    k('s_lshl_b32 s45, s14, 11')
    k('s_add_u32 s44, s44, s45')
    k('v_add_u32 v10, s44, v10')
    k('s_cmp_eq_u32 s14, 0')
    k('s_cbranch_scc0 L_conv_p1')
    for i in range(4): k(f'ds_write_b128 v8, v[{ACC+16+4*i}:{ACC+16+4*i+3}] offset:{1024*i}')
    k('s_branch L_conv_p2')
    k('L_conv_p1:')
    for i in range(4): k(f'ds_write_b128 v8, v[{ACC+4*i}:{ACC+4*i+3}] offset:{1024*i}')
    for i in range(16): k(f'v_mov_b32 v{ACC+i}, v{ACC+16+i}')
    k('L_conv_p2:')
    k('s_waitcnt lgkmcnt(0)')
    k('s_lshl_b32 s46, s35, 16')
    k('s_and_b32 s47, s35, 0xffff0000')
    k('s_cmp_eq_u32 s13, 0')
    k('s_cselect_b32 s46, s46, s47')
    k('s_barrier')
    for i in range(4): k(f'ds_read_b128 v[{48+4*i}:{51+4*i}], v9 offset:{1024*i}')
    for i in range(4): k(f'ds_read_b64 v[{64+2*i}:{65+2*i}], v11 offset:{512*(3-i)}')
    k('s_waitcnt lgkmcnt(0)')
    for i in range(4):
        a = ACC + 4 * i
        for r in range(4): k(f'v_add_f32 v{a+r}, v{a+r}, v{48+4*i+r}')
        x0, x1 = 64 + 2 * i, 65 + 2 * i
        k(f'v_and_b32 v72, 0xffff0000, v{x1}')
        k(f'v_lshlrev_b32 v73, 16, v{x1}')
        k(f'v_and_b32 v74, 0xffff0000, v{x0}')
        k(f'v_lshlrev_b32 v75, 16, v{x0}')
        for r in range(4): k(f'v_fmac_f32 v{a+r}, s46, v{72+r}')
        k(f'v_cvt_pk_bf16_f32 v{76+2*i}, v{a}, v{a+1}')
        k(f'v_cvt_pk_bf16_f32 v{77+2*i}, v{a+2}, v{a+3}')
        k(f'buffer_store_dwordx2 v[{76+2*i}:{77+2*i}], v10, s[24:27], 0 offen offset:{512*i}')
    k('L_conv_end:')
    k('s_endpgm')
    return k, (224, 256, CONV_LDS)

def wave_reduce8(k, regs, tmp):
    for r in regs:
        k(f'v_add_f32_dpp v{r}, v{r}, v{r} row_ror:8 row_mask:0xf bank_mask:0xf')
    for r, t in zip(regs, tmp):
        k(f'v_mov_b32 v{t}, v{r}')
    for r, t in zip(regs, tmp):
        k(f'v_permlane16_swap_b32 v{r}, v{t}')
    for r, t in zip(regs, tmp):
        k(f'v_add_f32 v{r}, v{r}, v{t}')
    for r, t in zip(regs, tmp):
        k(f'v_mov_b32 v{t}, v{r}')
    for r, t in zip(regs, tmp):
        k(f'v_permlane32_swap_b32 v{r}, v{t}')
    for r, t in zip(regs, tmp):
        k(f'v_add_f32 v{r}, v{r}, v{t}')

LN_PART = 56 * 144
LN_LDS = LN_PART + 2 * 512

def gen_ln(first):
    name = 'ln1_kernel' if first else 'ln2_kernel'
    P = 'L_' + name
    k = Kern(name, vgprs=80, sgprs=64)
    k('s_cmp_ge_u32 s2, 256')
    k(f's_cbranch_scc1 {P}_end')
    load_ptr(k, 8, 'ws')
    if first: load_ptr(k, 4, 'q')
    k('v_and_b32 v1, 63, v0')
    k('v_lshrrev_b32 v2, 6, v0')
    k('v_and_b32 v3, 7, v1')
    k('v_lshrrev_b32 v4, 3, v0')
    k('s_lshr_b32 s12, s2, 2')
    k('s_mul_i32 s12, s12, 28672')
    k('s_and_b32 s13, s2, 3')
    k('s_lshl_b32 s13, s13, 7')
    k('s_add_u32 s12, s12, s13')
    k('v_lshlrev_b32 v5, 9, v4')
    k('v_lshl_add_u32 v5, v3, 4, v5')
    k('v_add_u32 v5, s12, v5')
    k('s_waitcnt lgkmcnt(0)')
    srd(k, 16, 8, OFF_XN, SZ_ACT)
    srd(k, 20, 8, OFF_X1, SZ_ACT)
    srd(k, 24, 8, OFF_YF, SZ_ACT)
    X = 16
    if first:
        srd(k, 28, 4, 0, SZ_ACT)
        srd(k, 32, 8, OFF_YT, SZ_ACT)
        k('s_mul_i32 s14, s2, 8*896')
        k('v_mul_u32_u24 v6, 896, v3')
        k('v_lshl_add_u32 v6, v4, 4, v6')
        k('v_add_u32 v6, s14, v6')
        k(f'buffer_load_dwordx4 v[{X}:{X+3}], v6, s[28:31], 0 offen')
        k('s_lshl_b32 s15, s2, 4')
        k('v_lshlrev_b32 v7, 12, v0')
        k('buffer_load_dwordx4 v[20:23], v7, s[32:35], s15 offen')
        k('v_lshrrev_b32 v8, 3, v0')
        k('v_add_u32 v8, v8, v0')
        k('v_lshlrev_b32 v8, 4, v8')
        k('v_mul_u32_u24 v9, 144, v4')
        k('v_lshl_add_u32 v9, v3, 1, v9')
    else:
        srd(k, 28, 8, OFF_X2, SZ_ACT)
        k(f'buffer_load_dwordx4 v[{X}:{X+3}], v5, s[28:31], 0 offen')
        k('buffer_load_dwordx4 v[20:23], v5, s[24:27], 0 offen')
    k('v_lshlrev_b32 v10, 3, v3')
    k(f'v_add_u32 v10, {LN_PART}, v10')
    k('v_lshl_add_u32 v11, v2, 6, v10')
    XF = 24
    YFv = 32
    if first:
        k('s_waitcnt vmcnt(0)')
        k('ds_write_b128 v8, v[20:23]')
    else:
        k('s_waitcnt vmcnt(1)')
    for i in range(4):
        k(f'v_lshlrev_b32 v{XF+2*i}, 16, v{X+i}')
        k(f'v_and_b32 v{XF+2*i+1}, 0xffff0000, v{X+i}')
    def stats(src, buf):
        k(f'v_add_f32 v40, v{src}, v{src+1}')
        k(f'v_mul_f32 v41, v{src}, v{src}')
        k(f'v_fmac_f32 v41, v{src+1}, v{src+1}')
        for i in range(2, 8):
            k(f'v_add_f32 v40, v40, v{src+i}')
            k(f'v_fmac_f32 v41, v{src+i}, v{src+i}')
        wave_reduce8(k, [40, 41], [42, 43])
        k('v_cmp_gt_u32 vcc, 8, v1')
        k('s_and_saveexec_b64 s[40:41], vcc')
        k(f'ds_write_b64 v11, v[40:41] offset:{512*buf}')
        k('s_mov_b64 exec, s[40:41]')
        k('s_waitcnt lgkmcnt(0)')
        k('s_barrier')
        for w in range(7): k(f'ds_read_b64 v[{44+2*w}:{45+2*w}], v10 offset:{512*buf + 64*w}')
    def finish_stats():
        for w in range(1, 7):
            k(f'v_add_f32 v44, v44, v{44+2*w}')
            k(f'v_add_f32 v45, v45, v{45+2*w}')
        k('v_mul_f32 v40, 0x3b124925, v44')
        k('v_mul_f32 v41, 0x3b124925, v45')
        k('v_fma_f32 v41, -v40, v40, v41')
        k('v_max_f32 v41, 0, v41')
        k('v_add_f32 v41, 0x3727c5ac, v41')
        k('v_rsq_f32 v41, v41')
    stats(XF, 0)
    if first:
        for j in range(8): k(f'ds_read_u16 v{YFv+j}, v9 offset:{16*j}')
        k('s_waitcnt lgkmcnt(8)')
    else:
        k('s_waitcnt lgkmcnt(0) vmcnt(0)')
    finish_stats()
    if first:
        k('s_waitcnt lgkmcnt(0)')
        for i in range(4): k(f'v_lshl_or_b32 v{20+i}, v{YFv+2*i+1}, 16, v{YFv+2*i}')
        for j in range(8): k(f'v_lshlrev_b32 v{YFv+j}, 16, v{YFv+j}')
        k('buffer_store_dwordx4 v[20:23], v5, s[24:27], 0 offen')
    else:
        for i in range(4):
            k(f'v_lshlrev_b32 v{YFv+2*i}, 16, v{20+i}')
            k(f'v_and_b32 v{YFv+2*i+1}, 0xffff0000, v{20+i}')
    k('v_mul_f32 v42, v40, v41')
    for j in range(8):
        k(f'v_fma_f32 v{60+j}, v{XF+j}, v41, -v42')
    for j in range(8):
        k(f'v_fmac_f32 v{XF+j}, v{60+j}, v{YFv+j}')
    for i in range(4): k(f'v_cvt_pk_bf16_f32 v{X+i}, v{XF+2*i}, v{XF+2*i+1}')
    k(f'buffer_store_dwordx4 v[{X}:{X+3}], v5, s[20:23], 0 offen')
    for i in range(4):
        k(f'v_lshlrev_b32 v{XF+2*i}, 16, v{X+i}')
        k(f'v_and_b32 v{XF+2*i+1}, 0xffff0000, v{X+i}')
    stats(XF, 1)
    k('s_waitcnt lgkmcnt(0)')
    finish_stats()
    k('v_mul_f32 v42, v40, v41')
    for j in range(8):
        k(f'v_fma_f32 v{60+j}, v{XF+j}, v41, -v42')
    for i in range(4): k(f'v_cvt_pk_bf16_f32 v{68+i}, v{60+2*i}, v{60+2*i+1}')
    k('buffer_store_dwordx4 v[68:71], v5, s[16:19], 0 offen')
    k(f'{P}_end:')
    k('s_endpgm')
    return k, (256, 448, LN_LDS)

def gen_g1():
    k = Kern('g1_kernel', vgprs=176, agprs=224, sgprs=64)
    k('s_cmp_ge_u32 s2, 224')
    k('s_cbranch_scc1 L_g1_end')
    load_ptr(k, 8, 'ws')
    k('v_lshrrev_b32 v1, 6, v0')
    k('v_and_b32 v2, 63, v0')
    k('v_readfirstlane_b32 s12, v1')
    k('v_lshlrev_b32 v3, 4, v2')
    k('s_and_b32 s13, s2, 7')
    k('s_lshr_b32 s14, s2, 3')
    udiv_magic(k, 15, 14, 7)
    k('s_mul_i32 s28, s15, 7')
    k('s_sub_u32 s28, s14, s28')
    k('s_lshr_b32 s29, s13, 1')
    k('s_lshl_b32 s29, s29, 2')
    k('s_add_u32 s29, s29, s15')
    k('s_and_b32 s30, s13, 1')
    k('s_mul_i32 s30, s30, 7')
    k('s_add_u32 s30, s30, s28')
    k('s_lshl_b32 s31, s30, 2')
    k('s_add_u32 s31, s31, s12')
    k('s_lshl_b32 s32, s29, 2')
    k('s_add_u32 s33, s32, s12')
    k('s_mul_i32 s34, s33, 28672')
    k('s_mul_i32 s35, s31, 57344')
    k('s_mul_i32 s36, s12, 28672')
    k('s_waitcnt lgkmcnt(0)')
    srd(k, 16, 8, OFF_XN, SZ_ACT)
    srd(k, 20, 8, OFF_WGU, SZ_WGU)
    srd(k, 24, 8, OFF_H, SZ_H)
    ACC = 0
    ACC = 48
    TF = 16
    PF = 8
    NKS = 28
    vm = []
    def issue_group(ks):
        k(f's_add_u32 s37, s36, {ks*1024}')
        k('s_mov_b32 m0, s37')
        k(f's_add_u32 s38, s34, {ks*1024}')
        k('buffer_load_dwordx4 v3, s[16:19], s38 offen lds')
        vm.append(('T', ks))
        k(f's_add_u32 s39, s35, {ks*2048}')
        k(f'buffer_load_dwordx4 a[{8*ks}:{8*ks+3}], v3, s[20:23], s39 offen')
        k(f'buffer_load_dwordx4 a[{8*ks+4}:{8*ks+7}], v3, s[20:23], s39 offen offset:1024')
        vm.append(('G', ks)); vm.append(('U', ks))
    def vwait(tag):
        n = len(vm) - 1 - vm.index(tag)
        k(f's_waitcnt vmcnt({n})')
    for ks in range(PF): issue_group(ks)
    for i in range(128): k(f'v_mov_b32 v{ACC+i}, 0')
    GRP = 2
    k('v_add_u32 v4, 57344, v3')
    def tok_read(ks, tt):
        r = TF + 16 * (ks % 2) + 4 * tt
        base = 'v3' if tt < 2 else 'v4'
        off = (tt % 2) * 28672 + ks * 1024
        return f'ds_read_b128 v[{r}:{r+3}], {base} offset:{off}'
    vwait(('U', GRP - 1)); k('s_barrier')
    for tt in range(4): k(tok_read(0, tt))
    for ks in range(NKS):
        nxt = ks + 1
        if nxt < NKS and nxt % GRP == 0:
            vwait(('U', min(nxt + GRP - 1, NKS - 1)))
            k('s_barrier')
        k('s_waitcnt lgkmcnt(0)')
        ext = []
        if nxt < NKS: ext += [tok_read(nxt, tt) for tt in range(4)]
        mf = []
        for tt in range(4):
            b = TF + 16 * (ks % 2) + 4 * tt
            for gu in range(2):
                acc = ACC + 32 * tt + 16 * gu
                mf.append(f'v_mfma_f32_32x32x16_bf16 v[{acc}:{acc+15}], a[{8*ks+4*gu}:{8*ks+4*gu+3}], v[{b}:{b+3}], v[{acc}:{acc+15}]')
        for m, s in enumerate(mf):
            k(s)
            if m < len(ext): k(ext[m])
            if m == 5 and ks + PF < NKS: issue_group(ks + PF)
    k('s_lshl_b32 s40, s31, 11')
    for tt in range(4):
        k(f's_add_u32 s41, s32, {tt}')
        k('s_mul_i32 s41, s41, 112*1024')
        k('s_add_u32 s41, s41, s40')
        g = ACC + 32 * tt; u = g + 16
        for i in range(16):
            t = 16 + (i % 8)
            k(f'v_mul_f32 v{t}, 0xbfb8aa3b, v{g+i}')
            k(f'v_exp_f32 v{t}, v{t}')
            k(f'v_mul_f32 v{u+i}, v{g+i}, v{u+i}')
            k(f'v_add_f32 v{t}, 1.0, v{t}')
            k(f'v_rcp_f32 v{t}, v{t}')
            k(f'v_mul_f32 v{u+i}, v{u+i}, v{t}')
        for s in range(2):
            o = 24 + 4 * s + 8 * (tt % 2)
            for i in range(4): k(f'v_cvt_pk_bf16_f32 v{o+i}, v{u+8*s+2*i}, v{u+8*s+2*i+1}')
            k(f'buffer_store_dwordx4 v[{o}:{o+3}], v3, s[24:27], s41 offen offset:{1024*s}')
    k('L_g1_end:')
    k('s_endpgm')
    return k, (224, 256, 4 * 28672)

G2_ROW = 272
G2_PART = 64 * G2_ROW
def gen_g2(final):
    name = 'g2b_kernel' if final else 'g2a_kernel'
    P = 'L_' + name
    k = Kern(name, vgprs=96, agprs=224, sgprs=64)
    k('s_cmp_ge_u32 s2, 224')
    k(f's_cbranch_scc1 {P}_end')
    load_ptr(k, 8, 'ws')
    if final: load_ptr(k, 4, 'out')
    k('v_lshrrev_b32 v1, 6, v0')
    k('v_and_b32 v2, 63, v0')
    k('v_readfirstlane_b32 s12, v1')
    k('v_lshlrev_b32 v3, 4, v2')
    k('s_and_b32 s13, s2, 7')
    k('s_lshr_b32 s14, s2, 3')
    udiv_magic(k, 15, 14, 7)
    k('s_mul_i32 s28, s15, 7')
    k('s_sub_u32 s28, s14, s28')
    k('s_lshl_b32 s29, s13, 2')
    k('s_add_u32 s29, s29, s15')
    k('s_mul_i32 s30, s29, 224*1024')
    k('s_mul_i32 s31, s12, 28*1024')
    k('s_add_u32 s30, s30, s31')
    k('s_add_u32 s32, s30, 112*1024')
    k('s_mul_i32 s33, s28, 224*1024')
    k('s_add_u32 s33, s33, s31')
    k('s_add_u32 s34, s33, 112*1024')
    k('s_waitcnt lgkmcnt(0)')
    srd(k, 16, 8, OFF_H, SZ_H)
    srd(k, 20, 8, OFF_WD, SZ_WD)
    srd(k, 24, 8, OFF_X1, SZ_ACT)
    if final: srd(k, 36, 4, 0, SZ_ACT)
    else: srd(k, 36, 8, OFF_X2, SZ_ACT)
    NKS = 28; PF = 14
    ACC = 16
    def issue(ks):
        r = 16 * (ks % PF)
        o = (ks % 4) * 1024
        if ks % 4 == 0 and ks > 0:
            for s in (30, 32, 33, 34): k(f's_add_u32 s{s}, s{s}, 4096')
        k(f'buffer_load_dwordx4 a[{r}:{r+3}], v3, s[20:23], s33 offen offset:{o}')
        k(f'buffer_load_dwordx4 a[{r+4}:{r+7}], v3, s[20:23], s34 offen offset:{o}')
        k(f'buffer_load_dwordx4 a[{r+8}:{r+11}], v3, s[16:19], s30 offen offset:{o}')
        k(f'buffer_load_dwordx4 a[{r+12}:{r+15}], v3, s[16:19], s32 offen offset:{o}')
    for ks in range(PF): issue(ks)
    for i in range(64): k(f'v_mov_b32 v{ACC+i}, 0')
    for ks in range(NKS):
        remaining = min(NKS - 1, ks + PF - 1) - ks
        k(f's_waitcnt vmcnt({4*remaining})')
        r = 16 * (ks % PF)
        for ct in range(2):
            for tt in range(2):
                acc = ACC + 32 * ct + 16 * tt
                k(f'v_mfma_f32_32x32x16_bf16 v[{acc}:{acc+15}], a[{r+4*ct}:{r+4*ct+3}], a[{r+8+4*tt}:{r+8+4*tt+3}], v[{acc}:{acc+15}]')
        if ks + PF < NKS: issue(ks + PF)
    k('v_and_b32 v4, 31, v2')
    k('v_lshrrev_b32 v5, 5, v2')
    k(f'v_mul_u32_u24 v6, {G2_ROW}, v4')
    k('v_lshl_add_u32 v6, v5, 4, v6')
    k(f's_mul_i32 s40, s12, {G2_PART}')
    k('v_add_u32 v6, s40, v6')
    for ct in range(2):
        for tt in range(2):
            acc = ACC + 32 * ct + 16 * tt
            for rg in range(4):
                k(f'ds_write_b128 v6, v[{acc+4*rg}:{acc+4*rg+3}] offset:{tt*32*G2_ROW + ct*128 + rg*32}')
    if final:
        k('v_and_b32 v7, 7, v0')
        k('v_lshrrev_b32 v8, 3, v0')
    else:
        k('v_and_b32 v8, 31, v0')
        k('v_lshrrev_b32 v7, 5, v0')
    k(f'v_mul_u32_u24 v9, {G2_ROW}, v8')
    k('v_lshl_add_u32 v9, v7, 5, v9')
    k('s_mul_i32 s41, s29, 2*28672')
    k('s_lshl_b32 s42, s28, 12')
    k('s_add_u32 s41, s41, s42')
    k('v_lshlrev_b32 v10, 9, v7')
    k('v_lshl_add_u32 v10, v8, 4, v10')
    k('v_add_u32 v10, s41, v10')
    k('s_movk_i32 s43, 28672')
    k('buffer_load_dwordx4 v[80:83], v10, s[24:27], 0 offen')
    k('buffer_load_dwordx4 v[84:87], v10, s[24:27], s43 offen')
    if final:
        k('s_mul_i32 s44, s29, 64*896')
        k('s_lshl_b32 s45, s28, 7')
        k('s_add_u32 s44, s44, s45')
        k('v_mul_u32_u24 v11, 896, v8')
        k('v_lshl_add_u32 v11, v7, 4, v11')
        k('v_add_u32 v11, s44, v11')
        k('s_movk_i32 s46, 32*896')
    k('s_waitcnt lgkmcnt(0)')
    k('s_barrier')
    for it in range(2):
        for w in range(4):
            for hf in range(2):
                r = 16 + 8 * w + 4 * hf
                k(f'ds_read_b128 v[{r}:{r+3}], v9 offset:{w*G2_PART + it*32*G2_ROW + hf*16}')
        k('s_waitcnt lgkmcnt(0)')
        for j in range(8):
            k(f'v_add_f32 v{16+j}, v{16+j}, v{24+j}')
            k(f'v_add_f32 v{32+j}, v{32+j}, v{40+j}')
        k('s_waitcnt vmcnt(1)')
        for j in range(8): k(f'v_add_f32 v{16+j}, v{16+j}, v{32+j}')
        rs = 80 + 4 * it
        for i in range(4):
            k(f'v_lshlrev_b32 v48, 16, v{rs+i}')
            k(f'v_and_b32 v49, 0xffff0000, v{rs+i}')
            k(f'v_add_f32 v{16+2*i}, v{16+2*i}, v48')
            k(f'v_add_f32 v{16+2*i+1}, v{16+2*i+1}, v49')
        o = 52 + 4 * it
        for i in range(4): k(f'v_cvt_pk_bf16_f32 v{o+i}, v{16+2*i}, v{16+2*i+1}')
        if final:
            k(f'buffer_store_dwordx4 v[{o}:{o+3}], v11, s[36:39], {"0" if it == 0 else "s46"} offen')
        else:
            k(f'buffer_store_dwordx4 v[{o}:{o+3}], v10, s[36:39], {"0" if it == 0 else "s43"} offen')
    k(f'{P}_end:')
    k('s_endpgm')
    return k, (224, 256, 4 * G2_PART)

HEADER = open('interleave_layers__ssm_conv_h3__swiglu_ffn__prompt.s.ref').read().split('; Override launch')[0]

def build(order=None, extra_launch=0):
    ks = {}
    pre = gen_pre(); conv = gen_conv(); ln1 = gen_ln(True); ln2 = gen_ln(False); g1 = gen_g1(); g2a = gen_g2(False); g2b = gen_g2(True)
    seq = [pre, conv, ln1, g1, g2a, ln2, g1, g2b]
    out = [HEADER.rstrip('\n')]
    for kk, (grid, blk, lds) in seq:
        out.append(f'; @launch kernel={kk.name} grid=({grid},1,1) block=({blk},1,1) lds={lds}')
    out.append('.amdgcn_target "amdgcn-amd-amdhsa--gfx950"')
    out.append('.text')
    seen = []
    for kk, _ in seq:
        if kk.name in [s.name for s in seen]: continue
        seen.append(kk)
        out.append(kk.emit())
    out.append('.section .rodata,"a"')
    for kk in seen:
        out.append('.p2align 6')
        out.append(kk.desc())
    return '\n'.join(out) + '\n'

if __name__ == '__main__':
    txt = build()
    dst = sys.argv[1] if len(sys.argv) > 1 else 'interleave_layers__ssm_conv_h3__swiglu_ffn__prompt.s'
    open(dst, 'w').write(txt)
    print('wrote', dst, len(txt), 'bytes')
```

```python
import sys
from asmlib import *

S = 2048; D = 448; F = 1792
SZ_ACT = 2048 * 448 * 2
OFF_XR = 0x0;       SZ_XR = 448 * 4096
OFF_YT = 0x200000
OFF_YF = 0x400000
OFF_X1 = 0x600000
OFF_XN1 = 0x800000
OFF_X2 = 0xA00000
OFF_X3 = 0xC00000
OFF_XN2 = 0xE00000
OFF_WGU = 0x1000000; SZ_WGU = 56 * 28 * 2 * 1024
OFF_WD = 0x1400000;  SZ_WD = 14 * 112 * 1024
OFF_H1 = 0x1600000;  SZ_H = 64 * 112 * 1024
OFF_H2 = 0x1E00000
OFF_SYNC = 0x2600000; SZ_SYNC = 256 * 128
OFF_PROF = 0x2800000
KNAME = 'interleave_layers__ssm_conv_h3__swiglu_ffn__prompt_kernel'
NWG = 256
LDS_BYTES = 160 * 1024
PROF = False
SPIN_MAX = 400000
L_S0, L_W, L_S1, L_S2, L_S3, L_S4, L_S5, L_S6 = 0, 8, 16, 24, 40, 104, 120, 136

P_Q, P_K, P_V, P_SH, P_SSK, P_SSD, P_BX, P_WG = 64, 66, 68, 70, 72, 74, 76, 78
P_WU, P_WD, P_OUT, P_DBG, P_WS = 80, 82, 84, 86, 88
SR_SYNC = 92
S_WAVE = 3
S_XCD, S_I = 90, 91
S_CH, S_PAR, S_CHB = 50, 51, 52
S_RB, S_FS, S_RT, S_CTP, S_LNRB = 53, 54, 55, 49, 63
SR_WGU = 4
SR_WD = 8
S_WOFF = 47
S_DOFF = 46
VPROF = 255
V_LANE = 2
V_L16 = 3

class VM:
    def __init__(self): self.l = []
    def add(self, tag): self.l.append(tag)
    def wait(self, tag):
        idx = len(self.l) - 1 - self.l[::-1].index(tag)
        return f's_waitcnt vmcnt({min(len(self.l) - 1 - idx, 63)})'
vm = VM()

class LG:
    def __init__(self): self.l = []
    def add(self, tag): self.l.append(tag)
    def wait(self, tag):
        if tag not in self.l: return None
        idx = len(self.l) - 1 - self.l[::-1].index(tag)
        n = min(len(self.l) - 1 - idx, 15)
        self.l = self.l[len(self.l) - n:] if n else []
        return f's_waitcnt lgkmcnt({n})'

def srd(k, d, p, off, size):
    if off:
        k(f's_add_u32 s{d}, s{p}, {off:#x}')
        k(f's_addc_u32 s{d+1}, s{p+1}, 0')
    else:
        k(f's_mov_b32 s{d}, s{p}')
        k(f's_mov_b32 s{d+1}, s{p+1}')
    k(f's_mov_b32 s{d+2}, {size:#x}')
    k(f's_mov_b32 s{d+3}, 0x20000')

def srd_soff(k, d, p, off, soff, size):
    k(f's_add_u32 s{d}, s{p}, {off:#x}')
    k(f's_addc_u32 s{d+1}, s{p+1}, 0')
    k(f's_add_u32 s{d}, s{d}, s{soff}')
    k(f's_addc_u32 s{d+1}, s{d+1}, 0')
    k(f's_mov_b32 s{d+2}, {size:#x}')
    k(f's_mov_b32 s{d+3}, 0x20000')

def udiv(k, dst, src, d):
    m = (2**32 + d - 1) // d
    k(f's_mul_hi_u32 s{dst}, s{src}, {m:#x}')

MARKS = []
def mark(k, name):
    if not PROF: return
    i = len(MARKS); MARKS.append(name)
    k('s_memtime s[96:97]')
    k('s_waitcnt lgkmcnt(0)')
    k(f'v_writelane_b32 v{VPROF}, s96, {i}')

_lab = [0]
def label(p):
    _lab[0] += 1
    return f'L_{p}_{_lab[0]}'

def signal(k, line_sreg=None, line=None, n=1):
    L = label('sig')
    k(f's_cmp_lg_u32 s{S_WAVE}, 0')
    k(f's_cbranch_scc1 {L}')
    k(f'v_lshlrev_b32 v250, 7, v{V_LANE}')
    if line_sreg is not None:
        k(f's_lshl_b32 s60, s{line_sreg}, 7')
        k('v_add_u32 v250, s60, v250')
    else:
        k(f'v_add_u32 v250, {line*128}, v250')
    k('v_mov_b32 v251, 1')
    k(f's_mov_b64 exec, {(1 << n) - 1}')
    k(f'buffer_atomic_add v251, v250, s[{SR_SYNC}:{SR_SYNC+3}], 0 offen sc1')
    k('s_mov_b64 exec, -1')
    k(f'{L}:')

def arrive(k, line_sreg=None, line=None, vmwait='s_waitcnt vmcnt(0)', n=1):
    k(vmwait)
    k('s_waitcnt lgkmcnt(0)')
    k('s_barrier')
    signal(k, line_sreg, line, n)

def wait(k, target, line_sreg=None, line=None, nlines=1, barrier=True):
    L = label('wt'); Lp = label('pl'); Ld = label('pd')
    k(f's_cmp_lg_u32 s{S_WAVE}, 0')
    k(f's_cbranch_scc1 {L}')
    k(f'v_lshlrev_b32 v250, 7, v{V_LANE}')
    if line_sreg is not None:
        k(f's_lshl_b32 s60, s{line_sreg}, 7')
        k('v_add_u32 v250, s60, v250')
    else:
        k(f'v_add_u32 v250, {line*128}, v250')
    k(f's_mov_b64 exec, {(1 << nlines) - 1}')
    k('s_mov_b32 s61, 0')
    k(f'{Lp}:')
    k(f'buffer_load_dword v251, v250, s[{SR_SYNC}:{SR_SYNC+3}], 0 offen sc1')
    k('s_add_u32 s61, s61, 1')
    k('s_waitcnt vmcnt(0)')
    k(f'v_cmp_le_u32 vcc, {target}, v251')
    k(f's_cmp_ge_u32 s61, {SPIN_MAX}')
    k(f's_cbranch_scc1 {Ld}')
    k('s_cmp_eq_u64 vcc, exec')
    k(f's_cbranch_scc0 {Lp}')
    k(f'{Ld}:')
    k('s_mov_b64 exec, -1')
    k(f'{L}:')
    if barrier: k('s_barrier')

def wait_init(k):
    L = label('wi'); Lp = label('wip'); Ld = label('wid')
    k(f's_cmp_lg_u32 s{S_WAVE}, 0')
    k(f's_cbranch_scc1 {L}')
    srd(k, 56, P_DBG, 0, 256)
    k('v_mov_b32 v250, 0')
    k('s_mov_b64 exec, 1')
    k('s_mov_b32 s61, 0')
    k(f'{Lp}:')
    k('buffer_load_dword v251, v250, s[56:59], 0 offen sc1')
    k('s_add_u32 s61, s61, 1')
    k('s_waitcnt vmcnt(0)')
    k('v_cmp_ne_u32 vcc, 0, v251')
    k(f's_cmp_ge_u32 s61, {SPIN_MAX}')
    k(f's_cbranch_scc1 {Ld}')
    k('s_cmp_eq_u64 vcc, exec')
    k(f's_cbranch_scc0 {Lp}')
    k(f'{Ld}:')
    k('s_mov_b64 exec, -1')
    k(f'{L}:')

def ph_init(k):
    k(f's_cmp_ge_u32 s2, {NWG}')
    k('s_cbranch_scc1 L_end')
    k('s_load_dwordx16 s[64:79], s[0:1], 0')
    k('s_load_dwordx8 s[80:87], s[0:1], 64')
    k('s_load_dwordx2 s[88:89], s[0:1], 96')
    k('v_lshrrev_b32 v1, 6, v0')
    k(f'v_and_b32 v{V_LANE}, 63, v0')
    k(f'v_readfirstlane_b32 s{S_WAVE}, v1')
    k(f'v_lshlrev_b32 v{V_L16}, 4, v{V_LANE}')
    k(f's_and_b32 s{S_XCD}, s2, 7')
    k(f's_lshr_b32 s{S_I}, s2, 3')
    if PROF: k(f'v_mov_b32 v{VPROF}, 0')
    udiv(k, 15, S_I, 7)
    k('s_mul_i32 s28, s15, 7')
    k(f's_sub_u32 s{S_CTP}, s{S_I}, s28')
    k(f's_lshr_b32 s29, s{S_XCD}, 1')
    k('s_lshl_b32 s29, s29, 2')
    k(f's_add_u32 s{S_RB}, s29, s15')
    k(f's_and_b32 s30, s{S_XCD}, 1')
    k('s_mul_i32 s30, s30, 7')
    k(f's_add_u32 s{S_FS}, s30, s{S_CTP}')
    k(f's_lshl_b32 s29, s{S_XCD}, 2')
    k(f's_add_u32 s{S_RT}, s29, s15')
    k(f's_lshr_b32 s{S_LNRB}, s2, 4')
    k(f's_lshl_b32 s31, s{S_FS}, 2')
    k(f's_add_u32 s31, s31, s{S_WAVE}')
    k(f's_mul_i32 s{S_WOFF}, s31, 57344')
    k(f's_mul_i32 s{S_DOFF}, s{S_CTP}, 224*1024')
    k(f's_mul_i32 s31, s{S_WAVE}, 28*1024')
    k(f's_add_u32 s{S_DOFF}, s{S_DOFF}, s31')
    k('s_waitcnt lgkmcnt(0)')
    srd(k, SR_SYNC, P_WS, OFF_SYNC, SZ_SYNC)
    srd(k, SR_WGU, P_WS, OFF_WGU, SZ_WGU)
    srd(k, SR_WD, P_WS, OFF_WD, SZ_WD)
    mark(k, 'start')
    L = label('ini')
    k('s_cmp_lg_u32 s2, 0')
    k(f's_cbranch_scc1 {L}')
    k(f's_cmp_lg_u32 s{S_WAVE}, 3')
    k(f's_cbranch_scc1 {L}')
    k(f'v_lshlrev_b32 v4, 7, v{V_LANE}')
    k('v_mov_b32 v5, 0')
    for i in range(4):
        k(f'buffer_store_dword v5, v4, s[{SR_SYNC}:{SR_SYNC+3}], 0 offen sc1')
        if i < 3: k('v_add_u32 v4, 8192, v4')
    srd(k, 56, P_DBG, 0, 256)
    k('s_waitcnt vmcnt(0)')
    k('v_mov_b32 v4, 0')
    k('v_mov_b32 v5, 1')
    k('s_mov_b64 exec, 1')
    k('buffer_store_dword v5, v4, s[56:59], 0 offen sc1')
    k('s_mov_b64 exec, -1')
    k(f'{L}:')

CH_STRIDE = 37888
XRL_OFF = 33280
CONV_SCR = 2 * CH_STRIDE
WST_OFF = 98304

def p0_weight_dma(k, rnd):
    fl = 34 + rnd; ds = 40 + rnd
    if rnd < 3:
        if rnd: k(f's_add_u32 s12, s48, {1024*rnd}')
        else: k('s_mov_b32 s12, s48')
        kind = 'gu'
    elif rnd == 3:
        k('s_mov_b32 s12, s48'); kind = 'wd'
    Lskip = None
    if rnd == 4:
        Lgu = label('w4g'); Lskip = label('w4s'); Ld = label('w4d')
        k(f's_mov_b32 s{fl}, 2')
        k('s_cmp_ge_u32 s48, 608')
        k(f's_cbranch_scc1 {Lskip}')
        k('s_cmp_ge_u32 s48, 544')
        k(f's_cbranch_scc1 {Lgu}')
        k('s_add_u32 s12, s48, 1024')
        _w_dma(k, 'wd', rnd, fl, ds)
        k(f's_branch {Lskip}')
        k(f'{Lgu}:')
        k('s_add_u32 s12, s48, 3072-544')
        _w_dma(k, 'gu', rnd, fl, ds)
        k(f'{Lskip}:')
    else:
        _w_dma(k, kind, rnd, fl, ds)

def _w_dma(k, kind, rnd, fl, ds):
    k(f's_mul_i32 s13, s{S_WAVE}, 5120')
    k(f's_add_u32 s13, s13, {WST_OFF + 1024*rnd}')
    k('s_mov_b32 m0, s13')
    if kind == 'gu':
        udiv(k, 14, 12, 56)
        k('s_mul_i32 s15, s14, 56')
        k('s_sub_u32 s15, s12, s15')
        k('s_lshr_b32 s28, s15, 1')
        k('s_mul_i32 s28, s28, 16*3584')
        k('s_lshl_b32 s29, s14, 6')
        k('s_add_u32 s28, s28, s29')
        k('s_and_b32 s15, s15, 1')
        k('s_cmp_eq_u32 s15, 0')
        k(f's_cselect_b32 s16, s{P_WG}, s{P_WU}')
        k(f's_cselect_b32 s17, s{P_WG+1}, s{P_WU+1}')
        k(f's_mov_b32 s18, {448*1792*2:#x}')
        k('s_mov_b32 s19, 0x20000')
        k('buffer_load_dwordx4 v60, s[16:19], s28 offen lds')
        k(f's_lshl_b32 s{ds}, s12, 10')
        k(f's_mov_b32 s{fl}, 0')
    else:
        udiv(k, 14, 12, 112)
        k('s_mul_i32 s15, s14, 112')
        k('s_sub_u32 s15, s12, s15')
        k('s_mul_i32 s28, s15, 16*896')
        k('s_lshl_b32 s29, s14, 6')
        k('s_add_u32 s28, s28, s29')
        srd(k, 16, P_WD, 0, 1792 * 448 * 2)
        k('buffer_load_dwordx4 v61, s[16:19], s28 offen lds')
        k(f's_lshl_b32 s{ds}, s12, 10')
        k(f's_mov_b32 s{fl}, 1')

def ph_p0(k):
    k('s_lshl_b32 s48, s2, 2')
    k(f's_add_u32 s48, s48, s{S_WAVE}')
    Lnokv = label('nokv')
    ln_addr(k)
    srd(k, 28, P_Q, 0, SZ_ACT)
    k('s_mul_i32 s15, s2, 8*896')
    k('v_mul_u32_u24 v9, 896, v33')
    k('v_lshl_add_u32 v9, v5, 4, v9')
    k('v_add_u32 v9, s15, v9')
    k('v_add_u32 v10, 128, v9')
    k('v_cndmask_b32 v10, v8, v10, s[38:39]')
    mark(k, 'p0 lnaddr')
    k('s_cmp_ge_u32 s2, 224')
    k(f's_cbranch_scc1 {Lnokv}')
    udiv(k, 12, 2, 7)
    k('s_mul_i32 s13, s12, 7')
    k('s_sub_u32 s13, s2, s13')
    k('s_mov_b32 s62, s13')
    k(f'v_and_b32 v40, 7, v{V_LANE}')
    k(f'v_lshrrev_b32 v1, 3, v{V_LANE}')
    k(f's_lshl_b32 s14, s{S_WAVE}, 5')
    k('s_lshl_b32 s15, s13, 7')
    k('s_add_u32 s14, s14, s15')
    k('v_lshl_add_u32 v41, v1, 2, s14')
    k('s_mul_i32 s15, s12, 64*896')
    k('v_mul_u32_u24 v42, 8*896, v40')
    k('v_add3_u32 v42, v42, v41, s15')
    k('v_add_u32 v43, 5*896, v42')
    k('v_subrev_u32 v44, 3*896, v42')
    k('v_lshlrev_b32 v45, 2, v41')
    srd(k, 16, P_K, 0, SZ_ACT); srd(k, 20, P_V, 0, SZ_ACT); srd(k, 24, P_SH, 0, 448 * 8)
    K0 = 16; V0 = 48
    for j in range(3): k(f'buffer_load_dword v{K0+j}, v44, s[16:19], 0 offen offset:{896*j}')
    for j in range(5): k(f'buffer_load_dword v{K0+3+j}, v42, s[16:19], 0 offen offset:{896*j}')
    for j in range(3): k(f'buffer_load_dword v{K0+8+j}, v43, s[16:19], 0 offen offset:{896*j}')
    for j in range(5): k(f'buffer_load_dword v{V0+j}, v42, s[20:23], 0 offen offset:{896*j}')
    for j in range(3): k(f'buffer_load_dword v{V0+5+j}, v43, s[20:23], 0 offen offset:{896*j}')
    k('buffer_load_dwordx4 v[36:39], v45, s[24:27], 0 offen')
    mark(k, 'p0 kv issued')
    k('s_lshl_b32 s13, s13, 6')
    k('s_lshl_b32 s14, s12, 1')
    k('s_add_u32 s13, s13, s14')
    k(f's_lshr_b32 s14, s{S_WAVE}, 1')
    k(f's_and_b32 s{S_PAR}, s{S_WAVE}, 1')
    k(f's_add_u32 s{S_CH}, s13, s14')
    k(f's_mul_i32 s{S_CHB}, s14, {CH_STRIDE}')
    k(f's_lshl_b32 s16, s{S_CH}, 12')
    srd_soff(k, 20, P_SSK, 0, 16, 4096)
    k(f's_lshl_b32 s17, s{S_PAR}, 11')
    k(f'v_add_u32 v92, s17, v{V_L16}')
    k('v_subrev_u32 v93, 16, v92')
    for r in range(2):
        k(f'buffer_load_dwordx4 v[{96+8*r}:{99+8*r}], v93, s[20:23], 0 offen offset:{1024*r}')
        k(f'buffer_load_dwordx4 v[{100+8*r}:{103+8*r}], v92, s[20:23], 0 offen offset:{1024*r}')
    k('buffer_load_dwordx4 v[232:235], v9, s[28:31], 0 offen')
    k('buffer_load_dwordx4 v[236:239], v10, s[28:31], 0 offen')
    k('v_lshlrev_b32 v46, 11, v41')
    k('s_lshl_b32 s32, s12, 7')
    k('v_lshlrev_b32 v47, 4, v40')
    k('v_add_u32 v47, s32, v47')
    k('v_sub_u32 v47, 4080, v47')
    k('v_add_u32 v47, v46, v47')
    srd(k, 28, P_WS, OFF_XR, SZ_XR)
    k('s_movk_i32 s33, 4096')
    mark(k, 'p0 issued')
    wait_init(k)
    k('s_waitcnt vmcnt(6)')
    mark(k, 'p0 kv data')
    SK = 56
    for c in range(2):
        k(f'v_lshlrev_b32 v{SK+4*c+0}, 16, v{36+2*c}')
        k(f'v_and_b32 v{SK+4*c+1}, 0xffff0000, v{36+2*c}')
        k(f'v_lshlrev_b32 v{SK+4*c+2}, 16, v{37+2*c}')
        k(f'v_and_b32 v{SK+4*c+3}, 0xffff0000, v{37+2*c}')
    KF = 64
    for c in range(2):
        for j in range(11):
            if c == 0: k(f'v_lshlrev_b32 v{KF+j}, 16, v{K0+j}')
            else: k(f'v_and_b32 v{KF+j}, 0xffff0000, v{K0+j}')
        for t in range(8):
            if c == 0: k(f'v_lshlrev_b32 v{112+t}, 16, v{V0+t}')
            else: k(f'v_and_b32 v{112+t}, 0xffff0000, v{V0+t}')
        for t in range(8): k(f'v_mul_f32 v{76+t}, v{SK+4*c+3}, v{KF+t}')
        for t in range(8): k(f'v_fmac_f32 v{76+t}, v{SK+4*c+2}, v{KF+t+1}')
        for t in range(8): k(f'v_fmac_f32 v{76+t}, v{SK+4*c+1}, v{KF+t+2}')
        for t in range(8): k(f'v_fmac_f32 v{76+t}, v{SK+4*c+0}, v{KF+t+3}')
        for t in range(8): k(f'v_mul_f32 v{76+t}, v{76+t}, v{112+t}')
        o = 84 + 4 * c
        for i in range(4):
            k(f'v_cvt_pk_bf16_f32 v{o+i}, v{76+7-2*i}, v{76+6-2*i}')
        if c == 0: k(f'buffer_store_dwordx4 v[{o}:{o+3}], v47, s[28:31], 0 offen sc1')
        else: k(f'buffer_store_dwordx4 v[{o}:{o+3}], v47, s[28:31], s33 offen sc1')
    mark(k, 'kv stored')
    Lj = label('p0j')
    k(f's_branch {Lj}')
    k(f'{Lnokv}:')
    k('buffer_load_dwordx4 v[232:235], v9, s[28:31], 0 offen')
    k('buffer_load_dwordx4 v[236:239], v10, s[28:31], 0 offen')
    wait_init(k)
    k(f'{Lj}:')
    k(f'v_lshrrev_b32 v62, 2, v{V_LANE}')
    k(f'v_and_b32 v63, 3, v{V_LANE}')
    k('v_lshlrev_b32 v63, 4, v63')
    k('v_mul_u32_u24 v60, 3584, v62')
    k('v_add_u32 v60, v60, v63')
    k('v_mul_u32_u24 v61, 896, v62')
    k('v_add_u32 v61, v61, v63')
    for rnd in range(5): p0_weight_dma(k, rnd)
    mark(k, 'p0 dma issued')

def ph_p0_wfinish(k):
    k('s_waitcnt vmcnt(0)')
    k(f'v_and_b32 v62, 15, v{V_LANE}')
    k(f'v_lshrrev_b32 v63, 4, v{V_LANE}')
    k('v_lshrrev_b32 v64, 2, v62')
    k('v_and_b32 v65, 3, v62')
    k('v_lshlrev_b32 v65, 3, v65')
    k('v_and_b32 v66, 1, v63')
    k('v_lshl_add_u32 v65, v66, 5, v65')
    k('v_lshl_add_u32 v65, v64, 6, v65')
    k('v_lshrrev_b32 v63, 1, v63')
    k(f's_mul_i32 s13, s{S_WAVE}, 5120')
    k(f's_add_u32 s13, s13, {WST_OFF}')
    k('v_add_u32 v65, s13, v65')
    k('v_lshl_add_u32 v66, v63, 9, v65')
    k('v_lshl_add_u32 v67, v63, 8, v65')
    for rnd in range(5):
        fl = 34 + rnd
        o = 112 + 4 * rnd
        Lwd = label('trw'); Le = label('tre')
        if rnd < 3:
            k(f'ds_read_b64_tr_b16 v[{o}:{o+1}], v66 offset:{1024*rnd}')
            k(f'ds_read_b64_tr_b16 v[{o+2}:{o+3}], v66 offset:{1024*rnd + 256}')
        elif rnd == 3:
            k(f'ds_read_b64_tr_b16 v[{o}:{o+1}], v67 offset:{1024*rnd}')
            k(f'ds_read_b64_tr_b16 v[{o+2}:{o+3}], v67 offset:{1024*rnd + 512}')
        else:
            k(f's_cmp_eq_u32 s{fl}, 1')
            k(f's_cbranch_scc1 {Lwd}')
            k(f'ds_read_b64_tr_b16 v[{o}:{o+1}], v66 offset:{1024*rnd}')
            k(f'ds_read_b64_tr_b16 v[{o+2}:{o+3}], v66 offset:{1024*rnd + 256}')
            k(f's_branch {Le}')
            k(f'{Lwd}:')
            k(f'ds_read_b64_tr_b16 v[{o}:{o+1}], v67 offset:{1024*rnd}')
            k(f'ds_read_b64_tr_b16 v[{o+2}:{o+3}], v67 offset:{1024*rnd + 512}')
            k(f'{Le}:')
    k('s_waitcnt lgkmcnt(0)')
    for rnd in range(4):
        o = 112 + 4 * rnd
        sr = SR_WGU if rnd < 3 else SR_WD
        k(f'buffer_store_dwordx4 v[{o}:{o+3}], v{V_L16}, s[{sr}:{sr+3}], s{40+rnd} offen sc1')
    Lwd = label('stw'); Le = label('ste')
    k('s_cmp_eq_u32 s38, 2')
    k(f's_cbranch_scc1 {Le}')
    k('s_cmp_eq_u32 s38, 1')
    k(f's_cbranch_scc1 {Lwd}')
    k(f'buffer_store_dwordx4 v[128:131], v{V_L16}, s[{SR_WGU}:{SR_WGU+3}], s44 offen sc1')
    k(f's_branch {Le}')
    k(f'{Lwd}:')
    k(f'buffer_store_dwordx4 v[128:131], v{V_L16}, s[{SR_WD}:{SR_WD+3}], s44 offen sc1')
    k(f'{Le}:')
    mark(k, 'w stored')

def ph_conv_prep(k):
    k(f'v_add_u32 v6, s{S_CHB}, v92')
    k('v_add_u32 v6, 16, v6')
    for i in range(4): k(f'v_mov_b32 v{8+i}, 0')
    La = label('cz'); Lb = label('cz')
    k(f's_cmp_eq_u32 s{S_PAR}, 0')
    k(f's_cbranch_scc0 {La}')
    k(f'v_mul_u32_u24 v7, 4160, v{V_LANE}')
    k(f'v_add_u32 v7, s{S_CHB}, v7')
    k(f'v_cmp_gt_u32 vcc, 8, v{V_LANE}')
    k('s_and_saveexec_b64 s[30:31], vcc')
    k('ds_write_b128 v7, v[8:11]')
    k('s_mov_b64 exec, s[30:31]')
    k(f's_branch {Lb}')
    k(f'{La}:')
    k(f'v_add_u32 v7, s{S_CHB}, v{V_L16}')
    k(f'v_add_u32 v7, {XRL_OFF + 4096}, v7')
    k(f'v_cmp_gt_u32 vcc, 30, v{V_LANE}')
    k('s_and_saveexec_b64 s[30:31], vcc')
    k('ds_write_b128 v7, v[8:11]')
    k('s_mov_b64 exec, s[30:31]')
    k(f'{Lb}:')
    for r in range(2):
        W = 96 + 8 * r
        for c in range(8):
            s = c + 1
            T = 16 + 4 * (c % 4) + 16 * r
            if s % 2 == 1:
                kk = (s - 1) // 2
                for i in range(4): k(f'v_alignbit_b32 v{T+i}, v{W+kk+i+1}, v{W+kk+i}, 16')
                src = T
            else:
                kk = s // 2
                if kk % 2 == 0: src = W + kk
                else:
                    for i in range(4): k(f'v_mov_b32 v{T+i}, v{W+kk+i}')
                    src = T
            k(f'ds_write_b128 v6, v[{src}:{src+3}] offset:{c*4160 + 1024*r}')

def g1_wload(k, ks):
    out = []
    if ks % 2 == 0: out.append(f's_add_u32 s45, s{S_WOFF}, {ks*2048}')
    o = (ks % 2) * 2048
    out.append(f'buffer_load_dwordx4 a[{8*ks}:{8*ks+3}], v{V_L16}, s[{SR_WGU}:{SR_WGU+3}], s45 offen offset:{o} sc1')
    out.append(f'buffer_load_dwordx4 a[{8*ks+4}:{8*ks+7}], v{V_L16}, s[{SR_WGU}:{SR_WGU+3}], s45 offen offset:{o+1024} sc1')
    return out

def emit_vm(k, ins, tag):
    k(ins)
    if ins.startswith('buffer_'): vm.add(tag)

def g1_wprefetch(k, ks0, ks1):
    for ks in range(ks0, ks1):
        if ks == ks0 and ks % 2 == 1: k(f's_add_u32 s45, s{S_WOFF}, {(ks-1)*2048}')
        for ins in g1_wload(k, ks): emit_vm(k, ins, ('W', ks))

def ph_conv(k):
    srd(k, 16, P_WS, OFF_XR, SZ_XR)
    srd(k, 24, P_WS, OFF_YT, SZ_ACT)
    k(f's_lshl_b32 s39, s{S_CH}, 12')
    k(f's_lshl_b32 s40, s{S_PAR}, 11')
    k('s_add_u32 s39, s39, s40')
    k(f'buffer_load_dwordx4 v[16:19], v{V_L16}, s[16:19], s39 offen sc1')
    k(f'buffer_load_dwordx4 v[20:23], v{V_L16}, s[16:19], s39 offen offset:1024 sc1')
    k(f's_and_b32 s34, s{S_CH}, 0xfffffffe')
    k('s_lshl_b32 s34, s34, 1')
    k(f's_load_dword s35, s[{P_SSD}:{P_SSD+1}], s34')
    k(f's_add_u32 s40, s40, s{S_CHB}')
    k(f's_add_u32 s40, s40, {XRL_OFF}')
    k(f'v_add_u32 v4, s40, v{V_L16}')
    k(f'v_and_b32 v5, 15, v{V_LANE}')
    k(f'v_lshrrev_b32 v6, 4, v{V_LANE}')
    k('v_lshlrev_b32 v7, 4, v6')
    k('v_lshlrev_b32 v8, 5, v5')
    k('v_sub_u32 v7, v7, v8')
    k(f's_lshl_b32 s41, s{S_PAR}, 6')
    k(f's_add_u32 s41, s41, s{S_CHB}')
    k(f's_add_u32 s41, s41, {XRL_OFF + 544 - 64}')
    k('v_add_u32 v7, s41, v7')
    k('v_and_b32 v12, 7, v5')
    k('v_mul_u32_u24 v12, 4160, v12')
    k('v_lshrrev_b32 v13, 3, v5')
    k('v_add_u32 v13, v6, v13')
    k('v_lshlrev_b32 v13, 4, v13')
    k('v_add_u32 v12, v12, v13')
    k(f's_lshl_b32 s41, s{S_PAR}, 6')
    k(f's_add_u32 s41, s41, s{S_CHB}')
    k('v_add_u32 v12, s41, v12')
    k('s_waitcnt vmcnt(0)')
    k('ds_write_b128 v4, v[16:19]')
    k('ds_write_b128 v4, v[20:23] offset:1024')
    k('s_waitcnt lgkmcnt(0)')
    k('s_barrier')
    mark(k, 'conv:x in lds')
    ACC = 16; FR = 48; AR = 176; NA = 8
    order = list(range(31, -1, -1))
    def frags(jj): return [(at, 4 * at - jj + 3) for at in range(jj // 4, 8)]
    pend = []
    def issue(tag, txt): k(txt); pend.append(tag)
    def wait_for(tags):
        idx = [pend.index(t) for t in tags if t in pend]
        if idx:
            n = min(len(pend) - 1 - max(idx), 15)
            k(f's_waitcnt lgkmcnt({n})')
            pend[:] = pend[len(pend) - n:] if n > 0 else []
    loadedF = set()
    def issueA(idx):
        jj = order[idx]; r = AR + 4 * (idx % NA)
        issue(('A', jj), f'ds_read_b128 v[{r}:{r+3}], v12 offset:{128*jj}')
    def issueF(idx):
        for at, n in frags(order[idx]):
            if n not in loadedF:
                loadedF.add(n)
                issue(('F', n), f'ds_read_b128 v[{FR+4*n}:{FR+4*n+3}], v7 offset:{128*(31-n)}')
    LA = 4
    for idx in range(LA): issueA(idx); issueF(idx)
    first = set()
    nm = 0
    for idx, jj in enumerate(order):
        if idx + LA < 32: issueA(idx + LA); issueF(idx + LA)
        wait_for([('A', jj)] + [('F', n) for _, n in frags(jj)])
        r = AR + 4 * (idx % NA)
        for at, n in frags(jj):
            c = f'v[{ACC+4*at}:{ACC+4*at+3}]' if at in first else '0'
            first.add(at)
            k(f'v_mfma_f32_16x16x32_bf16 v[{ACC+4*at}:{ACC+4*at+3}], v[{r}:{r+3}], v[{FR+4*n}:{FR+4*n+3}], {c}')
    mark(k, 'conv:mfma done')
    k(f's_lshl_b32 s41, s{S_WAVE}, 12')
    k(f's_add_u32 s41, s41, {CONV_SCR}')
    k(f'v_add_u32 v8, s41, v{V_L16}')
    k(f's_xor_b32 s42, s{S_WAVE}, 1')
    k('s_lshl_b32 s42, s42, 12')
    k(f's_add_u32 s42, s42, {CONV_SCR}')
    k(f'v_add_u32 v9, s42, v{V_L16}')
    k('v_lshlrev_b32 v10, 5, v5')
    k('v_lshl_add_u32 v10, v6, 3, v10')
    k(f's_lshl_b32 s43, s{S_PAR}, 11')
    k(f's_sub_u32 s43, s{S_CHB}, s43')
    k(f's_add_u32 s43, s43, {XRL_OFF + 4088 - 512*3}')
    k('v_sub_u32 v11, s43, v10')
    k('v_and_b32 v13, 1, v6')
    k('v_lshlrev_b32 v13, 9, v13')
    k('v_lshl_add_u32 v13, v5, 5, v13')
    k('v_lshrrev_b32 v14, 1, v6')
    k('v_lshl_add_u32 v13, v14, 4, v13')
    k(f's_lshl_b32 s44, s{S_CH}, 12')
    k(f's_lshl_b32 s45, s{S_PAR}, 11')
    k('s_add_u32 s44, s44, s45')
    k('v_add_u32 v10, s44, v13')
    La = label('cp'); Lb = label('cp')
    k(f's_cmp_eq_u32 s{S_PAR}, 0')
    k(f's_cbranch_scc0 {La}')
    for i in range(4): k(f'ds_write_b128 v8, v[{ACC+16+4*i}:{ACC+16+4*i+3}] offset:{1024*i}')
    k(f's_branch {Lb}')
    k(f'{La}:')
    k('s_nop 7')
    for i in range(4): k(f'ds_write_b128 v8, v[{ACC+4*i}:{ACC+4*i+3}] offset:{1024*i}')
    for i in range(16): k(f'v_mov_b32 v{ACC+i}, v{ACC+16+i}')
    k(f'{Lb}:')
    k('s_waitcnt lgkmcnt(0)')
    k('s_lshl_b32 s36, s35, 16')
    k('s_and_b32 s37, s35, 0xffff0000')
    k(f's_and_b32 s34, s{S_CH}, 1')
    k('s_cmp_eq_u32 s34, 0')
    k('s_cselect_b32 s36, s36, s37')
    k('s_barrier')
    for i in range(4): k(f'ds_read_b128 v[{48+4*i}:{51+4*i}], v9 offset:{1024*i}')
    for i in range(4): k(f'ds_read_b64 v[{64+2*i}:{65+2*i}], v11 offset:{512*(3-i)}')
    k('s_waitcnt lgkmcnt(0)')
    for i in range(4):
        a = ACC + 4 * i
        for r in range(4): k(f'v_add_f32 v{a+r}, v{a+r}, v{48+4*i+r}')
        x0, x1 = 64 + 2 * i, 65 + 2 * i
        k(f'v_and_b32 v72, 0xffff0000, v{x1}')
        k(f'v_lshlrev_b32 v73, 16, v{x1}')
        k(f'v_and_b32 v74, 0xffff0000, v{x0}')
        k(f'v_lshlrev_b32 v75, 16, v{x0}')
        for r in range(4): k(f'v_fmac_f32 v{a+r}, s36, v{72+r}')
        k(f'v_cvt_pk_bf16_f32 v{76+2*i}, v{a}, v{a+1}')
        k(f'v_cvt_pk_bf16_f32 v{77+2*i}, v{a+2}, v{a+3}')
    for p in range(2):
        o = 76 + 4 * p
        k(f'v_permlane16_swap_b32 v{o}, v{o+2}')
        k(f'v_permlane16_swap_b32 v{o+1}, v{o+3}')
        emit_vm(k, f'buffer_store_dwordx4 v[{o}:{o+3}], v10, s[24:27], 0 offen offset:{1024*p} sc1', ('YT', p))

def wave_reduce8(k, regs, tmp):
    for r in regs: k(f'v_add_f32_dpp v{r}, v{r}, v{r} row_ror:8 row_mask:0xf bank_mask:0xf')
    for r, t in zip(regs, tmp): k(f'v_mov_b32 v{t}, v{r}')
    for r, t in zip(regs, tmp): k(f'v_permlane16_swap_b32 v{r}, v{t}')
    for r, t in zip(regs, tmp): k(f'v_add_f32 v{r}, v{r}, v{t}')
    for r, t in zip(regs, tmp): k(f'v_mov_b32 v{t}, v{r}')
    for r, t in zip(regs, tmp): k(f'v_permlane32_swap_b32 v{r}, v{t}')
    for r, t in zip(regs, tmp): k(f'v_add_f32 v{r}, v{r}, v{t}')

LN_BASE = 98304
LN_PART = LN_BASE + 56 * 144
X_ = 16; Y_ = 24; XF = 36; YF = 52; T_ = 68

def ln_unpack(k, dst, src, n):
    for i in range(n):
        k(f'v_lshlrev_b32 v{dst+2*i}, 16, v{src+i}')
        k(f'v_and_b32 v{dst+2*i+1}, 0xffff0000, v{src+i}')

def ln_stats(k, buf):
    k(f'v_add_f32 v84, v{XF}, v{XF+1}')
    k(f'v_mul_f32 v85, v{XF}, v{XF}')
    k(f'v_add_f32 v86, v{XF+2}, v{XF+3}')
    k(f'v_mul_f32 v87, v{XF+1}, v{XF+1}')
    k(f'v_fmac_f32 v85, v{XF+2}, v{XF+2}')
    k(f'v_fmac_f32 v87, v{XF+3}, v{XF+3}')
    for i in range(4, 16, 2):
        k(f'v_add_f32 v84, v84, v{XF+i}')
        k(f'v_add_f32 v86, v86, v{XF+i+1}')
        k(f'v_fmac_f32 v85, v{XF+i}, v{XF+i}')
        k(f'v_fmac_f32 v87, v{XF+i+1}, v{XF+i+1}')
    k('v_add_f32 v84, v84, v86')
    k('v_add_f32 v85, v85, v87')
    wave_reduce8(k, [84, 85], [86, 87])
    k(f'v_cmp_gt_u32 vcc, 8, v{V_LANE}')
    k('s_and_saveexec_b64 s[40:41], vcc')
    k(f'ds_write_b64 v32, v[84:85] offset:{256*buf}')
    k('s_mov_b64 exec, s[40:41]')
    k('s_waitcnt lgkmcnt(0)')
    k('s_barrier')
    for w in range(4): k(f'ds_read_b64 v[{88+2*w}:{89+2*w}], v15 offset:{256*buf + 64*w}')

def ln_finish(k):
    k('v_add_f32 v88, v88, v90'); k('v_add_f32 v89, v89, v91')
    k('v_add_f32 v92, v92, v94'); k('v_add_f32 v93, v93, v95')
    k('v_add_f32 v88, v88, v92'); k('v_add_f32 v89, v89, v93')
    k('v_mul_f32 v84, 0x3b124925, v88')
    k('v_mul_f32 v85, 0x3b124925, v89')
    k('v_fma_f32 v85, -v84, v84, v85')
    k('v_max_f32 v85, 0, v85')
    k('v_add_f32 v85, 0x3727c5ac, v85')
    k('v_rsq_f32 v85, v85')
    k('v_mul_f32 v86, v84, v85')

def ln_addr(k):
    k(f'v_and_b32 v33, 7, v{V_LANE}')
    k(f'v_lshrrev_b32 v4, 3, v{V_LANE}')
    k(f's_mul_i32 s12, s{S_WAVE}, 14')
    k('v_add_u32 v5, s12, v4')
    k('s_lshr_b32 s13, s2, 2')
    k('s_mul_i32 s13, s13, 28672')
    k('s_and_b32 s14, s2, 3')
    k('s_lshl_b32 s14, s14, 7')
    k('s_add_u32 s13, s13, s14')
    k('v_lshlrev_b32 v6, 9, v5')
    k('v_lshl_add_u32 v6, v33, 4, v6')
    k('v_add_u32 v6, s13, v6')
    k('v_add_u32 v7, 4096, v6')
    k('v_mov_b32 v8, 0x80000000')
    k('v_cmp_gt_u32 vcc, 6, v4')
    k('v_cmp_gt_u32 s[38:39], 6, v4')
    k('v_cndmask_b32 v7, v8, v7, vcc')
    k('v_lshlrev_b32 v15, 3, v33')
    k(f'v_add_u32 v15, {LN_PART}, v15')
    k(f's_lshl_b32 s37, s{S_WAVE}, 6')
    k('v_add_u32 v32, s37, v15')

def ph_ln1_pre(k):
    ln_addr(k)
    k('v_lshlrev_b32 v11, 12, v0')
    k('v_add_u32 v12, 0x100000, v11')
    k('v_cmp_gt_u32 vcc, 192, v0')
    k('v_cndmask_b32 v12, v8, v12, vcc')
    k('v_lshrrev_b32 v13, 3, v0')
    k('v_add_u32 v13, v13, v0')
    k('v_lshlrev_b32 v13, 4, v13')
    k(f'v_add_u32 v13, {LN_BASE}, v13')
    k('v_mul_u32_u24 v14, 144, v5')
    k('v_lshl_add_u32 v14, v33, 1, v14')
    k(f'v_add_u32 v14, {LN_BASE}, v14')
    ln_unpack(k, XF, 232, 8)
    ln_stats(k, 0)
    k('s_waitcnt lgkmcnt(0)')
    ln_finish(k)
    for j in range(16): k(f'v_fma_f32 v{T_+j}, v{XF+j}, v85, -v86')

def ln_tail(k, sr_x, sr_xn):
    for j in range(16): k(f'v_fmac_f32 v{XF+j}, v{T_+j}, v{YF+j}')
    for i in range(8): k(f'v_cvt_pk_bf16_f32 v{X_+i}, v{XF+2*i}, v{XF+2*i+1}')
    ln_unpack(k, XF, X_, 8)
    k(f'buffer_store_dwordx4 v[{X_}:{X_+3}], v6, s[{sr_x}:{sr_x+3}], 0 offen sc1')
    k(f'buffer_store_dwordx4 v[{X_+4}:{X_+7}], v7, s[{sr_x}:{sr_x+3}], 0 offen sc1')
    ln_stats(k, 1)
    k('s_waitcnt lgkmcnt(0)')
    ln_finish(k)
    for j in range(16): k(f'v_fma_f32 v{T_+j}, v{XF+j}, v85, -v86')
    for i in range(8): k(f'v_cvt_pk_bf16_f32 v{YF+i}, v{T_+2*i}, v{T_+2*i+1}')
    k(f'buffer_store_dwordx4 v[{YF}:{YF+3}], v6, s[{sr_xn}:{sr_xn+3}], 0 offen sc1')
    k(f'buffer_store_dwordx4 v[{YF+4}:{YF+7}], v7, s[{sr_xn}:{sr_xn+3}], 0 offen sc1')

def ph_ln1(k):
    srd(k, 32, P_WS, OFF_YT, SZ_ACT)
    k('s_lshl_b32 s36, s2, 4')
    k('buffer_load_dwordx4 v[24:27], v11, s[32:35], s36 offen sc1')
    k('buffer_load_dwordx4 v[28:31], v12, s[32:35], s36 offen sc1')
    srd(k, 16, P_WS, OFF_XN1, SZ_ACT); srd(k, 20, P_WS, OFF_X1, SZ_ACT); srd(k, 24, P_WS, OFF_YF, SZ_ACT)
    k('s_waitcnt vmcnt(0)')
    k('ds_write_b128 v13, v[24:27]')
    k('v_cmp_gt_u32 vcc, 192, v0')
    k('s_and_saveexec_b64 s[40:41], vcc')
    k('ds_write_b128 v13, v[28:31] offset:4608')
    k('s_mov_b64 exec, s[40:41]')
    k('s_waitcnt lgkmcnt(0)')
    k('s_barrier')
    mark(k, 'ln1:y in lds')
    for j in range(8): k(f'ds_read_u16 v{YF+j}, v14 offset:{16*j}')
    for j in range(8): k(f'ds_read_u16 v{YF+8+j}, v14 offset:{8*144 + 16*j}')
    k('s_waitcnt lgkmcnt(0)')
    for i in range(8): k(f'v_lshl_or_b32 v{Y_+i}, v{YF+2*i+1}, 16, v{YF+2*i}')
    for j in range(16): k(f'v_lshlrev_b32 v{YF+j}, 16, v{YF+j}')
    for j in range(8, 16): k(f'v_cndmask_b32 v{YF+j}, 0, v{YF+j}, s[38:39]')
    k(f'buffer_store_dwordx4 v[{Y_}:{Y_+3}], v6, s[24:27], 0 offen sc1')
    k(f'buffer_store_dwordx4 v[{Y_+4}:{Y_+7}], v7, s[24:27], 0 offen sc1')
    ln_tail(k, 20, 16)

def ph_ln2_pre(k):
    ln_addr(k)
    srd(k, 24, P_WS, OFF_YF, SZ_ACT)
    k(f'buffer_load_dwordx4 v[{Y_}:{Y_+3}], v6, s[24:27], 0 offen sc1')
    k(f'buffer_load_dwordx4 v[{Y_+4}:{Y_+7}], v7, s[24:27], 0 offen sc1')
    srd(k, 16, P_WS, OFF_XN2, SZ_ACT); srd(k, 20, P_WS, OFF_X3, SZ_ACT); srd(k, 28, P_WS, OFF_X2, SZ_ACT)

def ph_ln2(k):
    k(f'buffer_load_dwordx4 v[{X_}:{X_+3}], v6, s[28:31], 0 offen sc1')
    k(f'buffer_load_dwordx4 v[{X_+4}:{X_+7}], v7, s[28:31], 0 offen sc1')
    k('s_waitcnt vmcnt(2)')
    ln_unpack(k, YF, Y_, 8)
    k('s_waitcnt vmcnt(0)')
    mark(k, 'ln2:loaded')
    ln_unpack(k, XF, X_, 8)
    ln_stats(k, 0)
    k('s_waitcnt lgkmcnt(0)')
    ln_finish(k)
    for j in range(16): k(f'v_fma_f32 v{T_+j}, v{XF+j}, v85, -v86')
    ln_tail(k, 20, 16)

WD_LOC = [('a', 224 + 4*i) for i in range(8)] + [('v', 168 + 4*i) for i in range(20)] + \
         [('v', 112 + 4*i) for i in range(14)] + [('a', 4*i) for i in range(14)]
def rr(loc, n=4): return f'{loc[0]}[{loc[1]}:{loc[1]+n-1}]'

def wd_load(n):
    ks, ct = n >> 1, n & 1
    base = ct * 112 * 1024 + (ks // 4) * 4096
    return [f's_add_u32 s45, s{S_DOFF}, {base}',
            f'buffer_load_dwordx4 {rr(WD_LOC[n])}, v{V_L16}, s[{SR_WD}:{SR_WD+3}], s45 offen offset:{(ks%4)*1024} sc1']

def ph_g1(k, layer):
    off_xn = OFF_XN1 if layer == 0 else OFF_XN2
    off_h = OFF_H1 if layer == 0 else OFF_H2
    l_s3 = L_S3 if layer == 0 else L_S6
    srd(k, 16, P_WS, off_xn, SZ_ACT)
    srd(k, 24, P_WS, off_h, SZ_H)
    k(f's_lshl_b32 s32, s{S_RB}, 2')
    k('s_mul_i32 s34, s32, 28672')
    k(f's_mul_i32 s36, s{S_WAVE}, 7168')
    k('s_add_u32 s34, s34, s36')
    ST = 112; ACC = 16; TF = 80; TM = 96
    lg = LG()
    def lds(ins, tag): k(ins); lg.add(tag)
    def tok_load(tt):
        for j in range(7):
            r = ST + 28 * (tt % 2) + 4 * j
            if j % 4 == 0: k(f's_add_u32 s37, s34, {tt*28672 + (j//4)*4096}')
            emit_vm(k, f'buffer_load_dwordx4 v[{r}:{r+3}], v{V_L16}, s[16:19], s37 offen offset:{(j%4)*1024} sc1', ('T', layer, tt, j))
    tok_load(0); tok_load(1)
    k(f'v_add_u32 v4, s36, v{V_L16}')
    k('v_add_u32 v5, 57344, v4')
    k(f'v_add_u32 v6, 57344, v{V_L16}')
    k(f's_lshl_b32 s31, s{S_FS}, 2')
    k(f's_add_u32 s31, s31, s{S_WAVE}')
    k('s_lshl_b32 s40, s31, 11')
    k(f's_lshl_b32 s33, s{S_RB}, 2')
    k(f's_add_u32 s33, s33, {l_s3}')
    def tok_write_one(tt, j):
        base = 'v4' if tt < 2 else 'v5'
        r = ST + 28 * (tt % 2) + 4 * j
        lds(f'ds_write_b128 {base}, v[{r}:{r+3}] offset:{(tt%2)*28672 + j*1024}', ('w', tt, j))
    def tok_read(step):
        tt, ks = divmod(step, 28)
        r = TF + 4 * (step % 4)
        base = f'v{V_L16}' if tt < 2 else 'v6'
        lds(f'ds_read_b128 v[{r}:{r+3}], {base} offset:{(tt%2)*28672 + ks*1024}', ('r', step))
    def epilogue(tt):
        g = ACC + 32 * (tt % 2); u = g + 16
        out = [f's_add_u32 s41, s32, {tt}', 's_mul_i32 s41, s41, 112*1024', 's_add_u32 s41, s41, s40']
        for s in range(2):
            b = 8 * s
            for i in range(8): out.append(f'v_mul_f32 v{TM+i}, 0xbfb8aa3b, v{g+b+i}')
            for i in range(8): out.append(f'v_exp_f32 v{TM+i}, v{TM+i}')
            for i in range(8): out.append(f'v_mul_f32 v{u+b+i}, v{g+b+i}, v{u+b+i}')
            for i in range(8): out.append(f'v_add_f32 v{TM+i}, 1.0, v{TM+i}')
            for i in range(8): out.append(f'v_rcp_f32 v{TM+i}, v{TM+i}')
            for i in range(8): out.append(f'v_mul_f32 v{u+b+i}, v{u+b+i}, v{TM+i}')
            o = TM + 8 + 4 * s
            for q in range(4): out.append(f'v_cvt_pk_bf16_f32 v{o+q}, v{u+b+2*q}, v{u+b+2*q+1}')
            out.append(f'buffer_store_dwordx4 v[{o}:{o+3}], v{V_L16}, s[24:27], s41 offen offset:{1024*s} sc1')
        return out
    k(vm.wait(('T', layer, 0, 6)))
    for j in range(7): tok_write_one(0, j)
    tok_load(2)
    k(lg.wait(('w', 0, 6)))
    k('s_barrier')
    mark(k, f'g1:{layer}:tok0')
    sched = {0: [(n, 2) for n in range(0, 14)], 1: [(n, 0) for n in range(14, 28)],
             2: [(n, 16) for n in range(28, 35)],
             3: [(n, 16) for n in range(35, 42)]}
    sched = {0: [(n, 2) for n in range(0, 14)], 1: [(n, 0) for n in range(14, 25)] + [(n, 17) for n in range(28, 33)],
             2: [(n, 0) for n in range(25, 28)] + [(n, 0) for n in range(33, 35)] + [(n, 17) for n in range(35, 40)],
             3: [(n, 0) for n in range(40, 42)] + [(n, (n - 42) // 2 + 1) for n in range(42, 56)]}
    PD = 3
    for st in range(PD): tok_read(st)
    for tt in range(4):
        g = ACC + 32 * (tt % 2); u = g + 16
        fill = epilogue(tt - 1) if tt > 0 else []
        nf = len(fill); fi = 0
        wq = list(sched[tt])
        for ks in range(28):
            step = 28 * tt + ks
            if tt == 0 and ('W', ks) in vm.l:
                k(vm.wait(('W', ks)))
            w = lg.wait(('r', step))
            if w: k(w)
            b = TF + 4 * (step % 4)
            cg = f'v[{g}:{g+15}]' if ks else '0'
            cu = f'v[{u}:{u+15}]' if ks else '0'
            k(f'v_mfma_f32_32x32x16_bf16 v[{g}:{g+15}], a[{8*ks}:{8*ks+3}], v[{b}:{b+3}], {cg}')
            if step + PD < 112:
                tok_read(step + PD)
            tgt = (nf * (2 * ks) + 51) // 52 if ks >= 1 else 0
            while fi < min(tgt, nf):
                emit_vm(k, fill[fi], ('H', layer, tt - 1)); fi += 1
            k(f'v_mfma_f32_32x32x16_bf16 v[{u}:{u+15}], a[{8*ks+4}:{8*ks+7}], v[{b}:{b+3}], {cu}')
            tgt = (nf * (2 * ks + 1) + 51) // 52 if ks >= 1 else 0
            while fi < min(tgt, nf):
                emit_vm(k, fill[fi], ('H', layer, tt - 1)); fi += 1
            if tt < 3 and 8 <= ks < 15:
                if ks == 8: k(vm.wait(('T', layer, tt + 1, 6)))
                tok_write_one(tt + 1, ks - 8)
            if ks == 16:
                if tt < 3:
                    w = lg.wait(('w', tt + 1, 6))
                    if w: k(w)
                if tt >= 2: k(vm.wait(('H', layer, tt - 2)))
                k('s_barrier')
                if tt >= 2:
                    k(f's_add_u32 s62, s33, {tt-2}')
                    signal(k, line_sreg=62)
                if tt == 0: tok_load(3)
            if wq and wq[0][1] <= ks and (ks % 2 == 0 or len(wq) > (28 - ks) // 2):
                n, _ = wq.pop(0)
                for ins in wd_load(n): emit_vm(k, ins, ('D', layer, n))
        while fi < nf:
            emit_vm(k, fill[fi], ('H', layer, tt - 1)); fi += 1
        while wq:
            n, _ = wq.pop(0)
            for ins in wd_load(n): emit_vm(k, ins, ('D', layer, n))
        mark(k, f'g1:{layer}:pass{tt}')
    for s in epilogue(3): emit_vm(k, s, ('H', layer, 3))
    mark(k, f'g1:{layer}:epi3')

G2_SCR = 0
def ph_g2(k, layer):
    final = layer == 1
    l_s3 = L_S3 if layer == 0 else L_S6
    srd(k, 16, P_WS, OFF_H1 if layer == 0 else OFF_H2, SZ_H)
    srd(k, 24, P_WS, OFF_X1 if layer == 0 else OFF_X3, SZ_ACT)
    if final: srd(k, 36, P_OUT, 0, SZ_ACT)
    else: srd(k, 36, P_WS, OFF_X2, SZ_ACT)
    k(f's_lshr_b32 s12, s{S_RT}, 1')
    k(f's_and_b32 s13, s{S_RT}, 1')
    k('s_lshl_b32 s14, s12, 2')
    k('s_add_u32 s20, s14, s13')
    k('s_sub_u32 s21, 3, s13')
    k('s_add_u32 s21, s21, s14')
    k(f's_add_u32 s22, s20, {l_s3}')
    k(f's_add_u32 s23, s21, {l_s3}')
    k(f's_mul_i32 s31, s{S_WAVE}, 28*1024')
    k('s_mul_i32 s30, s20, 112*1024')
    k('s_add_u32 s30, s30, s31')
    k('s_mul_i32 s32, s21, 112*1024')
    k('s_add_u32 s32, s32, s31')
    ACC = 16
    def hloc(t, ks):
        if t == 0: return 56 + 4 * ks
        return (168 + 4 * ks) if ks < 14 else (56 + 4 * (ks - 14))
    def hload(t, ks):
        sreg = 30 if t == 0 else 32
        if ks % 4 == 0 and ks > 0: k(f's_add_u32 s{sreg}, s{sreg}, 4096')
        r = hloc(t, ks)
        emit_vm(k, f'buffer_load_dwordx4 a[{r}:{r+3}], v{V_L16}, s[16:19], s{sreg} offen offset:{(ks%4)*1024} sc1', ('HL', layer, t, ks))
    wait(k, 14, line_sreg=22)
    mark(k, f'g2:{layer}:A ready')
    for ks in range(14): hload(0, ks)
    def mm(t, ks):
        r = hloc(t, ks)
        for ct in range(2):
            acc = ACC + 32 * t + 16 * ct
            c = f'v[{acc}:{acc+15}]' if ks else '0'
            k(f'v_mfma_f32_32x32x16_bf16 v[{acc}:{acc+15}], {rr(WD_LOC[2*ks+ct])}, a[{r}:{r+3}], {c}')
    k(f'v_and_b32 v4, 31, v{V_LANE}')
    k(f'v_lshrrev_b32 v5, 5, v{V_LANE}')
    k(f's_lshr_b32 s12, s{S_WAVE}, 1')
    k('s_cmp_eq_u32 s12, 0')
    k('s_cselect_b32 s14, s20, s21')
    k(f's_and_b32 s13, s{S_WAVE}, 1')
    k('s_mul_i32 s15, s14, 28672')
    k(f's_lshl_b32 s28, s{S_CTP}, 12')
    k('s_add_u32 s15, s15, s28')
    k('s_lshl_b32 s28, s13, 11')
    k('s_add_u32 s15, s15, s28')
    k('v_lshlrev_b32 v7, 9, v5')
    k('v_lshl_add_u32 v7, v4, 4, v7')
    k('v_add_u32 v7, s15, v7')
    for j in range(14):
        hload(0, 14 + j)
        k(vm.wait(('HL', layer, 0, j)))
        mm(0, j)
    wait(k, 14, line_sreg=23)
    mark(k, f'g2:{layer}:B ready')
    for j in range(14):
        hload(1, 2 * j);
        hload(1, 2 * j + 1)
        k(vm.wait(('HL', layer, 0, 14 + j)))
        mm(0, 14 + j)
    emit_vm(k, 'buffer_load_dwordx4 v[80:83], v7, s[24:27], 0 offen sc1', ('R', layer, 0))
    emit_vm(k, 'buffer_load_dwordx4 v[84:87], v7, s[24:27], 0 offen offset:1024 sc1', ('R', layer, 1))
    for ks in range(28):
        k(vm.wait(('HL', layer, 1, ks)))
        mm(1, ks)
    mark(k, f'g2:{layer}:main')
    Lv = [label('x') for _ in range(4)]; Lx = label('xe')
    for w in range(4):
        if w < 3:
            k(f's_cmp_eq_u32 s{S_WAVE}, {w}')
            k(f's_cbranch_scc0 {Lv[w+1]}')
        k('s_nop 7'); k('s_nop 3')
        for ti in range(4):
            if ti == w: continue
            slot = (w - ti - 1) % 4
            acc = ACC + 32 * (ti >> 1) + 16 * (ti & 1)
            for rg in range(4):
                k(f'ds_write_b128 v{V_L16}, v[{acc+4*rg}:{acc+4*rg+3}] offset:{G2_SCR + ti*12288 + slot*4096 + rg*1024}')
        acc = ACC + 32 * (w >> 1) + 16 * (w & 1)
        for i in range(16): k(f'v_mov_b32 v{96+i}, v{acc+i}')
        k(f's_branch {Lx}')
        if w < 3: k(f'{Lv[w+1]}:')
    k(f'{Lx}:')
    k(f's_mul_i32 s12, s{S_WAVE}, 12288')
    k(f'v_add_u32 v8, s12, v{V_L16}')
    if final:
        k('s_mul_i32 s28, s14, 32*896')
        k(f's_lshl_b32 s29, s{S_CTP}, 7')
        k('s_add_u32 s28, s28, s29')
        k('s_lshl_b32 s29, s13, 6')
        k('s_add_u32 s28, s28, s29')
        k('v_mul_u32_u24 v9, 896, v4')
        k('v_lshl_add_u32 v9, v5, 4, v9')
        k('v_add_u32 v9, s28, v9')
    k('s_waitcnt lgkmcnt(0)')
    k('s_barrier')
    for sl in range(3):
        for rg in range(4):
            r = 16 + 16 * sl + 4 * rg
            k(f'ds_read_b128 v[{r}:{r+3}], v8 offset:{G2_SCR + sl*4096 + rg*1024}')
    k('s_waitcnt lgkmcnt(4)')
    for i in range(16): k(f'v_add_f32 v{16+i}, v{16+i}, v{32+i}')
    k('s_waitcnt lgkmcnt(0)')
    for i in range(16): k(f'v_add_f32 v{96+i}, v{96+i}, v{48+i}')
    for i in range(16): k(f'v_add_f32 v{96+i}, v{96+i}, v{16+i}')
    for p in range(2):
        for j in range(4):
            k(f'v_permlane32_swap_b32 v{96+8*p+j}, v{96+8*p+4+j}')
    k(vm.wait(('R', layer, 1)))
    for p in range(2):
        rs = 80 + 4 * p
        for i in range(4):
            k(f'v_lshlrev_b32 v{88}, 16, v{rs+i}')
            k(f'v_and_b32 v{89}, 0xffff0000, v{rs+i}')
            k(f'v_add_f32 v{96+8*p+2*i}, v{96+8*p+2*i}, v88')
            k(f'v_add_f32 v{96+8*p+2*i+1}, v{96+8*p+2*i+1}, v89')
        o = 48 + 4 * p
        for i in range(4): k(f'v_cvt_pk_bf16_f32 v{o+i}, v{96+8*p+2*i}, v{96+8*p+2*i+1}')
        if final:
            emit_vm(k, f'buffer_store_dwordx4 v[{o}:{o+3}], v9, s[36:39], 0 offen offset:{32*p}', ('O', layer, p))
        else:
            emit_vm(k, f'buffer_store_dwordx4 v[{o}:{o+3}], v7, s[36:39], 0 offen offset:{1024*p} sc1', ('O', layer, p))

def build():
    MARKS.clear(); vm.l.clear(); _lab[0] = 0
    k = Kern(KNAME, vgprs=256, agprs=256, sgprs=102)
    ph_init(k)
    ph_p0(k)
    Lc = label('noconv')
    Lw = label('s0skip')
    k('s_cmp_ge_u32 s2, 224')
    k(f's_cbranch_scc1 {Lw}')
    arrive(k, line_sreg=62, vmwait='s_waitcnt vmcnt(4)')
    mark(k, 'S0 arrived')
    ph_conv_prep(k)
    mark(k, 'conv prep done')
    k(f'{Lw}:')
    ph_p0_wfinish(k)
    k(f's_add_u32 s59, s{S_XCD}, {L_W}')
    arrive(k, line_sreg=59)
    mark(k, 'W arrived')
    k('s_cmp_ge_u32 s2, 224')
    k(f's_cbranch_scc1 {Lc}')
    wait(k, 32, line_sreg=62)
    mark(k, 'S0 passed')
    ph_conv(k)
    k(f'{Lc}:')
    mark(k, 'conv done')
    k(f's_add_u32 s59, s{S_XCD}, {L_S1}')
    arrive(k, line_sreg=59)
    mark(k, 'S1 arrived')
    Lg = label('pf')
    k(f's_cmp_ge_u32 s{S_I}, 28')
    k(f's_cbranch_scc1 {Lg}')
    wait(k, 32, line=L_W, nlines=8)
    g1_wprefetch(k, 0, 14)
    k(f'{Lg}:')
    ph_ln1_pre(k)
    mark(k, 'ln1 pre done')
    wait(k, 32, line=L_S1, nlines=8)
    mark(k, 'S1 passed')
    ph_ln1(k)
    k(f's_add_u32 s59, s{S_LNRB}, {L_S2}')
    arrive(k, line_sreg=59)
    mark(k, 'ln1 arrived')
    for layer in range(2):
        Lskip = label('gskip')
        k(f's_cmp_ge_u32 s{S_I}, 28')
        k(f's_cbranch_scc1 {Lskip}')
        g1_wprefetch(k, 14, 28)
        k(f's_add_u32 s59, s{S_RB}, {L_S2 if layer == 0 else L_S5}')
        wait(k, 16, line_sreg=59)
        mark(k, f'S(ln->g1){layer} passed')
        ph_g1(k, layer)
        k('s_add_u32 s59, s33, 2')
        arrive(k, line_sreg=59, n=2)
        mark(k, f'g1:{layer} arrived')
        ph_g2(k, layer)
        if layer == 0:
            k(f's_lshr_b32 s59, s{S_RT}, 1')
            k(f's_add_u32 s59, s59, {L_S4}')
            arrive(k, line_sreg=59)
            mark(k, 'S4 arrived')
            g1_wprefetch(k, 0, 14)
        mark(k, f'g2:{layer} done')
        k(f'{Lskip}:')
        if layer == 0:
            ph_ln2_pre(k)
            k(f's_add_u32 s59, s{S_LNRB}, {L_S4}')
            wait(k, 14, line_sreg=59)
            mark(k, 'S4 passed')
            ph_ln2(k)
            k(f's_add_u32 s59, s{S_LNRB}, {L_S5}')
            arrive(k, line_sreg=59)
            mark(k, 'ln2 arrived')
    if PROF:
        k('s_waitcnt vmcnt(0)')
        mark(k, 'end')
        srd(k, 56, P_WS, OFF_PROF, 0x100000)
        k('s_lshl_b32 s60, s2, 2')
        k(f's_add_u32 s60, s60, s{S_WAVE}')
        k('s_lshl_b32 s60, s60, 8')
        k(f'v_lshlrev_b32 v4, 2, v{V_LANE}')
        k(f'buffer_store_dword v{VPROF}, v4, s[56:59], s60 offen')
    k('L_end:')
    k('s_endpgm')
    hdr = open('interleave_layers__ssm_conv_h3__swiglu_ffn__prompt.s.ref').read().split('; Override launch')[0]
    out = [hdr.rstrip('\n')]
    out.append(f'; @launch grid=({NWG},1,1) block=(256,1,1) lds={LDS_BYTES}')
    out.append('.amdgcn_target "amdgcn-amd-amdhsa--gfx950"')
    out.append('.text')
    out.append(k.emit())
    out.append('.section .rodata,"a"')
    out.append('.p2align 6')
    out.append(k.desc())
    return '\n'.join(out) + '\n'

if __name__ == '__main__':
    if '--prof' in sys.argv: PROF = True
    txt = build()
    dst = sys.argv[1]
    open(dst, 'w').write(txt)
    if PROF:
        import json; json.dump(MARKS, open(dst + '.marks', 'w'))
    print('wrote', dst, len(txt), 'bytes', len(MARKS), 'marks')
```

```python
import sys
from asmlib import *

S = 2048; D = 448; F = 1792
SZ_ACT = 2048 * 448 * 2
OFF_XR = 0x0;       SZ_XR = 448 * 4096
OFF_YT = 0x200000
OFF_YF = 0x400000
OFF_X1 = 0x600000
OFF_XN1 = 0x800000
OFF_X2 = 0xA00000
OFF_X3 = 0xC00000
OFF_XN2 = 0xE00000
OFF_WGU = 0x1000000; SZ_WGU = 56 * 28 * 2 * 1024
OFF_WD = 0x1400000;  SZ_WD = 14 * 112 * 1024
OFF_H1 = 0x1600000;  SZ_H = 64 * 112 * 1024
OFF_H2 = 0x1E00000
OFF_SYNC = 0x2600000; SZ_SYNC = 256 * 128
OFF_PROF = 0x2800000
KNAME = 'interleave_layers__ssm_conv_h3__swiglu_ffn__prompt_kernel'
NWG = 256
LDS_BYTES = 160 * 1024
PROF = False
SPIN_MAX = 400000
L_S0, L_W, L_S1, L_S2, L_S3, L_S4, L_S5, L_S6 = 0, 8, 16, 24, 40, 104, 120, 136

P_Q, P_K, P_V, P_SH, P_SSK, P_SSD, P_BX, P_WG = 64, 66, 68, 70, 72, 74, 76, 78
P_WU, P_WD, P_OUT, P_DBG, P_WS = 80, 82, 84, 86, 88
SR_SYNC = 92
S_WAVE = 3
S_XCD, S_I = 90, 91
S_CH, S_PAR, S_CHB = 50, 51, 52
S_RB, S_FS, S_RT, S_CTP, S_LNRB = 53, 54, 55, 49, 63
SR_WGU = 4
SR_WD = 8
S_WOFF = 47
S_DOFF = 46
S_WCUR, S_WLIM = 100, 101
S_R1, S_R2 = 98, 99
VPROF = 255
V_LANE = 2
V_L16 = 3

PF_A1, PF_B1 = 10, 18
PF_A2, PF_B2, PF_C2 = 6, 12, 20

class VM:
    def __init__(self): self.l = []
    def add(self, tag): self.l.append(tag)
    def wait(self, tag):
        idx = len(self.l) - 1 - self.l[::-1].index(tag)
        return f's_waitcnt vmcnt({min(len(self.l) - 1 - idx, 63)})'
vm = VM()

class LG:
    def __init__(self): self.l = []
    def add(self, tag): self.l.append(tag)
    def wait(self, tag):
        if tag not in self.l: return None
        idx = len(self.l) - 1 - self.l[::-1].index(tag)
        n = min(len(self.l) - 1 - idx, 15)
        self.l = self.l[len(self.l) - n:] if n else []
        return f's_waitcnt lgkmcnt({n})'

def srd(k, d, p, off, size):
    if off:
        k(f's_add_u32 s{d}, s{p}, {off:#x}')
        k(f's_addc_u32 s{d+1}, s{p+1}, 0')
    else:
        k(f's_mov_b32 s{d}, s{p}')
        k(f's_mov_b32 s{d+1}, s{p+1}')
    k(f's_mov_b32 s{d+2}, {size:#x}')
    k(f's_mov_b32 s{d+3}, 0x20000')

def srd_soff(k, d, p, off, soff, size):
    k(f's_add_u32 s{d}, s{p}, {off:#x}')
    k(f's_addc_u32 s{d+1}, s{p+1}, 0')
    k(f's_add_u32 s{d}, s{d}, s{soff}')
    k(f's_addc_u32 s{d+1}, s{d+1}, 0')
    k(f's_mov_b32 s{d+2}, {size:#x}')
    k(f's_mov_b32 s{d+3}, 0x20000')

def udiv(k, dst, src, d):
    m = (2**32 + d - 1) // d
    k(f's_mul_hi_u32 s{dst}, s{src}, {m:#x}')

MARKS = []
def mark(k, name):
    if not PROF: return
    i = len(MARKS); MARKS.append(name)
    k('s_memrealtime s[96:97]')
    k('s_waitcnt lgkmcnt(0)')
    k(f'v_writelane_b32 v{VPROF}, s96, {i}')

_lab = [0]
def label(p):
    _lab[0] += 1
    return f'L_{p}_{_lab[0]}'

def signal(k, line_sreg=None, line=None, n=1):
    L = label('sig')
    k(f's_cmp_lg_u32 s{S_WAVE}, 0')
    k(f's_cbranch_scc1 {L}')
    k(f'v_lshlrev_b32 v250, 7, v{V_LANE}')
    if line_sreg is not None:
        k(f's_lshl_b32 s60, s{line_sreg}, 7')
        k('v_add_u32 v250, s60, v250')
    else:
        k(f'v_add_u32 v250, {line*128}, v250')
    k('v_mov_b32 v251, 1')
    k(f's_mov_b64 exec, {(1 << n) - 1}')
    k(f'buffer_atomic_add v251, v250, s[{SR_SYNC}:{SR_SYNC+3}], 0 offen sc1')
    k('s_mov_b64 exec, -1')
    k(f'{L}:')

def arrive(k, line_sreg=None, line=None, vmwait='s_waitcnt vmcnt(0)', n=1):
    k(vmwait)
    k('s_waitcnt lgkmcnt(0)')
    k('s_barrier')
    signal(k, line_sreg, line, n)

def wait(k, target, line_sreg=None, line=None, nlines=1, barrier=True):
    L = label('wt'); Lp = label('pl'); Ld = label('pd')
    k(f's_cmp_lg_u32 s{S_WAVE}, 0')
    k(f's_cbranch_scc1 {L}')
    k(f'v_lshlrev_b32 v250, 7, v{V_LANE}')
    if line_sreg is not None:
        k(f's_lshl_b32 s60, s{line_sreg}, 7')
        k('v_add_u32 v250, s60, v250')
    else:
        k(f'v_add_u32 v250, {line*128}, v250')
    k(f's_mov_b64 exec, {(1 << nlines) - 1}')
    k('s_mov_b32 s61, 0')
    k(f'{Lp}:')
    k(f'buffer_load_dword v251, v250, s[{SR_SYNC}:{SR_SYNC+3}], 0 offen sc1')
    k('s_add_u32 s61, s61, 1')
    k('s_waitcnt vmcnt(0)')
    k(f'v_cmp_le_u32 vcc, {target}, v251')
    k(f's_cmp_ge_u32 s61, {SPIN_MAX}')
    k(f's_cbranch_scc1 {Ld}')
    k('s_cmp_eq_u64 vcc, exec')
    k(f's_cbranch_scc0 {Lp}')
    k(f'{Ld}:')
    k('s_mov_b64 exec, -1')
    k(f'{L}:')
    if barrier: k('s_barrier')

def init_issue(k):
    L = label('ii')
    k(f's_cmp_lg_u32 s{S_WAVE}, 0')
    k(f's_cbranch_scc1 {L}')
    srd(k, 56, P_DBG, 0, 256)
    k('v_mov_b32 v248, 0')
    k('buffer_load_dword v249, v248, s[56:59], 0 offen sc1')
    k(f'{L}:')

def init_check(k):
    L = label('ic'); Lp = label('icp')
    k(f's_cmp_lg_u32 s{S_WAVE}, 0')
    k(f's_cbranch_scc1 {L}')
    k('v_readfirstlane_b32 s61, v249')
    k('s_cmp_lg_u32 s61, 0')
    k(f's_cbranch_scc1 {L}')
    wait_init(k)
    k(f'{L}:')

def wait_init(k):
    L = label('wi'); Lp = label('wip'); Ld = label('wid')
    k(f's_cmp_lg_u32 s{S_WAVE}, 0')
    k(f's_cbranch_scc1 {L}')
    srd(k, 56, P_DBG, 0, 256)
    k('v_mov_b32 v250, 0')
    k('s_mov_b64 exec, 1')
    k('s_mov_b32 s61, 0')
    k(f'{Lp}:')
    k('buffer_load_dword v251, v250, s[56:59], 0 offen sc1')
    k('s_add_u32 s61, s61, 1')
    k('s_waitcnt vmcnt(0)')
    k('v_cmp_ne_u32 vcc, 0, v251')
    k(f's_cmp_ge_u32 s61, {SPIN_MAX}')
    k(f's_cbranch_scc1 {Ld}')
    k('s_cmp_eq_u64 vcc, exec')
    k(f's_cbranch_scc0 {Lp}')
    k(f'{Ld}:')
    k('s_mov_b64 exec, -1')
    k(f'{L}:')

def ph_init(k):
    k(f's_cmp_ge_u32 s2, {NWG}')
    k('s_cbranch_scc1 L_end')
    k('s_load_dwordx16 s[64:79], s[0:1], 0')
    k('s_load_dwordx8 s[80:87], s[0:1], 64')
    k('s_load_dwordx2 s[88:89], s[0:1], 96')
    k('v_lshrrev_b32 v1, 6, v0')
    k(f'v_and_b32 v{V_LANE}, 63, v0')
    k(f'v_readfirstlane_b32 s{S_WAVE}, v1')
    k(f'v_lshlrev_b32 v{V_L16}, 4, v{V_LANE}')
    k(f's_and_b32 s{S_XCD}, s2, 7')
    k(f's_lshr_b32 s{S_I}, s2, 3')
    if PROF: k(f'v_mov_b32 v{VPROF}, 0')
    udiv(k, 15, S_I, 7)
    k('s_mul_i32 s28, s15, 7')
    k(f's_sub_u32 s{S_CTP}, s{S_I}, s28')
    k(f's_lshr_b32 s29, s{S_XCD}, 1')
    k('s_lshl_b32 s29, s29, 2')
    k(f's_add_u32 s{S_RB}, s29, s15')
    k(f's_and_b32 s30, s{S_XCD}, 1')
    k('s_mul_i32 s30, s30, 7')
    k(f's_add_u32 s{S_FS}, s30, s{S_CTP}')
    k(f's_lshl_b32 s29, s{S_XCD}, 2')
    k(f's_add_u32 s{S_RT}, s29, s15')
    k(f's_lshr_b32 s{S_LNRB}, s2, 4')
    k(f's_lshl_b32 s31, s{S_FS}, 2')
    k(f's_add_u32 s31, s31, s{S_WAVE}')
    k(f's_mul_i32 s{S_WOFF}, s31, 57344')
    k(f's_mul_i32 s{S_DOFF}, s{S_CTP}, 224*1024')
    k(f's_mul_i32 s31, s{S_WAVE}, 28*1024')
    k(f's_add_u32 s{S_DOFF}, s{S_DOFF}, s31')
    k(f's_and_b32 s{S_R1}, s{S_RB}, 3')
    k(f's_mul_i32 s{S_R1}, s{S_R1}, 7')
    k(f's_and_b32 s31, s{S_RT}, 3')
    k('s_mul_i32 s31, s31, 7')
    k(f's_lshl_b32 s{S_R2}, s{S_CTP}, 2')
    k(f's_add_u32 s{S_R2}, s{S_R2}, s31')
    k(f's_cmp_ge_u32 s{S_R2}, 28')
    k(f's_cselect_b32 s31, 28, 0')
    k(f's_sub_u32 s{S_R2}, s{S_R2}, s31')
    k('s_waitcnt lgkmcnt(0)')
    srd(k, SR_SYNC, P_WS, OFF_SYNC, SZ_SYNC)
    srd(k, SR_WGU, P_WS, OFF_WGU, SZ_WGU)
    srd(k, SR_WD, P_WS, OFF_WD, SZ_WD)
    mark(k, 'start')
    if PROF:
        k('s_memrealtime s[96:97]')
        k('s_waitcnt lgkmcnt(0)')
        k(f'v_writelane_b32 v{VPROF}, s96, 62')
    Lt = label('tlb')
    k(f's_cmp_lg_u32 s{S_WAVE}, 1')
    k(f's_cbranch_scc1 {Lt}')
    srd(k, 16, P_WS, 0, 0x2800000)
    srd(k, 20, P_OUT, 0, SZ_ACT)
    k(f'v_lshlrev_b32 v4, 21, v{V_LANE}')
    k('v_add_u32 v4, 0x1fff80, v4')
    k('v_mov_b32 v5, 0')
    k('s_mov_b64 exec, 0xfffff')
    k('buffer_load_dword v246, v4, s[16:19], 0 offen sc1')
    k('s_mov_b64 exec, 1')
    k('buffer_load_dword v247, v5, s[20:23], 0 offen sc1')
    k('s_mov_b64 exec, -1')
    k(f'{Lt}:')
    L = label('ini')
    k('s_cmp_lg_u32 s2, 255')
    k(f's_cbranch_scc1 {L}')
    k(f's_cmp_lg_u32 s{S_WAVE}, 3')
    k(f's_cbranch_scc1 {L}')
    for i in range(4): k(f'v_mov_b32 v{8+i}, 0')
    for i in range(3):
        k(f'buffer_store_dwordx4 v[8:11], v{V_L16}, s[{SR_SYNC}:{SR_SYNC+3}], 0 offen offset:{1024*i} sc1')
    srd(k, 56, P_DBG, 0, 256)
    k('s_waitcnt vmcnt(0)')
    k('v_mov_b32 v4, 0')
    k('v_mov_b32 v5, 1')
    k('s_mov_b64 exec, 1')
    k('buffer_store_dword v5, v4, s[56:59], 0 offen sc1')
    k('s_mov_b64 exec, -1')
    k('s_movk_i32 s12, 3072')
    for i in range(29):
        k(f'buffer_store_dwordx4 v[8:11], v{V_L16}, s[{SR_SYNC}:{SR_SYNC+3}], s12 offen sc1')
        if i < 28: k('s_add_u32 s12, s12, 1024')
    k(f'{L}:')

CH_STRIDE = 37888
XRL_OFF = 33280
CONV_SCR = 2 * CH_STRIDE
YB_SCR = 92160
WST_OFF = 100352

def p0_weight_dma(k, rnd):
    fl = 34 + rnd; ds = 40 + rnd
    if rnd < 3:
        if rnd: k(f's_add_u32 s12, s48, {1024*rnd}')
        else: k('s_mov_b32 s12, s48')
        kind = 'gu'
    elif rnd == 3:
        k('s_mov_b32 s12, s48'); kind = 'wd'
    Lskip = None
    if rnd == 4:
        Lgu = label('w4g'); Lskip = label('w4s'); Ldone = label('w4d')
        k(f's_mov_b32 s{fl}, 2')
        k('s_cmp_ge_u32 s48, 608')
        k(f's_cbranch_scc1 {Lskip}')
        k('s_cmp_ge_u32 s48, 544')
        k(f's_cbranch_scc1 {Lgu}')
        k('s_add_u32 s12, s48, 1024')
        _w_dma(k, 'wd', rnd, fl, ds)
        k(f's_branch {Ldone}')
        k(f'{Lgu}:')
        k('s_add_u32 s12, s48, 3072-544')
        _w_dma(k, 'gu', rnd, fl, ds)
        k(f's_branch {Ldone}')
        k(f'{Lskip}:')
        k(f's_mul_i32 s13, s{S_WAVE}, 5120')
        k(f's_add_u32 s13, s13, {WST_OFF + 1024*rnd}')
        k('s_mov_b32 m0, s13')
        srd(k, 16, P_WD, 0, 0)
        k('buffer_load_dwordx4 v61, s[16:19], 0 offen lds')
        k(f'{Ldone}:')
    else:
        _w_dma(k, kind, rnd, fl, ds)

def _w_dma(k, kind, rnd, fl, ds):
    k(f's_mul_i32 s13, s{S_WAVE}, 5120')
    k(f's_add_u32 s13, s13, {WST_OFF + 1024*rnd}')
    k('s_mov_b32 m0, s13')
    if kind == 'gu':
        udiv(k, 14, 12, 56)
        k('s_mul_i32 s15, s14, 56')
        k('s_sub_u32 s15, s12, s15')
        k('s_lshr_b32 s28, s15, 1')
        k('s_mul_i32 s28, s28, 16*3584')
        k('s_lshl_b32 s29, s14, 6')
        k('s_add_u32 s28, s28, s29')
        k('s_and_b32 s15, s15, 1')
        k('s_cmp_eq_u32 s15, 0')
        k(f's_cselect_b32 s16, s{P_WG}, s{P_WU}')
        k(f's_cselect_b32 s17, s{P_WG+1}, s{P_WU+1}')
        k(f's_mov_b32 s18, {448*1792*2:#x}')
        k('s_mov_b32 s19, 0x20000')
        k('buffer_load_dwordx4 v60, s[16:19], s28 offen lds')
        k(f's_lshl_b32 s{ds}, s12, 10')
        k(f's_mov_b32 s{fl}, 0')
    else:
        udiv(k, 14, 12, 112)
        k('s_mul_i32 s15, s14, 112')
        k('s_sub_u32 s15, s12, s15')
        k('s_mul_i32 s28, s15, 16*896')
        k('s_lshl_b32 s29, s14, 6')
        k('s_add_u32 s28, s28, s29')
        srd(k, 16, P_WD, 0, 1792 * 448 * 2)
        k('buffer_load_dwordx4 v61, s[16:19], s28 offen lds')
        k(f's_lshl_b32 s{ds}, s12, 10')
        k(f's_mov_b32 s{fl}, 1')

def ph_p0(k):
    k('s_lshl_b32 s48, s2, 2')
    k(f's_add_u32 s48, s48, s{S_WAVE}')
    Lnokv = label('nokv')
    ln_addr(k)
    srd(k, 28, P_Q, 0, SZ_ACT)
    k('s_mul_i32 s15, s2, 8*896')
    k('v_mul_u32_u24 v9, 896, v33')
    k('v_lshl_add_u32 v9, v5, 4, v9')
    k('v_add_u32 v9, s15, v9')
    k('v_add_u32 v10, 128, v9')
    k('v_cndmask_b32 v10, v8, v10, s[38:39]')
    mark(k, 'p0 lnaddr')
    k('s_cmp_ge_u32 s2, 224')
    k(f's_cbranch_scc1 {Lnokv}')
    udiv(k, 12, 2, 7)
    k('s_mul_i32 s13, s12, 7')
    k('s_sub_u32 s13, s2, s13')
    k('s_mov_b32 s62, s13')
    k(f'v_and_b32 v40, 7, v{V_LANE}')
    k(f'v_lshrrev_b32 v1, 3, v{V_LANE}')
    k(f's_lshl_b32 s14, s{S_WAVE}, 5')
    k('s_lshl_b32 s15, s13, 7')
    k('s_add_u32 s14, s14, s15')
    k('v_lshl_add_u32 v41, v1, 2, s14')
    k('s_mul_i32 s15, s12, 64*896')
    k('v_mul_u32_u24 v42, 8*896, v40')
    k('v_add3_u32 v42, v42, v41, s15')
    k('v_add_u32 v43, 5*896, v42')
    k('v_subrev_u32 v44, 3*896, v42')
    k('v_lshlrev_b32 v45, 2, v41')
    srd(k, 16, P_K, 0, SZ_ACT); srd(k, 20, P_V, 0, SZ_ACT); srd(k, 24, P_SH, 0, 448 * 8)
    K0 = 16; V0 = 48
    for j in range(3): k(f'buffer_load_dword v{K0+j}, v44, s[16:19], 0 offen offset:{896*j}')
    for j in range(5): k(f'buffer_load_dword v{K0+3+j}, v42, s[16:19], 0 offen offset:{896*j}')
    for j in range(3): k(f'buffer_load_dword v{K0+8+j}, v43, s[16:19], 0 offen offset:{896*j}')
    for j in range(5): k(f'buffer_load_dword v{V0+j}, v42, s[20:23], 0 offen offset:{896*j}')
    for j in range(3): k(f'buffer_load_dword v{V0+5+j}, v43, s[20:23], 0 offen offset:{896*j}')
    k('buffer_load_dwordx4 v[36:39], v45, s[24:27], 0 offen')
    mark(k, 'p0 kv issued')
    k('s_lshl_b32 s13, s13, 6')
    k('s_lshl_b32 s14, s12, 1')
    k('s_add_u32 s13, s13, s14')
    k(f's_lshr_b32 s14, s{S_WAVE}, 1')
    k(f's_and_b32 s{S_PAR}, s{S_WAVE}, 1')
    k(f's_add_u32 s{S_CH}, s13, s14')
    k(f's_mul_i32 s{S_CHB}, s14, {CH_STRIDE}')
    k(f's_lshl_b32 s16, s{S_CH}, 12')
    srd_soff(k, 20, P_SSK, 0, 16, 4096)
    k(f's_lshl_b32 s17, s{S_PAR}, 11')
    k(f'v_add_u32 v92, s17, v{V_L16}')
    k('v_subrev_u32 v93, 16, v92')
    for r in range(2):
        k(f'buffer_load_dwordx4 v[{96+8*r}:{99+8*r}], v93, s[20:23], 0 offen offset:{1024*r}')
        k(f'buffer_load_dwordx4 v[{100+8*r}:{103+8*r}], v92, s[20:23], 0 offen offset:{1024*r}')
    k('buffer_load_dwordx4 v[232:235], v9, s[28:31], 0 offen')
    k('buffer_load_dwordx4 v[236:239], v10, s[28:31], 0 offen')
    k('v_lshlrev_b32 v46, 11, v41')
    k('s_lshl_b32 s32, s12, 7')
    k('v_lshlrev_b32 v47, 4, v40')
    k('v_add_u32 v47, s32, v47')
    k('v_sub_u32 v47, 4080, v47')
    k('v_add_u32 v47, v46, v47')
    srd(k, 28, P_WS, OFF_XR, SZ_XR)
    k('s_movk_i32 s33, 4096')
    mark(k, 'p0 issued')
    k('s_waitcnt vmcnt(6)')
    mark(k, 'p0 kv data')
    SK = 56
    for c in range(2):
        k(f'v_lshlrev_b32 v{SK+4*c+0}, 16, v{36+2*c}')
        k(f'v_and_b32 v{SK+4*c+1}, 0xffff0000, v{36+2*c}')
        k(f'v_lshlrev_b32 v{SK+4*c+2}, 16, v{37+2*c}')
        k(f'v_and_b32 v{SK+4*c+3}, 0xffff0000, v{37+2*c}')
    KF = 64
    for c in range(2):
        for j in range(11):
            if c == 0: k(f'v_lshlrev_b32 v{KF+j}, 16, v{K0+j}')
            else: k(f'v_and_b32 v{KF+j}, 0xffff0000, v{K0+j}')
        for t in range(8):
            if c == 0: k(f'v_lshlrev_b32 v{112+t}, 16, v{V0+t}')
            else: k(f'v_and_b32 v{112+t}, 0xffff0000, v{V0+t}')
        for t in range(8): k(f'v_mul_f32 v{76+t}, v{SK+4*c+3}, v{KF+t}')
        for t in range(8): k(f'v_fmac_f32 v{76+t}, v{SK+4*c+2}, v{KF+t+1}')
        for t in range(8): k(f'v_fmac_f32 v{76+t}, v{SK+4*c+1}, v{KF+t+2}')
        for t in range(8): k(f'v_fmac_f32 v{76+t}, v{SK+4*c+0}, v{KF+t+3}')
        for t in range(8): k(f'v_mul_f32 v{76+t}, v{76+t}, v{112+t}')
        o = 84 + 4 * c
        for i in range(4):
            k(f'v_cvt_pk_bf16_f32 v{o+i}, v{76+7-2*i}, v{76+6-2*i}')
        if c == 0: k(f'buffer_store_dwordx4 v[{o}:{o+3}], v47, s[28:31], 0 offen sc1')
        else: k(f'buffer_store_dwordx4 v[{o}:{o+3}], v47, s[28:31], s33 offen sc1')
    mark(k, 'kv stored')
    init_issue(k)
    Lj = label('p0j')
    k(f's_branch {Lj}')
    k(f'{Lnokv}:')
    k('buffer_load_dwordx4 v[232:235], v9, s[28:31], 0 offen')
    k('buffer_load_dwordx4 v[236:239], v10, s[28:31], 0 offen')
    k(f'{Lj}:')

def ph_p0_wdma(k):
    k(f'v_lshrrev_b32 v62, 2, v{V_LANE}')
    k(f'v_and_b32 v63, 3, v{V_LANE}')
    k('v_lshlrev_b32 v63, 4, v63')
    k('v_mul_u32_u24 v60, 3584, v62')
    k('v_add_u32 v60, v60, v63')
    k('v_mul_u32_u24 v61, 896, v62')
    k('v_add_u32 v61, v61, v63')
    for rnd in range(5): p0_weight_dma(k, rnd)
    mark(k, 'p0 dma issued')

def ph_p0_wfinish(k):
    k('s_waitcnt vmcnt(0)')
    k(f'v_and_b32 v62, 15, v{V_LANE}')
    k(f'v_lshrrev_b32 v63, 4, v{V_LANE}')
    k('v_lshrrev_b32 v64, 2, v62')
    k('v_and_b32 v65, 3, v62')
    k('v_lshlrev_b32 v65, 3, v65')
    k('v_and_b32 v66, 1, v63')
    k('v_lshl_add_u32 v65, v66, 5, v65')
    k('v_lshl_add_u32 v65, v64, 6, v65')
    k('v_lshrrev_b32 v63, 1, v63')
    k(f's_mul_i32 s13, s{S_WAVE}, 5120')
    k(f's_add_u32 s13, s13, {WST_OFF}')
    k('v_add_u32 v65, s13, v65')
    k('v_lshl_add_u32 v66, v63, 9, v65')
    k('v_lshl_add_u32 v67, v63, 8, v65')
    for rnd in range(5):
        fl = 34 + rnd
        o = 112 + 4 * rnd
        Lwd = label('trw'); Le = label('tre')
        if rnd < 3:
            k(f'ds_read_b64_tr_b16 v[{o}:{o+1}], v66 offset:{1024*rnd}')
            k(f'ds_read_b64_tr_b16 v[{o+2}:{o+3}], v66 offset:{1024*rnd + 256}')
        elif rnd == 3:
            k(f'ds_read_b64_tr_b16 v[{o}:{o+1}], v67 offset:{1024*rnd}')
            k(f'ds_read_b64_tr_b16 v[{o+2}:{o+3}], v67 offset:{1024*rnd + 512}')
        else:
            k(f's_cmp_eq_u32 s{fl}, 1')
            k(f's_cbranch_scc1 {Lwd}')
            k(f'ds_read_b64_tr_b16 v[{o}:{o+1}], v66 offset:{1024*rnd}')
            k(f'ds_read_b64_tr_b16 v[{o+2}:{o+3}], v66 offset:{1024*rnd + 256}')
            k(f's_branch {Le}')
            k(f'{Lwd}:')
            k(f'ds_read_b64_tr_b16 v[{o}:{o+1}], v67 offset:{1024*rnd}')
            k(f'ds_read_b64_tr_b16 v[{o+2}:{o+3}], v67 offset:{1024*rnd + 512}')
            k(f'{Le}:')
    k('s_waitcnt lgkmcnt(0)')
    for rnd in range(4):
        o = 112 + 4 * rnd
        sr = SR_WGU if rnd < 3 else SR_WD
        k(f'buffer_store_dwordx4 v[{o}:{o+3}], v{V_L16}, s[{sr}:{sr+3}], s{40+rnd} offen sc1')
    Lwd = label('stw'); Le = label('ste')
    k('s_cmp_eq_u32 s38, 2')
    k(f's_cbranch_scc1 {Le}')
    k('s_cmp_eq_u32 s38, 1')
    k(f's_cbranch_scc1 {Lwd}')
    k(f'buffer_store_dwordx4 v[128:131], v{V_L16}, s[{SR_WGU}:{SR_WGU+3}], s44 offen sc1')
    k(f's_branch {Le}')
    k(f'{Lwd}:')
    k(f'buffer_store_dwordx4 v[128:131], v{V_L16}, s[{SR_WD}:{SR_WD+3}], s44 offen sc1')
    k(f'{Le}:')
    mark(k, 'w stored')

def ph_conv_prep(k):
    k(f'v_add_u32 v6, s{S_CHB}, v92')
    k('v_add_u32 v6, 16, v6')
    for i in range(4): k(f'v_mov_b32 v{8+i}, 0')
    La = label('cz'); Lb = label('cz')
    k(f's_cmp_eq_u32 s{S_PAR}, 0')
    k(f's_cbranch_scc0 {La}')
    k(f'v_mul_u32_u24 v7, 4160, v{V_LANE}')
    k(f'v_add_u32 v7, s{S_CHB}, v7')
    k(f'v_cmp_gt_u32 vcc, 8, v{V_LANE}')
    k('s_and_saveexec_b64 s[30:31], vcc')
    k('ds_write_b128 v7, v[8:11]')
    k('s_mov_b64 exec, s[30:31]')
    k(f's_branch {Lb}')
    k(f'{La}:')
    k(f'v_add_u32 v7, s{S_CHB}, v{V_L16}')
    k(f'v_add_u32 v7, {XRL_OFF + 4096}, v7')
    k(f'v_cmp_gt_u32 vcc, 30, v{V_LANE}')
    k('s_and_saveexec_b64 s[30:31], vcc')
    k('ds_write_b128 v7, v[8:11]')
    k('s_mov_b64 exec, s[30:31]')
    k(f'{Lb}:')
    for r in range(2):
        W = 96 + 8 * r
        for c in range(8):
            s = c + 1
            T = 16 + 4 * (c % 4) + 16 * r
            if s % 2 == 1:
                kk = (s - 1) // 2
                for i in range(4): k(f'v_alignbit_b32 v{T+i}, v{W+kk+i+1}, v{W+kk+i}, 16')
                src = T
            else:
                kk = s // 2
                if kk % 2 == 0: src = W + kk
                else:
                    for i in range(4): k(f'v_mov_b32 v{T+i}, v{W+kk+i}')
                    src = T
            k(f'ds_write_b128 v6, v[{src}:{src+3}] offset:{c*4160 + 1024*r}')

def g1_wload(k, ks):
    out = []
    if ks % 2 == 0: out.append(f's_add_u32 s45, s{S_WOFF}, {ks*2048}')
    o = (ks % 2) * 2048
    out.append(f'buffer_load_dwordx4 a[{8*ks}:{8*ks+3}], v{V_L16}, s[{SR_WGU}:{SR_WGU+3}], s45 offen offset:{o} sc1')
    out.append(f'buffer_load_dwordx4 a[{8*ks+4}:{8*ks+7}], v{V_L16}, s[{SR_WGU}:{SR_WGU+3}], s45 offen offset:{o+1024} sc1')
    return out

class Cap:
    def __init__(self): self.L = []
    def __call__(self, x): self.L.append(x)

def sprinkle(k, lines, fillers, tagf, skip_head=0, skip_tail=0):
    n = len(lines) - skip_head - skip_tail
    fi = 0; nf = len(fillers)
    masked = False
    for i, ln in enumerate(lines):
        if isinstance(ln, tuple): emit_vm(k, ln[0], ln[1])
        else:
            k(ln)
            if 'saveexec' in ln: masked = True
            if ln.startswith('s_mov_b64 exec'): masked = False
        j = i - skip_head + 1
        if j > 0 and n > 0 and not masked:
            tgt = min(nf, (nf * j + n - 1) // n)
            while fi < tgt:
                for ins in fillers[fi][0]: emit_vm(k, ins, fillers[fi][1])
                fi += 1
    while fi < nf:
        for ins in fillers[fi][0]: emit_vm(k, ins, fillers[fi][1])
        fi += 1

def step_cur(cur, lim, base, stride):
    return [f's_add_u32 s{cur}, s{cur}, {stride}', f's_cmp_eq_u32 s{cur}, s{lim}', f's_cselect_b32 s{cur}, s{base}, s{cur}']

def g1_pf_reset():
    return [f's_lshl_b32 s{S_WCUR}, s{S_R1}, 11', f's_add_u32 s{S_WCUR}, s{S_WCUR}, s{S_WOFF}', f's_add_u32 s{S_WLIM}, s{S_WOFF}, {28*2048}']

def g1_pf_groups(ks0, ks1):
    out = []
    for ks in range(ks0, ks1):
        pre = g1_pf_reset() if ks == 0 else step_cur(S_WCUR, S_WLIM, S_WOFF, 2048)
        out.append((pre + [f'buffer_load_dwordx4 a[{8*ks}:{8*ks+3}], v{V_L16}, s[{SR_WGU}:{SR_WGU+3}], s{S_WCUR} offen sc1'], ('W', ks)))
        out.append(([f'buffer_load_dwordx4 a[{8*ks+4}:{8*ks+7}], v{V_L16}, s[{SR_WGU}:{SR_WGU+3}], s{S_WCUR} offen offset:1024 sc1'], ('W', ks)))
    return out

def emit_vm(k, ins, tag):
    k(ins)
    if ins.startswith('buffer_'): vm.add(tag)

def g1_wprefetch(k, ks0, ks1):
    for grp, tag in g1_pf_groups(ks0, ks1):
        for ins in grp: emit_vm(k, ins, tag)

def l2_warm(k, sr, nbytes_half, whole=False):
    per = nbytes_half // 16
    assert per % 1024 == 0
    n = per // 1024
    k(f's_sub_u32 s12, s{S_I}, 28')
    k('s_lshl_b32 s12, s12, 2')
    k(f's_add_u32 s12, s12, s{S_WAVE}')
    k(f's_mul_i32 s12, s12, {per}')
    if not whole:
        k(f's_and_b32 s13, s{S_XCD}, 1')
        k(f's_mul_i32 s13, s13, {nbytes_half}')
        k('s_add_u32 s12, s12, s13')
    Ll = label('warm')
    k(f's_mov_b32 s13, {n // 4}')
    k(f'{Ll}:')
    for j in range(4):
        k(f'buffer_load_dwordx4 v[{16+4*j}:{19+4*j}], v{V_L16}, s[{sr}:{sr+3}], s12 offen offset:{1024*j} sc1')
    k('s_add_u32 s12, s12, 4096')
    k('s_sub_u32 s13, s13, 1')
    k('s_cmp_lg_u32 s13, 0')
    k('s_waitcnt vmcnt(24)')
    k(f's_cbranch_scc1 {Ll}')
    for j in range(n % 4):
        k(f'buffer_load_dwordx4 v[{16+4*j}:{19+4*j}], v{V_L16}, s[{sr}:{sr+3}], s12 offen offset:{1024*j} sc1')

def ph_conv(k):
    srd(k, 16, P_WS, OFF_XR, SZ_XR)
    srd(k, 24, P_WS, OFF_YT, SZ_ACT)
    k(f's_lshl_b32 s20, s{S_CH}, 12')
    k(f's_lshl_b32 s21, s{S_PAR}, 11')
    k('s_add_u32 s20, s20, s21')
    k(f'buffer_load_dwordx4 v[16:19], v{V_L16}, s[16:19], s20 offen sc1')
    k(f'buffer_load_dwordx4 v[20:23], v{V_L16}, s[16:19], s20 offen offset:1024 sc1')
    k(f's_and_b32 s28, s{S_CH}, 0xfffffffe')
    k('s_lshl_b32 s28, s28, 1')
    k(f's_load_dword s29, s[{P_SSD}:{P_SSD+1}], s28')
    k(f's_add_u32 s21, s21, s{S_CHB}')
    k(f's_add_u32 s21, s21, {XRL_OFF}')
    k(f'v_add_u32 v4, s21, v{V_L16}')
    k(f'v_and_b32 v5, 15, v{V_LANE}')
    k(f'v_lshrrev_b32 v6, 4, v{V_LANE}')
    k('v_lshlrev_b32 v7, 4, v6')
    k('v_lshlrev_b32 v8, 5, v5')
    k('v_sub_u32 v7, v7, v8')
    k(f's_lshl_b32 s22, s{S_PAR}, 6')
    k(f's_add_u32 s22, s22, s{S_CHB}')
    k(f's_add_u32 s22, s22, {XRL_OFF + 544 - 64}')
    k('v_add_u32 v7, s22, v7')
    k('v_and_b32 v12, 7, v5')
    k('v_mul_u32_u24 v12, 4160, v12')
    k('v_lshrrev_b32 v13, 3, v5')
    k('v_add_u32 v13, v6, v13')
    k('v_lshlrev_b32 v13, 4, v13')
    k('v_add_u32 v12, v12, v13')
    k(f's_lshl_b32 s22, s{S_PAR}, 6')
    k(f's_add_u32 s22, s22, s{S_CHB}')
    k('v_add_u32 v12, s22, v12')
    k('s_waitcnt vmcnt(0)')
    k('ds_write_b128 v4, v[16:19]')
    k('ds_write_b128 v4, v[20:23] offset:1024')
    k('s_waitcnt lgkmcnt(0)')
    k('s_barrier')
    mark(k, 'conv:x in lds')
    ph_p0_wfinish(k)
    ACC = 16; FR = 48; AR = 176; NA = 8
    order = list(range(31, -1, -1))
    def frags(jj): return [(at, 4 * at - jj + 3) for at in range(jj // 4, 8)]
    pend = []
    def issue(tag, txt): k(txt); pend.append(tag)
    def wait_for(tags):
        idx = [pend.index(t) for t in tags if t in pend]
        if idx:
            n = min(len(pend) - 1 - max(idx), 15)
            k(f's_waitcnt lgkmcnt({n})')
            pend[:] = pend[len(pend) - n:] if n > 0 else []
    loadedF = set()
    def issueA(idx):
        jj = order[idx]; r = AR + 4 * (idx % NA)
        issue(('A', jj), f'ds_read_b128 v[{r}:{r+3}], v12 offset:{128*jj}')
    def issueF(idx):
        for at, n in frags(order[idx]):
            if n not in loadedF:
                loadedF.add(n)
                issue(('F', n), f'ds_read_b128 v[{FR+4*n}:{FR+4*n+3}], v7 offset:{128*(31-n)}')
    LA = 4
    for idx in range(LA): issueA(idx); issueF(idx)
    first = set()
    nm = 0
    for idx, jj in enumerate(order):
        if idx + LA < 32: issueA(idx + LA); issueF(idx + LA)
        wait_for([('A', jj)] + [('F', n) for _, n in frags(jj)])
        r = AR + 4 * (idx % NA)
        for at, n in frags(jj):
            c = f'v[{ACC+4*at}:{ACC+4*at+3}]' if at in first else '0'
            first.add(at)
            k(f'v_mfma_f32_16x16x32_bf16 v[{ACC+4*at}:{ACC+4*at+3}], v[{r}:{r+3}], v[{FR+4*n}:{FR+4*n+3}], {c}')
    mark(k, 'conv:mfma done')
    k(f's_lshl_b32 s41, s{S_WAVE}, 12')
    k(f's_add_u32 s41, s41, {CONV_SCR}')
    k(f'v_add_u32 v8, s41, v{V_L16}')
    k(f's_xor_b32 s42, s{S_WAVE}, 1')
    k('s_lshl_b32 s42, s42, 12')
    k(f's_add_u32 s42, s42, {CONV_SCR}')
    k(f'v_add_u32 v9, s42, v{V_L16}')
    k('v_lshlrev_b32 v10, 5, v5')
    k('v_lshl_add_u32 v10, v6, 3, v10')
    k(f's_lshl_b32 s43, s{S_PAR}, 11')
    k(f's_sub_u32 s43, s{S_CHB}, s43')
    k(f's_add_u32 s43, s43, {XRL_OFF + 4088 - 512*3}')
    k('v_sub_u32 v11, s43, v10')
    k('v_and_b32 v13, 1, v6')
    k('v_lshlrev_b32 v13, 5, v13')
    k('v_lshl_add_u32 v13, v5, 1, v13')
    k('v_lshrrev_b32 v14, 1, v6')
    k('v_add_u32 v13, v13, v14')
    k(f's_lshl_b32 s44, s{S_PAR}, 7')
    k('v_add_u32 v13, s44, v13')
    k('v_lshlrev_b32 v13, 5, v13')
    k(f's_lshr_b32 s44, s{S_WAVE}, 1')
    k('s_lshl_b32 s44, s44, 4')
    k(f's_add_u32 s44, s44, {YB_SCR}')
    k('v_add_u32 v13, s44, v13')
    k(f's_lshl_b32 s44, s{S_WAVE}, 11')
    k(f's_add_u32 s44, s44, {YB_SCR}')
    k(f'v_add_u32 v14, s44, v{V_L16}')
    k(f'v_lshrrev_b32 v10, 1, v{V_LANE}')
    k('v_mul_u32_u24 v10, 7168, v10')
    k(f'v_and_b32 v15, 1, v{V_LANE}')
    k('v_lshl_add_u32 v10, v15, 4, v10')
    k(f's_and_b32 s44, s{S_CH}, 0xfffffffe')
    k('s_lshl_b32 s44, s44, 4')
    k(f's_mul_i32 s45, s{S_WAVE}, 64*7168')
    k('s_add_u32 s44, s44, s45')
    k('v_add_u32 v10, s44, v10')
    La = label('cp'); Lb = label('cp')
    k(f's_cmp_eq_u32 s{S_PAR}, 0')
    k(f's_cbranch_scc0 {La}')
    for i in range(4): k(f'ds_write_b128 v8, v[{ACC+16+4*i}:{ACC+16+4*i+3}] offset:{1024*i}')
    k(f's_branch {Lb}')
    k(f'{La}:')
    k('s_nop 7')
    for i in range(4): k(f'ds_write_b128 v8, v[{ACC+4*i}:{ACC+4*i+3}] offset:{1024*i}')
    for i in range(16): k(f'v_mov_b32 v{ACC+i}, v{ACC+16+i}')
    k(f'{Lb}:')
    k('s_waitcnt lgkmcnt(0)')
    k('s_lshl_b32 s36, s29, 16')
    k('s_and_b32 s37, s29, 0xffff0000')
    k(f's_and_b32 s34, s{S_CH}, 1')
    k('s_cmp_eq_u32 s34, 0')
    k('s_cselect_b32 s36, s36, s37')
    k('s_waitcnt vmcnt(0)')
    k('s_barrier')
    k(f's_add_u32 s59, s{S_XCD}, {L_W}')
    signal(k, line_sreg=59)
    for i in range(4): k(f'ds_read_b128 v[{48+4*i}:{51+4*i}], v9 offset:{1024*i}')
    for i in range(4): k(f'ds_read_b64 v[{64+2*i}:{65+2*i}], v11 offset:{512*(3-i)}')
    k('s_waitcnt lgkmcnt(0)')
    for i in range(4):
        a = ACC + 4 * i
        for r in range(4): k(f'v_add_f32 v{a+r}, v{a+r}, v{48+4*i+r}')
        x0, x1 = 64 + 2 * i, 65 + 2 * i
        k(f'v_and_b32 v72, 0xffff0000, v{x1}')
        k(f'v_lshlrev_b32 v73, 16, v{x1}')
        k(f'v_and_b32 v74, 0xffff0000, v{x0}')
        k(f'v_lshlrev_b32 v75, 16, v{x0}')
        for r in range(4): k(f'v_fmac_f32 v{a+r}, s36, v{72+r}')
        k(f'v_cvt_pk_bf16_f32 v{76+2*i}, v{a}, v{a+1}')
        k(f'v_cvt_pk_bf16_f32 v{77+2*i}, v{a+2}, v{a+3}')
    for p in range(2):
        o = 76 + 4 * p
        k(f'v_permlane16_swap_b32 v{o}, v{o+2}')
        k(f'v_permlane16_swap_b32 v{o+1}, v{o+3}')
        k(f'ds_write_b128 v13, v[{o}:{o+3}] offset:{2048*p}')
    k('s_waitcnt lgkmcnt(0)')
    k('s_barrier')
    k('ds_read_b128 v[84:87], v14')
    k('ds_read_b128 v[88:91], v14 offset:1024')
    k('s_waitcnt lgkmcnt(1)')
    emit_vm(k, 'buffer_store_dwordx4 v[84:87], v10, s[24:27], 0 offen sc1', ('YT', 0))
    k('s_mov_b32 s45, 32*7168')
    k('s_waitcnt lgkmcnt(0)')
    emit_vm(k, 'buffer_store_dwordx4 v[88:91], v10, s[24:27], s45 offen sc1', ('YT', 1))

def wave_reduce8(k, regs, tmp):
    for r in regs: k(f'v_add_f32_dpp v{r}, v{r}, v{r} row_ror:8 row_mask:0xf bank_mask:0xf')
    for r, t in zip(regs, tmp): k(f'v_mov_b32 v{t}, v{r}')
    for r, t in zip(regs, tmp): k(f'v_permlane16_swap_b32 v{r}, v{t}')
    for r, t in zip(regs, tmp): k(f'v_add_f32 v{r}, v{r}, v{t}')
    for r, t in zip(regs, tmp): k(f'v_mov_b32 v{t}, v{r}')
    for r, t in zip(regs, tmp): k(f'v_permlane32_swap_b32 v{r}, v{t}')
    for r, t in zip(regs, tmp): k(f'v_add_f32 v{r}, v{r}, v{t}')

LN_BASE = 122880
LN_PART = LN_BASE + 56 * 144
X_ = 16; Y_ = 24; XF = 36; YF = 52; T_ = 68

def ln_unpack(k, dst, src, n):
    for i in range(n):
        k(f'v_lshlrev_b32 v{dst+2*i}, 16, v{src+i}')
        k(f'v_and_b32 v{dst+2*i+1}, 0xffff0000, v{src+i}')

def ln_stats(k, buf):
    k(f'v_add_f32 v84, v{XF}, v{XF+1}')
    k(f'v_mul_f32 v85, v{XF}, v{XF}')
    k(f'v_add_f32 v86, v{XF+2}, v{XF+3}')
    k(f'v_mul_f32 v87, v{XF+1}, v{XF+1}')
    k(f'v_fmac_f32 v85, v{XF+2}, v{XF+2}')
    k(f'v_fmac_f32 v87, v{XF+3}, v{XF+3}')
    for i in range(4, 16, 2):
        k(f'v_add_f32 v84, v84, v{XF+i}')
        k(f'v_add_f32 v86, v86, v{XF+i+1}')
        k(f'v_fmac_f32 v85, v{XF+i}, v{XF+i}')
        k(f'v_fmac_f32 v87, v{XF+i+1}, v{XF+i+1}')
    k('v_add_f32 v84, v84, v86')
    k('v_add_f32 v85, v85, v87')
    wave_reduce8(k, [84, 85], [86, 87])
    k(f'v_cmp_gt_u32 vcc, 8, v{V_LANE}')
    k('s_and_saveexec_b64 s[40:41], vcc')
    k(f'ds_write_b64 v32, v[84:85] offset:{256*buf}')
    k('s_mov_b64 exec, s[40:41]')
    k('s_waitcnt lgkmcnt(0)')
    k('s_barrier')
    for w in range(4): k(f'ds_read_b64 v[{88+2*w}:{89+2*w}], v15 offset:{256*buf + 64*w}')

def ln_finish(k):
    k('v_add_f32 v88, v88, v90'); k('v_add_f32 v89, v89, v91')
    k('v_add_f32 v92, v92, v94'); k('v_add_f32 v93, v93, v95')
    k('v_add_f32 v88, v88, v92'); k('v_add_f32 v89, v89, v93')
    k('v_mul_f32 v84, 0x3b124925, v88')
    k('v_mul_f32 v85, 0x3b124925, v89')
    k('v_fma_f32 v85, -v84, v84, v85')
    k('v_max_f32 v85, 0, v85')
    k('v_add_f32 v85, 0x3727c5ac, v85')
    k('v_rsq_f32 v85, v85')
    k('v_mul_f32 v86, v84, v85')

def ln_addr(k):
    k(f'v_and_b32 v33, 7, v{V_LANE}')
    k(f'v_lshrrev_b32 v4, 3, v{V_LANE}')
    k(f's_mul_i32 s12, s{S_WAVE}, 14')
    k('v_add_u32 v5, s12, v4')
    k('s_lshr_b32 s13, s2, 2')
    k('s_mul_i32 s13, s13, 28672')
    k('s_and_b32 s14, s2, 3')
    k('s_lshl_b32 s14, s14, 7')
    k('s_add_u32 s13, s13, s14')
    k('v_lshlrev_b32 v6, 9, v5')
    k('v_lshl_add_u32 v6, v33, 4, v6')
    k('v_add_u32 v6, s13, v6')
    k('v_add_u32 v7, 4096, v6')
    k('v_mov_b32 v8, 0x80000000')
    k('v_cmp_gt_u32 vcc, 6, v4')
    k('v_cmp_gt_u32 s[38:39], 6, v4')
    k('v_cndmask_b32 v7, v8, v7, vcc')
    k('v_lshlrev_b32 v15, 3, v33')
    k(f'v_add_u32 v15, {LN_PART}, v15')
    k(f's_lshl_b32 s37, s{S_WAVE}, 6')
    k('v_add_u32 v32, s37, v15')

def ph_ln1_pre(k):
    ln_addr(k)
    k('v_lshlrev_b32 v11, 4, v0')
    k('v_add_u32 v12, 4096, v11')
    k('v_cmp_gt_u32 vcc, 192, v0')
    k('v_cndmask_b32 v12, v8, v12, vcc')
    k('v_lshrrev_b32 v13, 3, v0')
    k('v_add_u32 v13, v13, v0')
    k('v_lshlrev_b32 v13, 4, v13')
    k(f'v_add_u32 v13, {LN_BASE}, v13')
    k('v_mul_u32_u24 v14, 144, v5')
    k('v_lshl_add_u32 v14, v33, 1, v14')
    k(f'v_add_u32 v14, {LN_BASE}, v14')
    ln_unpack(k, XF, 232, 8)
    ln_stats(k, 0)
    k('s_waitcnt lgkmcnt(0)')
    ln_finish(k)
    for j in range(16): k(f'v_fma_f32 v{T_+j}, v{XF+j}, v85, -v86')

def ln_tail(k, sr_x, sr_xn, pf, tagp):
    c = Cap()
    for j in range(16): c(f'v_fmac_f32 v{XF+j}, v{T_+j}, v{YF+j}')
    for i in range(8): c(f'v_cvt_pk_bf16_f32 v{X_+i}, v{XF+2*i}, v{XF+2*i+1}')
    ln_unpack(c, XF, X_, 8)
    c((f'buffer_store_dwordx4 v[{X_}:{X_+3}], v6, s[{sr_x}:{sr_x+3}], 0 offen sc1', (tagp, 'x0')))
    c((f'buffer_store_dwordx4 v[{X_+4}:{X_+7}], v7, s[{sr_x}:{sr_x+3}], 0 offen sc1', (tagp, 'x1')))
    ln_stats(c, 1)
    c('s_waitcnt lgkmcnt(0)')
    ln_finish(c)
    for j in range(16): c(f'v_fma_f32 v{T_+j}, v{XF+j}, v85, -v86')
    for i in range(8): c(f'v_cvt_pk_bf16_f32 v{YF+i}, v{T_+2*i}, v{T_+2*i+1}')
    sprinkle(k, c.L, pf, None, skip_tail=8)
    emit_vm(k, f'buffer_store_dwordx4 v[{YF}:{YF+3}], v6, s[{sr_xn}:{sr_xn+3}], 0 offen sc1', (tagp, 'n0'))
    emit_vm(k, f'buffer_store_dwordx4 v[{YF+4}:{YF+7}], v7, s[{sr_xn}:{sr_xn+3}], 0 offen sc1', (tagp, 'n1'))

def ph_ln1(k, pf):
    srd(k, 32, P_WS, OFF_YT, SZ_ACT)
    k('s_mul_i32 s36, s2, 7168')
    k('buffer_load_dwordx4 v[24:27], v11, s[32:35], s36 offen sc1')
    k('buffer_load_dwordx4 v[28:31], v12, s[32:35], s36 offen sc1')
    srd(k, 16, P_WS, OFF_XN1, SZ_ACT); srd(k, 20, P_WS, OFF_X1, SZ_ACT); srd(k, 24, P_WS, OFF_YF, SZ_ACT)
    k('s_waitcnt vmcnt(0)')
    k('ds_write_b128 v13, v[24:27]')
    k('v_cmp_gt_u32 vcc, 192, v0')
    k('s_and_saveexec_b64 s[40:41], vcc')
    k('ds_write_b128 v13, v[28:31] offset:4608')
    k('s_mov_b64 exec, s[40:41]')
    k('s_waitcnt lgkmcnt(0)')
    k('s_barrier')
    mark(k, 'ln1:y in lds')
    for j in range(8): k(f'ds_read_u16 v{YF+j}, v14 offset:{16*j}')
    for j in range(8): k(f'ds_read_u16 v{YF+8+j}, v14 offset:{8*144 + 16*j}')
    k('s_waitcnt lgkmcnt(0)')
    for i in range(8): k(f'v_lshl_or_b32 v{Y_+i}, v{YF+2*i+1}, 16, v{YF+2*i}')
    for j in range(16): k(f'v_lshlrev_b32 v{YF+j}, 16, v{YF+j}')
    for j in range(8, 16): k(f'v_cndmask_b32 v{YF+j}, 0, v{YF+j}, s[38:39]')
    emit_vm(k, f'buffer_store_dwordx4 v[{Y_}:{Y_+3}], v6, s[24:27], 0 offen sc1', ('ln1', 'y0'))
    emit_vm(k, f'buffer_store_dwordx4 v[{Y_+4}:{Y_+7}], v7, s[24:27], 0 offen sc1', ('ln1', 'y1'))
    ln_tail(k, 20, 16, pf, 'ln1')

def ph_ln2_pre(k):
    ln_addr(k)
    srd(k, 24, P_WS, OFF_YF, SZ_ACT)
    k(f'buffer_load_dwordx4 v[{Y_}:{Y_+3}], v6, s[24:27], 0 offen sc1')
    k(f'buffer_load_dwordx4 v[{Y_+4}:{Y_+7}], v7, s[24:27], 0 offen sc1')
    srd(k, 16, P_WS, OFF_XN2, SZ_ACT); srd(k, 20, P_WS, OFF_X3, SZ_ACT); srd(k, 28, P_WS, OFF_X2, SZ_ACT)

def ph_ln2(k, pf):
    k(f'buffer_load_dwordx4 v[{X_}:{X_+3}], v6, s[28:31], 0 offen sc1')
    k(f'buffer_load_dwordx4 v[{X_+4}:{X_+7}], v7, s[28:31], 0 offen sc1')
    k('s_waitcnt vmcnt(2)')
    ln_unpack(k, YF, Y_, 8)
    k('s_waitcnt vmcnt(0)')
    mark(k, 'ln2:loaded')
    half = len(pf) // 3
    c = Cap()
    ln_unpack(c, XF, X_, 8)
    ln_stats(c, 0)
    c('s_waitcnt lgkmcnt(0)')
    ln_finish(c)
    for j in range(16): c(f'v_fma_f32 v{T_+j}, v{XF+j}, v85, -v86')
    sprinkle(k, c.L, pf[:half], None)
    ln_tail(k, 20, 16, pf[half:], 'ln2')

WD_LOC = [('a', 224 + 4*i) for i in range(8)] + [('v', 168 + 4*i) for i in range(20)] + \
         [('v', 112 + 4*i) for i in range(14)] + [('a', 4*i) for i in range(14)]
def rr(loc, n=4): return f'{loc[0]}[{loc[1]}:{loc[1]+n-1}]'

def wd_load(n):
    ks, ct = n >> 1, n & 1
    if ct == 0:
        pre = step_cur(20, 21, S_DOFF, 1024) if ks > 0 else []
        return pre + [f'buffer_load_dwordx4 {rr(WD_LOC[n])}, v{V_L16}, s[{SR_WD}:{SR_WD+3}], s20 offen sc1']
    return [f'buffer_load_dwordx4 {rr(WD_LOC[n])}, v{V_L16}, s[28:31], s20 offen sc1']

def ph_g1(k, layer):
    off_xn = OFF_XN1 if layer == 0 else OFF_XN2
    off_h = OFF_H1 if layer == 0 else OFF_H2
    l_s3 = L_S3 if layer == 0 else L_S6
    srd(k, 16, P_WS, off_xn, SZ_ACT)
    srd(k, 24, P_WS, off_h, SZ_H)
    k(f's_lshl_b32 s32, s{S_RB}, 2')
    k('s_mul_i32 s34, s32, 28672')
    k(f's_mul_i32 s36, s{S_WAVE}, 7168')
    k(f's_mul_i32 s35, s{S_WAVE}, 7')
    k(f's_add_u32 s35, s35, s{S_R1}')
    k('s_cmp_ge_u32 s35, 28')
    k('s_cselect_b32 s44, 28, 0')
    k('s_sub_u32 s35, s35, s44')
    k('s_lshl_b32 s35, s35, 10')
    k('s_add_u32 s34, s34, s35')
    ST = 112; ACC = 16; TF = 80; TM = 96
    lg = LG()
    def lds(ins, tag): k(ins); lg.add(tag)
    def tok_load(tt):
        for j in range(7):
            r = ST + 28 * (tt % 2) + 4 * j
            if j % 4 == 0: k(f's_add_u32 s37, s34, {tt*28672 + (j//4)*4096}')
            emit_vm(k, f'buffer_load_dwordx4 v[{r}:{r+3}], v{V_L16}, s[16:19], s37 offen offset:{(j%4)*1024} sc1', ('T', layer, tt, j))
    tok_load(0); tok_load(1)
    k(f'v_add_u32 v4, s36, v{V_L16}')
    k('v_add_u32 v5, 57344, v4')
    k(f'v_add_u32 v6, 57344, v{V_L16}')
    k(f's_lshl_b32 s31, s{S_FS}, 2')
    k(f's_add_u32 s31, s31, s{S_WAVE}')
    k('s_lshl_b32 s40, s31, 11')
    k(f's_lshl_b32 s33, s{S_RB}, 2')
    k(f's_add_u32 s33, s33, {l_s3}')
    k(f's_lshr_b32 s12, s{S_RT}, 1')
    k(f's_and_b32 s13, s{S_RT}, 1')
    k('s_lshl_b32 s14, s12, 2')
    k('s_add_u32 s56, s14, s13')
    k(f's_add_u32 s56, s56, {l_s3}')
    k('s_sub_u32 s57, 3, s13')
    k('s_add_u32 s57, s57, s14')
    k(f's_add_u32 s57, s57, {l_s3}')
    srd(k, 28, P_WS, OFF_WD + 112 * 1024, SZ_WD - 112 * 1024)
    k(f's_lshl_b32 s20, s{S_R2}, 10')
    k(f's_add_u32 s20, s20, s{S_DOFF}')
    k(f's_add_u32 s21, s{S_DOFF}, {28*1024}')
    def tok_write_one(tt, j):
        base = 'v4' if tt < 2 else 'v5'
        r = ST + 28 * (tt % 2) + 4 * j
        lds(f'ds_write_b128 {base}, v[{r}:{r+3}] offset:{(tt%2)*28672 + j*1024}', ('w', tt, j))
    def tok_read(step):
        tt, ks = divmod(step, 28)
        r = TF + 4 * (step % 4)
        base = f'v{V_L16}' if tt < 2 else 'v6'
        lds(f'ds_read_b128 v[{r}:{r+3}], {base} offset:{(tt%2)*28672 + ks*1024}', ('r', step))
    def epilogue(tt):
        g = ACC + 32 * (tt % 2); u = g + 16
        out = [f's_add_u32 s41, s32, {tt}', 's_mul_i32 s41, s41, 112*1024', 's_add_u32 s41, s41, s40']
        for s in range(2):
            b = 8 * s
            for i in range(8): out.append(f'v_mul_f32 v{TM+i}, 0xbfb8aa3b, v{g+b+i}')
            for i in range(8): out.append(f'v_exp_f32 v{TM+i}, v{TM+i}')
            for i in range(8): out.append(f'v_mul_f32 v{u+b+i}, v{g+b+i}, v{u+b+i}')
            for i in range(8): out.append(f'v_add_f32 v{TM+i}, 1.0, v{TM+i}')
            for i in range(8): out.append(f'v_rcp_f32 v{TM+i}, v{TM+i}')
            for i in range(8): out.append(f'v_mul_f32 v{u+b+i}, v{u+b+i}, v{TM+i}')
            o = TM + 8 + 4 * s
            for q in range(4): out.append(f'v_cvt_pk_bf16_f32 v{o+q}, v{u+b+2*q}, v{u+b+2*q+1}')
            out.append(f'buffer_store_dwordx4 v[{o}:{o+3}], v{V_L16}, s[24:27], s41 offen offset:{1024*s} sc1')
        return out
    k(vm.wait(('T', layer, 0, 6)))
    for j in range(7): tok_write_one(0, j)
    tok_load(2)
    k(lg.wait(('w', 0, 6)))
    k('s_barrier')
    mark(k, f'g1:{layer}:tok0')
    sched = {0: [(n, 2) for n in range(0, 14)], 1: [(n, 0) for n in range(14, 28)],
             2: [(n, 16) for n in range(28, 35)],
             3: [(n, 16) for n in range(35, 42)]}
    sched = {0: [(n, 2) for n in range(0, 14)], 1: [(n, 0) for n in range(14, 28)],
             2: [(n, 0) for n in range(28, 35)] + [(n, 17) for n in range(35, 40)],
             3: [(n, 0) for n in range(40, 42)] + [(n, (n - 42) // 2 + 1) for n in range(42, 56)]}
    PD = 3
    for st in range(PD): tok_read(st)
    for tt in range(4):
        g = ACC + 32 * (tt % 2); u = g + 16
        fill = epilogue(tt - 1) if tt > 0 else []
        nf = len(fill); fi = 0
        wq = list(sched[tt])
        for ks in range(28):
            step = 28 * tt + ks
            if tt == 0 and ('W', ks) in vm.l:
                k(vm.wait(('W', ks)))
            w = lg.wait(('r', step))
            if w: k(w)
            b = TF + 4 * (step % 4)
            cg = f'v[{g}:{g+15}]' if ks else '0'
            cu = f'v[{u}:{u+15}]' if ks else '0'
            k(f'v_mfma_f32_32x32x16_bf16 v[{g}:{g+15}], a[{8*ks}:{8*ks+3}], v[{b}:{b+3}], {cg}')
            if step + PD < 112:
                tok_read(step + PD)
            tgt = (nf * (2 * ks) + 51) // 52 if ks >= 1 else 0
            while fi < min(tgt, nf):
                emit_vm(k, fill[fi], ('H', layer, tt - 1)); fi += 1
            k(f'v_mfma_f32_32x32x16_bf16 v[{u}:{u+15}], a[{8*ks+4}:{8*ks+7}], v[{b}:{b+3}], {cu}')
            tgt = (nf * (2 * ks + 1) + 51) // 52 if ks >= 1 else 0
            while fi < min(tgt, nf):
                emit_vm(k, fill[fi], ('H', layer, tt - 1)); fi += 1
            if tt < 3 and 8 <= ks < 15:
                if ks == 8: k(vm.wait(('T', layer, tt + 1, 6)))
                tok_write_one(tt + 1, ks - 8)
            if ks == 16:
                if tt < 3:
                    w = lg.wait(('w', tt + 1, 6))
                    if w: k(w)
                if tt >= 2: k(vm.wait(('H', layer, tt - 2)))
                k('s_barrier')
                if tt >= 2:
                    k(f's_add_u32 s62, s33, {tt-2}')
                    signal(k, line_sreg=62)
                if tt == 0: tok_load(3)
            if wq and wq[0][1] <= ks and (ks % 2 == 0 or len(wq) > (28 - ks) // 2):
                n, _ = wq.pop(0)
                for ins in wd_load(n): emit_vm(k, ins, ('D', layer, n))
        while fi < nf:
            emit_vm(k, fill[fi], ('H', layer, tt - 1)); fi += 1
        while wq:
            n, _ = wq.pop(0)
            for ins in wd_load(n): emit_vm(k, ins, ('D', layer, n))
        mark(k, f'g1:{layer}:pass{tt}')
    for s in epilogue(3): emit_vm(k, s, ('H', layer, 3))
    mark(k, f'g1:{layer}:epi3')

G2_SCR = 0
def ph_g2(k, layer, pf):
    final = layer == 1
    l_s3 = L_S3 if layer == 0 else L_S6
    srd(k, 16, P_WS, OFF_H1 if layer == 0 else OFF_H2, SZ_H)
    srd(k, 24, P_WS, OFF_X1 if layer == 0 else OFF_X3, SZ_ACT)
    if final: srd(k, 36, P_OUT, 0, SZ_ACT)
    else: srd(k, 36, P_WS, OFF_X2, SZ_ACT)
    k(f's_lshr_b32 s12, s{S_RT}, 1')
    k(f's_and_b32 s13, s{S_RT}, 1')
    k('s_lshl_b32 s14, s12, 2')
    k('s_add_u32 s20, s14, s13')
    k('s_sub_u32 s21, 3, s13')
    k('s_add_u32 s21, s21, s14')
    k(f's_mul_i32 s31, s{S_WAVE}, 28*1024')
    k('s_mul_i32 s30, s20, 112*1024')
    k('s_add_u32 s30, s30, s31')
    k('s_mul_i32 s32, s21, 112*1024')
    k('s_add_u32 s32, s32, s31')
    ACC = 16
    def hloc(t, ks):
        if t == 0: return 56 + 4 * ks
        return (168 + 4 * ks) if ks < 14 else (56 + 4 * (ks - 14))
    k('s_mov_b32 s22, s30'); k('s_add_u32 s23, s30, 28*1024')
    k('s_mov_b32 s34, s32'); k('s_add_u32 s35, s32, 28*1024')
    k(f's_lshl_b32 s33, s{S_R2}, 10')
    k('s_add_u32 s30, s30, s33'); k('s_add_u32 s32, s32, s33')
    def hload(t, ks):
        cur, base, lim = (30, 22, 23) if t == 0 else (32, 34, 35)
        if ks > 0:
            for ins in step_cur(cur, lim, base, 1024): k(ins)
        r = hloc(t, ks)
        emit_vm(k, f'buffer_load_dwordx4 a[{r}:{r+3}], v{V_L16}, s[16:19], s{cur} offen sc1', ('HL', layer, t, ks))
    for ks in range(14): hload(0, ks)
    def mm(t, ks):
        r = hloc(t, ks)
        for ct in range(2):
            acc = ACC + 32 * t + 16 * ct
            c = f'v[{acc}:{acc+15}]' if ks else '0'
            k(f'v_mfma_f32_32x32x16_bf16 v[{acc}:{acc+15}], {rr(WD_LOC[2*ks+ct])}, a[{r}:{r+3}], {c}')
    k(f'v_and_b32 v4, 31, v{V_LANE}')
    k(f'v_lshrrev_b32 v5, 5, v{V_LANE}')
    k(f's_lshr_b32 s12, s{S_WAVE}, 1')
    k('s_cmp_eq_u32 s12, 0')
    k('s_cselect_b32 s14, s20, s21')
    k(f's_and_b32 s13, s{S_WAVE}, 1')
    k('s_mul_i32 s15, s14, 28672')
    k(f's_lshl_b32 s28, s{S_CTP}, 12')
    k('s_add_u32 s15, s15, s28')
    k('s_lshl_b32 s28, s13, 11')
    k('s_add_u32 s15, s15, s28')
    k('v_lshlrev_b32 v7, 9, v5')
    k('v_lshl_add_u32 v7, v4, 4, v7')
    k('v_add_u32 v7, s15, v7')
    for j in range(14):
        hload(0, 14 + j)
        k(vm.wait(('HL', layer, 0, j)))
        mm(0, j)
    wait(k, 14, line_sreg=57)
    mark(k, f'g2:{layer}:B ready')
    for j in range(14):
        hload(1, j)
        k(vm.wait(('HL', layer, 0, 14 + j)))
        mm(0, 14 + j)
    for j in range(14):
        hload(1, 14 + j)
        k(vm.wait(('HL', layer, 1, j)))
        mm(1, j)
    emit_vm(k, 'buffer_load_dwordx4 v[80:83], v7, s[24:27], 0 offen sc1', ('R', layer, 0))
    emit_vm(k, 'buffer_load_dwordx4 v[84:87], v7, s[24:27], 0 offen offset:1024 sc1', ('R', layer, 1))
    for ks in range(14, 28):
        k(vm.wait(('HL', layer, 1, ks)))
        mm(1, ks)
    mark(k, f'g2:{layer}:main')
    Lv = [label('x') for _ in range(4)]; Lx = label('xe')
    for w in range(4):
        if w < 3:
            k(f's_cmp_eq_u32 s{S_WAVE}, {w}')
            k(f's_cbranch_scc0 {Lv[w+1]}')
        k('s_nop 7'); k('s_nop 3')
        for ti in range(4):
            if ti == w: continue
            slot = (w - ti - 1) % 4
            acc = ACC + 32 * (ti >> 1) + 16 * (ti & 1)
            for rg in range(4):
                k(f'ds_write_b128 v{V_L16}, v[{acc+4*rg}:{acc+4*rg+3}] offset:{G2_SCR + ti*12288 + slot*4096 + rg*1024}')
        acc = ACC + 32 * (w >> 1) + 16 * (w & 1)
        for i in range(16): k(f'v_mov_b32 v{96+i}, v{acc+i}')
        k(f's_branch {Lx}')
        if w < 3: k(f'{Lv[w+1]}:')
    k(f'{Lx}:')
    k(f's_mul_i32 s12, s{S_WAVE}, 12288')
    k(f'v_add_u32 v8, s12, v{V_L16}')
    if final:
        k('s_mul_i32 s28, s14, 32*896')
        k(f's_lshl_b32 s29, s{S_CTP}, 7')
        k('s_add_u32 s28, s28, s29')
        k('s_lshl_b32 s29, s13, 6')
        k('s_add_u32 s28, s28, s29')
        k('v_mul_u32_u24 v9, 896, v4')
        k('v_lshl_add_u32 v9, v5, 4, v9')
        k('v_add_u32 v9, s28, v9')
    k('s_waitcnt lgkmcnt(0)')
    k('s_barrier')
    c = Cap()
    for sl in range(3):
        for rg in range(4):
            r = 16 + 16 * sl + 4 * rg
            c(f'ds_read_b128 v[{r}:{r+3}], v8 offset:{G2_SCR + sl*4096 + rg*1024}')
    c('s_waitcnt lgkmcnt(4)')
    for i in range(16): c(f'v_add_f32 v{16+i}, v{16+i}, v{32+i}')
    c('s_waitcnt lgkmcnt(0)')
    for i in range(16): c(f'v_add_f32 v{96+i}, v{96+i}, v{48+i}')
    for i in range(16): c(f'v_add_f32 v{96+i}, v{96+i}, v{16+i}')
    for p in range(2):
        for j in range(4):
            c(f'v_permlane32_swap_b32 v{96+8*p+j}, v{96+8*p+4+j}')
    sprinkle(k, c.L, pf, None)
    k(vm.wait(('R', layer, 1)))
    for p in range(2):
        rs = 80 + 4 * p
        for i in range(4):
            k(f'v_lshlrev_b32 v{88}, 16, v{rs+i}')
            k(f'v_and_b32 v{89}, 0xffff0000, v{rs+i}')
            k(f'v_add_f32 v{96+8*p+2*i}, v{96+8*p+2*i}, v88')
            k(f'v_add_f32 v{96+8*p+2*i+1}, v{96+8*p+2*i+1}, v89')
        o = 48 + 4 * p
        for i in range(4): k(f'v_cvt_pk_bf16_f32 v{o+i}, v{96+8*p+2*i}, v{96+8*p+2*i+1}')
        if final:
            emit_vm(k, f'buffer_store_dwordx4 v[{o}:{o+3}], v9, s[36:39], 0 offen offset:{32*p}', ('O', layer, p))
        else:
            emit_vm(k, f'buffer_store_dwordx4 v[{o}:{o+3}], v7, s[36:39], 0 offen offset:{1024*p} sc1', ('O', layer, p))

def build():
    MARKS.clear(); vm.l.clear(); _lab[0] = 0
    k = Kern(KNAME, vgprs=256, agprs=256, sgprs=102)
    ph_init(k)
    ph_p0(k)
    Lc = label('noconv')
    Lw = label('s0skip')
    k('s_cmp_ge_u32 s2, 224')
    k(f's_cbranch_scc1 {Lw}')
    k('s_waitcnt vmcnt(0)')
    mark(k, 'kv drained')
    init_check(k)
    k('s_barrier')
    signal(k, line_sreg=62)
    mark(k, 'S0 arrived')
    ph_p0_wdma(k)
    ph_conv_prep(k)
    mark(k, 'conv prep done')
    wait(k, 32, line_sreg=62)
    mark(k, 'S0 passed')
    ph_conv(k)
    k(f's_branch {Lc}')
    k(f'{Lw}:')
    ph_p0_wdma(k)
    ph_p0_wfinish(k)
    wait_init(k)
    k(f's_add_u32 s59, s{S_XCD}, {L_W}')
    arrive(k, line_sreg=59)
    k(f'{Lc}:')
    mark(k, 'conv done')
    k(f's_add_u32 s59, s{S_XCD}, {L_S1}')
    arrive(k, line_sreg=59)
    mark(k, 'S1 arrived')
    ph_ln1_pre(k)
    wait(k, 32, line=L_W, nlines=8)
    g1_wprefetch(k, 0, PF_A1)
    mark(k, 'ln1 pre done')
    wait(k, 32, line=L_S1, nlines=8)
    mark(k, 'S1 passed')
    ph_ln1(k, g1_pf_groups(PF_A1, PF_B1))
    k(f's_add_u32 s59, s{S_LNRB}, {L_S2}')
    arrive(k, line_sreg=59)
    mark(k, 'ln1 arrived')
    for layer in range(2):
        Lskip = label('gskip')
        if layer == 0:
            Lg = label('gemm')
            k(f's_cmp_lt_u32 s{S_I}, 28')
            k(f's_cbranch_scc1 {Lg}')
            k(f's_branch {Lskip}')
            k(f'{Lg}:')
        else:
            k(f's_cmp_ge_u32 s{S_I}, 28')
            k(f's_cbranch_scc1 {Lskip}')
        g1_wprefetch(k, PF_B1 if layer == 0 else PF_C2, 28)
        k(f's_add_u32 s59, s{S_RB}, {L_S2 if layer == 0 else L_S5}')
        wait(k, 16, line_sreg=59)
        mark(k, f'S(ln->g1){layer} passed')
        ph_g1(k, layer)
        k('s_waitcnt vmcnt(0)')
        wait(k, 14, line_sreg=56, barrier=False)
        k('s_barrier')
        k('s_add_u32 s59, s33, 2')
        signal(k, line_sreg=59, n=2)
        mark(k, f'g1:{layer} arrived')
        ph_g2(k, layer, g1_pf_groups(0, PF_A2) if layer == 0 else [])
        if layer == 0:
            k(f's_lshr_b32 s59, s{S_RT}, 1')
            k(f's_add_u32 s59, s59, {L_S4}')
            arrive(k, line_sreg=59)
            mark(k, 'S4 arrived')
            g1_wprefetch(k, PF_A2, PF_B2)
        mark(k, f'g2:{layer} done')
        k(f'{Lskip}:')
        if layer == 0:
            ph_ln2_pre(k)
            k(f's_add_u32 s59, s{S_LNRB}, {L_S4}')
            wait(k, 14, line_sreg=59)
            mark(k, 'S4 passed')
            ph_ln2(k, g1_pf_groups(PF_B2, PF_C2))
            k(f's_add_u32 s59, s{S_LNRB}, {L_S5}')
            arrive(k, line_sreg=59)
            mark(k, 'ln2 arrived')
    if PROF:
        k('s_waitcnt vmcnt(0)')
        mark(k, 'end')
        k('s_memrealtime s[96:97]')
        k('s_waitcnt lgkmcnt(0)')
        k(f'v_writelane_b32 v{VPROF}, s96, 63')
        srd(k, 56, P_WS, OFF_PROF, 0x100000)
        k('s_lshl_b32 s60, s2, 2')
        k(f's_add_u32 s60, s60, s{S_WAVE}')
        k('s_lshl_b32 s60, s60, 8')
        k(f'v_lshlrev_b32 v4, 2, v{V_LANE}')
        k(f'buffer_store_dword v{VPROF}, v4, s[56:59], s60 offen')
    k('L_end:')
    k('s_endpgm')
    hdr = open('interleave_layers__ssm_conv_h3__swiglu_ffn__prompt.s.ref').read().split('; Override launch')[0]
    out = [hdr.rstrip('\n')]
    out.append(f'; @launch grid=({NWG},1,1) block=(256,1,1) lds={LDS_BYTES}')
    out.append('.amdgcn_target "amdgcn-amd-amdhsa--gfx950"')
    out.append('.text')
    out.append(k.emit())
    out.append('.section .rodata,"a"')
    out.append('.p2align 6')
    out.append(k.desc())
    return '\n'.join(out) + '\n'

if __name__ == '__main__':
    if '--prof' in sys.argv: PROF = True
    txt = build()
    dst = sys.argv[1]
    open(dst, 'w').write(txt)
    if PROF:
        import json; json.dump(MARKS, open(dst + '.marks', 'w'))
    print('wrote', dst, len(txt), 'bytes', len(MARKS), 'marks')
```

```python
import sys
from asmlib import *

S = 2048; D = 448; F = 1792
SZ_ACT = 2048 * 448 * 2
OFF_XR = 0x0;       SZ_XR = 448 * 4096
OFF_YT = 0x200000
OFF_YF = 0x400000
OFF_X1 = 0x600000
OFF_XN1 = 0x800000
OFF_X2 = 0xA00000
OFF_X3 = 0xC00000
OFF_XN2 = 0xE00000
OFF_WGU = 0x1000000; SZ_WGU = 56 * 28 * 2 * 1024
OFF_WD = 0x1400000;  SZ_WD = 14 * 112 * 1024
OFF_H1 = 0x1600000;  SZ_H = 64 * 112 * 1024
OFF_H2 = 0x1E00000
OFF_SYNC = 0x2600000; SZ_SYNC = 256 * 128
OFF_PROF = 0x2800000
KNAME = 'interleave_layers__ssm_conv_h3__swiglu_ffn__prompt_kernel'
NWG = 256
LDS_BYTES = 160 * 1024
PROF = False
SPIN_MAX = 400000
L_S0, L_W, L_S1, L_S2, L_S3, L_S4, L_S5, L_S6 = 0, 8, 16, 24, 40, 104, 120, 136

P_Q, P_K, P_V, P_SH, P_SSK, P_SSD, P_BX, P_WG = 64, 66, 68, 70, 72, 74, 76, 78
P_WU, P_WD, P_OUT, P_DBG, P_WS = 80, 82, 84, 86, 88
SR_SYNC = 92
S_WAVE = 3
S_XCD, S_I = 90, 91
S_CH, S_PAR, S_CHB = 50, 51, 52
S_RB, S_FS, S_RT, S_CTP, S_LNRB = 53, 54, 55, 49, 63
SR_WGU = 4
SR_WD = 8
S_WOFF = 47
S_DOFF = 46
S_WCUR, S_WLIM = 100, 101
S_LAYER = 58
S_R1, S_R2 = 98, 99
VPROF = 255
V_LANE = 2
V_L16 = 3

PF_A, PF_B, PF_A2 = 10, 18, 6
PF_A1 = PF_A
PF_XX = 0,0
PF_A2, PF_B2, PF_C2 = 6, 12, 20

class VM:
    def __init__(self): self.l = []
    def add(self, tag): self.l.append(tag)
    def wait(self, tag):
        idx = len(self.l) - 1 - self.l[::-1].index(tag)
        return f's_waitcnt vmcnt({min(len(self.l) - 1 - idx, 63)})'
vm = VM()

class LG:
    def __init__(self): self.l = []
    def add(self, tag): self.l.append(tag)
    def wait(self, tag):
        if tag not in self.l: return None
        idx = len(self.l) - 1 - self.l[::-1].index(tag)
        n = min(len(self.l) - 1 - idx, 15)
        self.l = self.l[len(self.l) - n:] if n else []
        return f's_waitcnt lgkmcnt({n})'

def srd(k, d, p, off, size):
    if off:
        k(f's_add_u32 s{d}, s{p}, {off:#x}')
        k(f's_addc_u32 s{d+1}, s{p+1}, 0')
    else:
        k(f's_mov_b32 s{d}, s{p}')
        k(f's_mov_b32 s{d+1}, s{p+1}')
    k(f's_mov_b32 s{d+2}, {size:#x}')
    k(f's_mov_b32 s{d+3}, 0x20000')

def srd_soff(k, d, p, off, soff, size):
    k(f's_add_u32 s{d}, s{p}, {off:#x}')
    k(f's_addc_u32 s{d+1}, s{p+1}, 0')
    k(f's_add_u32 s{d}, s{d}, s{soff}')
    k(f's_addc_u32 s{d+1}, s{d+1}, 0')
    k(f's_mov_b32 s{d+2}, {size:#x}')
    k(f's_mov_b32 s{d+3}, 0x20000')

def udiv(k, dst, src, d):
    m = (2**32 + d - 1) // d
    k(f's_mul_hi_u32 s{dst}, s{src}, {m:#x}')

MARKS = []
def mark(k, name):
    if not PROF: return
    i = len(MARKS); MARKS.append(name)
    k('s_memrealtime s[96:97]')
    k('s_waitcnt lgkmcnt(0)')
    k(f'v_writelane_b32 v{VPROF}, s96, {i}')

LOOPMARKS = []
def lmark(k, name):
    if not PROF: return
    i = len(LOOPMARKS); LOOPMARKS.append(name)
    assert i < 16
    k('s_memrealtime s[96:97]')
    k(f's_lshl_b32 s97, s{S_LAYER}, 4') if False else None
    k('s_waitcnt lgkmcnt(0)')
    k(f's_lshl_b32 s97, s{S_LAYER}, 4')
    k(f's_add_u32 m0, s97, {24 + i}')
    k('s_nop 0')
    k(f'v_writelane_b32 v{VPROF}, s96, m0')

_lab = [0]
def label(p):
    _lab[0] += 1
    return f'L_{p}_{_lab[0]}'

def signal(k, line_sreg=None, line=None, n=1):
    L = label('sig')
    k(f's_cmp_lg_u32 s{S_WAVE}, 0')
    k(f's_cbranch_scc1 {L}')
    k(f'v_lshlrev_b32 v250, 7, v{V_LANE}')
    if line_sreg is not None:
        k(f's_lshl_b32 s60, s{line_sreg}, 7')
        k('v_add_u32 v250, s60, v250')
    else:
        k(f'v_add_u32 v250, {line*128}, v250')
    k('v_mov_b32 v251, 1')
    k(f's_mov_b64 exec, {(1 << n) - 1}')
    k(f'buffer_atomic_add v251, v250, s[{SR_SYNC}:{SR_SYNC+3}], 0 offen sc1')
    k('s_mov_b64 exec, -1')
    k(f'{L}:')

def arrive(k, line_sreg=None, line=None, vmwait='s_waitcnt vmcnt(0)', n=1):
    k(vmwait)
    k('s_waitcnt lgkmcnt(0)')
    k('s_barrier')
    signal(k, line_sreg, line, n)

def wait(k, target, line_sreg=None, line=None, nlines=1, barrier=True):
    L = label('wt'); Lp = label('pl'); Ld = label('pd')
    k(f's_cmp_lg_u32 s{S_WAVE}, 0')
    k(f's_cbranch_scc1 {L}')
    k(f'v_lshlrev_b32 v250, 7, v{V_LANE}')
    if line_sreg is not None:
        k(f's_lshl_b32 s60, s{line_sreg}, 7')
        k('v_add_u32 v250, s60, v250')
    else:
        k(f'v_add_u32 v250, {line*128}, v250')
    k(f's_mov_b64 exec, {(1 << nlines) - 1}')
    k('s_mov_b32 s61, 0')
    k(f'{Lp}:')
    k(f'buffer_load_dword v251, v250, s[{SR_SYNC}:{SR_SYNC+3}], 0 offen sc1')
    k('s_add_u32 s61, s61, 1')
    k('s_waitcnt vmcnt(0)')
    k(f'v_cmp_le_u32 vcc, {target}, v251')
    k(f's_cmp_ge_u32 s61, {SPIN_MAX}')
    k(f's_cbranch_scc1 {Ld}')
    k('s_cmp_eq_u64 vcc, exec')
    k(f's_cbranch_scc0 {Lp}')
    k(f'{Ld}:')
    k('s_mov_b64 exec, -1')
    k(f'{L}:')
    if barrier: k('s_barrier')

def init_issue(k):
    L = label('ii')
    k(f's_cmp_lg_u32 s{S_WAVE}, 0')
    k(f's_cbranch_scc1 {L}')
    srd(k, 56, P_DBG, 0, 256)
    k('v_mov_b32 v248, 0')
    k('buffer_load_dword v249, v248, s[56:59], 0 offen sc1')
    k(f'{L}:')

def init_check(k):
    L = label('ic'); Lp = label('icp')
    k(f's_cmp_lg_u32 s{S_WAVE}, 0')
    k(f's_cbranch_scc1 {L}')
    k('v_readfirstlane_b32 s61, v249')
    k('s_cmp_lg_u32 s61, 0')
    k(f's_cbranch_scc1 {L}')
    wait_init(k)
    k(f'{L}:')

def wait_init(k):
    L = label('wi'); Lp = label('wip'); Ld = label('wid')
    k(f's_cmp_lg_u32 s{S_WAVE}, 0')
    k(f's_cbranch_scc1 {L}')
    srd(k, 56, P_DBG, 0, 256)
    k('v_mov_b32 v250, 0')
    k('s_mov_b64 exec, 1')
    k('s_mov_b32 s61, 0')
    k(f'{Lp}:')
    k('buffer_load_dword v251, v250, s[56:59], 0 offen sc1')
    k('s_add_u32 s61, s61, 1')
    k('s_waitcnt vmcnt(0)')
    k('v_cmp_ne_u32 vcc, 0, v251')
    k(f's_cmp_ge_u32 s61, {SPIN_MAX}')
    k(f's_cbranch_scc1 {Ld}')
    k('s_cmp_eq_u64 vcc, exec')
    k(f's_cbranch_scc0 {Lp}')
    k(f'{Ld}:')
    k('s_mov_b64 exec, -1')
    k(f'{L}:')

def ph_init(k):
    k(f's_cmp_ge_u32 s2, {NWG}')
    k('s_cbranch_scc1 L_end')
    k('s_load_dwordx16 s[64:79], s[0:1], 0')
    k('s_load_dwordx8 s[80:87], s[0:1], 64')
    k('s_load_dwordx2 s[88:89], s[0:1], 96')
    k('v_lshrrev_b32 v1, 6, v0')
    k(f'v_and_b32 v{V_LANE}, 63, v0')
    k(f'v_readfirstlane_b32 s{S_WAVE}, v1')
    k(f'v_lshlrev_b32 v{V_L16}, 4, v{V_LANE}')
    k(f's_and_b32 s{S_XCD}, s2, 7')
    k(f's_lshr_b32 s{S_I}, s2, 3')
    if PROF: k(f'v_mov_b32 v{VPROF}, 0')
    udiv(k, 15, S_I, 7)
    k('s_mul_i32 s28, s15, 7')
    k(f's_sub_u32 s{S_CTP}, s{S_I}, s28')
    k(f's_lshr_b32 s29, s{S_XCD}, 1')
    k('s_lshl_b32 s29, s29, 2')
    k(f's_add_u32 s{S_RB}, s29, s15')
    k(f's_and_b32 s30, s{S_XCD}, 1')
    k('s_mul_i32 s30, s30, 7')
    k(f's_add_u32 s{S_FS}, s30, s{S_CTP}')
    k(f's_lshl_b32 s29, s{S_XCD}, 2')
    k(f's_add_u32 s{S_RT}, s29, s15')
    k(f's_lshr_b32 s{S_LNRB}, s2, 4')
    k(f's_lshl_b32 s31, s{S_FS}, 2')
    k(f's_add_u32 s31, s31, s{S_WAVE}')
    k(f's_mul_i32 s{S_WOFF}, s31, 57344')
    k(f's_mul_i32 s{S_DOFF}, s{S_CTP}, 224*1024')
    k(f's_mul_i32 s31, s{S_WAVE}, 28*1024')
    k(f's_add_u32 s{S_DOFF}, s{S_DOFF}, s31')
    k(f's_and_b32 s{S_R1}, s{S_RB}, 3')
    k(f's_mul_i32 s{S_R1}, s{S_R1}, 7')
    k(f's_and_b32 s31, s{S_RT}, 3')
    k('s_mul_i32 s31, s31, 7')
    k(f's_lshl_b32 s{S_R2}, s{S_CTP}, 2')
    k(f's_add_u32 s{S_R2}, s{S_R2}, s31')
    k(f's_cmp_ge_u32 s{S_R2}, 28')
    k(f's_cselect_b32 s31, 28, 0')
    k(f's_sub_u32 s{S_R2}, s{S_R2}, s31')
    k('s_waitcnt lgkmcnt(0)')
    srd(k, SR_SYNC, P_WS, OFF_SYNC, SZ_SYNC)
    srd(k, SR_WGU, P_WS, OFF_WGU, SZ_WGU)
    srd(k, SR_WD, P_WS, OFF_WD, SZ_WD)
    mark(k, 'start')
    if PROF:
        k('s_memrealtime s[96:97]')
        k('s_waitcnt lgkmcnt(0)')
        k(f'v_writelane_b32 v{VPROF}, s96, 62')
    Lt = label('tlb')
    k(f's_cmp_lg_u32 s{S_WAVE}, 1')
    k(f's_cbranch_scc1 {Lt}')
    srd(k, 16, P_WS, 0, 0x2800000)
    srd(k, 20, P_OUT, 0, SZ_ACT)
    k(f'v_lshlrev_b32 v4, 21, v{V_LANE}')
    k('v_add_u32 v4, 0x1fff80, v4')
    k('v_mov_b32 v5, 0')
    k('s_mov_b64 exec, 0xfffff')
    k('buffer_load_dword v246, v4, s[16:19], 0 offen sc1')
    k('s_mov_b64 exec, 1')
    k('buffer_load_dword v247, v5, s[20:23], 0 offen sc1')
    k('s_mov_b64 exec, -1')
    k(f'{Lt}:')
    L = label('ini')
    k('s_cmp_lg_u32 s2, 255')
    k(f's_cbranch_scc1 {L}')
    k(f's_cmp_lg_u32 s{S_WAVE}, 3')
    k(f's_cbranch_scc1 {L}')
    for i in range(4): k(f'v_mov_b32 v{8+i}, 0')
    for i in range(3):
        k(f'buffer_store_dwordx4 v[8:11], v{V_L16}, s[{SR_SYNC}:{SR_SYNC+3}], 0 offen offset:{1024*i} sc1')
    srd(k, 56, P_DBG, 0, 256)
    k('s_waitcnt vmcnt(0)')
    k('v_mov_b32 v4, 0')
    k('v_mov_b32 v5, 1')
    k('s_mov_b64 exec, 1')
    k('buffer_store_dword v5, v4, s[56:59], 0 offen sc1')
    k('s_mov_b64 exec, -1')
    k('s_movk_i32 s12, 3072')
    for i in range(29):
        k(f'buffer_store_dwordx4 v[8:11], v{V_L16}, s[{SR_SYNC}:{SR_SYNC+3}], s12 offen sc1')
        if i < 28: k('s_add_u32 s12, s12, 1024')
    k(f'{L}:')

CH_STRIDE = 37888
XRL_OFF = 33280
CONV_SCR = 2 * CH_STRIDE
YB_SCR = 92160
WST_OFF = 100352

def p0_weight_dma(k, rnd):
    fl = 34 + rnd; ds = 40 + rnd
    if rnd < 3:
        if rnd: k(f's_add_u32 s12, s48, {1024*rnd}')
        else: k('s_mov_b32 s12, s48')
        kind = 'gu'
    elif rnd == 3:
        k('s_mov_b32 s12, s48'); kind = 'wd'
    Lskip = None
    if rnd == 4:
        Lgu = label('w4g'); Lskip = label('w4s'); Ldone = label('w4d')
        k(f's_mov_b32 s{fl}, 2')
        k('s_cmp_ge_u32 s48, 608')
        k(f's_cbranch_scc1 {Lskip}')
        k('s_cmp_ge_u32 s48, 544')
        k(f's_cbranch_scc1 {Lgu}')
        k('s_add_u32 s12, s48, 1024')
        _w_dma(k, 'wd', rnd, fl, ds)
        k(f's_branch {Ldone}')
        k(f'{Lgu}:')
        k('s_add_u32 s12, s48, 3072-544')
        _w_dma(k, 'gu', rnd, fl, ds)
        k(f's_branch {Ldone}')
        k(f'{Lskip}:')
        k(f's_mul_i32 s13, s{S_WAVE}, 5120')
        k(f's_add_u32 s13, s13, {WST_OFF + 1024*rnd}')
        k('s_mov_b32 m0, s13')
        srd(k, 16, P_WD, 0, 0)
        k('buffer_load_dwordx4 v61, s[16:19], 0 offen lds')
        k(f'{Ldone}:')
    else:
        _w_dma(k, kind, rnd, fl, ds)

def _w_dma(k, kind, rnd, fl, ds):
    k(f's_mul_i32 s13, s{S_WAVE}, 5120')
    k(f's_add_u32 s13, s13, {WST_OFF + 1024*rnd}')
    k('s_mov_b32 m0, s13')
    if kind == 'gu':
        udiv(k, 14, 12, 56)
        k('s_mul_i32 s15, s14, 56')
        k('s_sub_u32 s15, s12, s15')
        k('s_lshr_b32 s28, s15, 1')
        k('s_mul_i32 s28, s28, 16*3584')
        k('s_lshl_b32 s29, s14, 6')
        k('s_add_u32 s28, s28, s29')
        k('s_and_b32 s15, s15, 1')
        k('s_cmp_eq_u32 s15, 0')
        k(f's_cselect_b32 s16, s{P_WG}, s{P_WU}')
        k(f's_cselect_b32 s17, s{P_WG+1}, s{P_WU+1}')
        k(f's_mov_b32 s18, {448*1792*2:#x}')
        k('s_mov_b32 s19, 0x20000')
        k('buffer_load_dwordx4 v60, s[16:19], s28 offen lds')
        k(f's_lshl_b32 s{ds}, s12, 10')
        k(f's_mov_b32 s{fl}, 0')
    else:
        udiv(k, 14, 12, 112)
        k('s_mul_i32 s15, s14, 112')
        k('s_sub_u32 s15, s12, s15')
        k('s_mul_i32 s28, s15, 16*896')
        k('s_lshl_b32 s29, s14, 6')
        k('s_add_u32 s28, s28, s29')
        srd(k, 16, P_WD, 0, 1792 * 448 * 2)
        k('buffer_load_dwordx4 v61, s[16:19], s28 offen lds')
        k(f's_lshl_b32 s{ds}, s12, 10')
        k(f's_mov_b32 s{fl}, 1')

def ph_p0(k):
    k('s_lshl_b32 s48, s2, 2')
    k(f's_add_u32 s48, s48, s{S_WAVE}')
    Lnokv = label('nokv')
    ln_addr(k)
    srd(k, 28, P_Q, 0, SZ_ACT)
    k('s_mul_i32 s15, s2, 8*896')
    k('v_mul_u32_u24 v9, 896, v33')
    k('v_lshl_add_u32 v9, v5, 4, v9')
    k('v_add_u32 v9, s15, v9')
    k('v_add_u32 v10, 128, v9')
    k('v_cndmask_b32 v10, v8, v10, s[38:39]')
    k('s_cmp_ge_u32 s2, 224')
    k(f's_cbranch_scc1 {Lnokv}')
    udiv(k, 12, 2, 7)
    k('s_mul_i32 s13, s12, 7')
    k('s_sub_u32 s13, s2, s13')
    k('s_mov_b32 s62, s13')
    k(f'v_and_b32 v40, 7, v{V_LANE}')
    k(f'v_lshrrev_b32 v1, 3, v{V_LANE}')
    k(f's_lshl_b32 s14, s{S_WAVE}, 5')
    k('s_lshl_b32 s15, s13, 7')
    k('s_add_u32 s14, s14, s15')
    k('v_lshl_add_u32 v41, v1, 2, s14')
    k('s_mul_i32 s15, s12, 64*896')
    k('v_mul_u32_u24 v42, 8*896, v40')
    k('v_add3_u32 v42, v42, v41, s15')
    k('v_add_u32 v43, 5*896, v42')
    k('v_subrev_u32 v44, 3*896, v42')
    k('v_lshlrev_b32 v45, 2, v41')
    srd(k, 16, P_K, 0, SZ_ACT); srd(k, 20, P_V, 0, SZ_ACT); srd(k, 24, P_SH, 0, 448 * 8)
    K0 = 16; V0 = 48
    for j in range(3): k(f'buffer_load_dword v{K0+j}, v44, s[16:19], 0 offen offset:{896*j}')
    for j in range(5): k(f'buffer_load_dword v{K0+3+j}, v42, s[16:19], 0 offen offset:{896*j}')
    for j in range(3): k(f'buffer_load_dword v{K0+8+j}, v43, s[16:19], 0 offen offset:{896*j}')
    for j in range(5): k(f'buffer_load_dword v{V0+j}, v42, s[20:23], 0 offen offset:{896*j}')
    for j in range(3): k(f'buffer_load_dword v{V0+5+j}, v43, s[20:23], 0 offen offset:{896*j}')
    k('buffer_load_dwordx4 v[36:39], v45, s[24:27], 0 offen')
    k('s_lshl_b32 s13, s13, 6')
    k('s_lshl_b32 s14, s12, 1')
    k('s_add_u32 s13, s13, s14')
    k(f's_lshr_b32 s14, s{S_WAVE}, 1')
    k(f's_and_b32 s{S_PAR}, s{S_WAVE}, 1')
    k(f's_add_u32 s{S_CH}, s13, s14')
    k(f's_mul_i32 s{S_CHB}, s14, {CH_STRIDE}')
    k(f's_lshl_b32 s16, s{S_CH}, 12')
    srd_soff(k, 20, P_SSK, 0, 16, 4096)
    k(f's_lshl_b32 s17, s{S_PAR}, 11')
    k(f'v_add_u32 v92, s17, v{V_L16}')
    k('v_subrev_u32 v93, 16, v92')
    for r in range(2):
        k(f'buffer_load_dwordx4 v[{96+8*r}:{99+8*r}], v93, s[20:23], 0 offen offset:{1024*r}')
        k(f'buffer_load_dwordx4 v[{100+8*r}:{103+8*r}], v92, s[20:23], 0 offen offset:{1024*r}')
    k('buffer_load_dwordx4 v[232:235], v9, s[28:31], 0 offen')
    k('buffer_load_dwordx4 v[236:239], v10, s[28:31], 0 offen')
    k('v_lshlrev_b32 v46, 11, v41')
    k('s_lshl_b32 s32, s12, 7')
    k('v_lshlrev_b32 v47, 4, v40')
    k('v_add_u32 v47, s32, v47')
    k('v_sub_u32 v47, 4080, v47')
    k('v_add_u32 v47, v46, v47')
    srd(k, 28, P_WS, OFF_XR, SZ_XR)
    k('s_movk_i32 s33, 4096')
    mark(k, 'p0 issued')
    k('s_waitcnt vmcnt(6)')
    SK = 56
    for c in range(2):
        k(f'v_lshlrev_b32 v{SK+4*c+0}, 16, v{36+2*c}')
        k(f'v_and_b32 v{SK+4*c+1}, 0xffff0000, v{36+2*c}')
        k(f'v_lshlrev_b32 v{SK+4*c+2}, 16, v{37+2*c}')
        k(f'v_and_b32 v{SK+4*c+3}, 0xffff0000, v{37+2*c}')
    KF = 64
    for c in range(2):
        for j in range(11):
            if c == 0: k(f'v_lshlrev_b32 v{KF+j}, 16, v{K0+j}')
            else: k(f'v_and_b32 v{KF+j}, 0xffff0000, v{K0+j}')
        for t in range(8):
            if c == 0: k(f'v_lshlrev_b32 v{112+t}, 16, v{V0+t}')
            else: k(f'v_and_b32 v{112+t}, 0xffff0000, v{V0+t}')
        for t in range(8): k(f'v_mul_f32 v{76+t}, v{SK+4*c+3}, v{KF+t}')
        for t in range(8): k(f'v_fmac_f32 v{76+t}, v{SK+4*c+2}, v{KF+t+1}')
        for t in range(8): k(f'v_fmac_f32 v{76+t}, v{SK+4*c+1}, v{KF+t+2}')
        for t in range(8): k(f'v_fmac_f32 v{76+t}, v{SK+4*c+0}, v{KF+t+3}')
        for t in range(8): k(f'v_mul_f32 v{76+t}, v{76+t}, v{112+t}')
        o = 84 + 4 * c
        for i in range(4):
            k(f'v_cvt_pk_bf16_f32 v{o+i}, v{76+7-2*i}, v{76+6-2*i}')
        if c == 0: k(f'buffer_store_dwordx4 v[{o}:{o+3}], v47, s[28:31], 0 offen sc1')
        else: k(f'buffer_store_dwordx4 v[{o}:{o+3}], v47, s[28:31], s33 offen sc1')
    mark(k, 'kv stored')
    init_issue(k)
    Lj = label('p0j')
    k(f's_branch {Lj}')
    k(f'{Lnokv}:')
    k('buffer_load_dwordx4 v[232:235], v9, s[28:31], 0 offen')
    k('buffer_load_dwordx4 v[236:239], v10, s[28:31], 0 offen')
    k(f'{Lj}:')

def ph_p0_wdma(k):
    k(f'v_lshrrev_b32 v62, 2, v{V_LANE}')
    k(f'v_and_b32 v63, 3, v{V_LANE}')
    k('v_lshlrev_b32 v63, 4, v63')
    k('v_mul_u32_u24 v60, 3584, v62')
    k('v_add_u32 v60, v60, v63')
    k('v_mul_u32_u24 v61, 896, v62')
    k('v_add_u32 v61, v61, v63')
    for rnd in range(5): p0_weight_dma(k, rnd)
    mark(k, 'p0 dma issued')

def ph_p0_wfinish(k):
    k('s_waitcnt vmcnt(0)')
    k(f'v_and_b32 v62, 15, v{V_LANE}')
    k(f'v_lshrrev_b32 v63, 4, v{V_LANE}')
    k('v_lshrrev_b32 v64, 2, v62')
    k('v_and_b32 v65, 3, v62')
    k('v_lshlrev_b32 v65, 3, v65')
    k('v_and_b32 v66, 1, v63')
    k('v_lshl_add_u32 v65, v66, 5, v65')
    k('v_lshl_add_u32 v65, v64, 6, v65')
    k('v_lshrrev_b32 v63, 1, v63')
    k(f's_mul_i32 s13, s{S_WAVE}, 5120')
    k(f's_add_u32 s13, s13, {WST_OFF}')
    k('v_add_u32 v65, s13, v65')
    k('v_lshl_add_u32 v66, v63, 9, v65')
    k('v_lshl_add_u32 v67, v63, 8, v65')
    for rnd in range(5):
        fl = 34 + rnd
        o = 112 + 4 * rnd
        Lwd = label('trw'); Le = label('tre')
        if rnd < 3:
            k(f'ds_read_b64_tr_b16 v[{o}:{o+1}], v66 offset:{1024*rnd}')
            k(f'ds_read_b64_tr_b16 v[{o+2}:{o+3}], v66 offset:{1024*rnd + 256}')
        elif rnd == 3:
            k(f'ds_read_b64_tr_b16 v[{o}:{o+1}], v67 offset:{1024*rnd}')
            k(f'ds_read_b64_tr_b16 v[{o+2}:{o+3}], v67 offset:{1024*rnd + 512}')
        else:
            k(f's_cmp_eq_u32 s{fl}, 1')
            k(f's_cbranch_scc1 {Lwd}')
            k(f'ds_read_b64_tr_b16 v[{o}:{o+1}], v66 offset:{1024*rnd}')
            k(f'ds_read_b64_tr_b16 v[{o+2}:{o+3}], v66 offset:{1024*rnd + 256}')
            k(f's_branch {Le}')
            k(f'{Lwd}:')
            k(f'ds_read_b64_tr_b16 v[{o}:{o+1}], v67 offset:{1024*rnd}')
            k(f'ds_read_b64_tr_b16 v[{o+2}:{o+3}], v67 offset:{1024*rnd + 512}')
            k(f'{Le}:')
    k('s_waitcnt lgkmcnt(0)')
    for rnd in range(4):
        o = 112 + 4 * rnd
        sr = SR_WGU if rnd < 3 else SR_WD
        k(f'buffer_store_dwordx4 v[{o}:{o+3}], v{V_L16}, s[{sr}:{sr+3}], s{40+rnd} offen sc1')
    Lwd = label('stw'); Le = label('ste')
    k('s_cmp_eq_u32 s38, 2')
    k(f's_cbranch_scc1 {Le}')
    k('s_cmp_eq_u32 s38, 1')
    k(f's_cbranch_scc1 {Lwd}')
    k(f'buffer_store_dwordx4 v[128:131], v{V_L16}, s[{SR_WGU}:{SR_WGU+3}], s44 offen sc1')
    k(f's_branch {Le}')
    k(f'{Lwd}:')
    k(f'buffer_store_dwordx4 v[128:131], v{V_L16}, s[{SR_WD}:{SR_WD+3}], s44 offen sc1')
    k(f'{Le}:')
    mark(k, 'w stored')

def ph_conv_prep(k):
    k(f'v_add_u32 v6, s{S_CHB}, v92')
    k('v_add_u32 v6, 16, v6')
    for i in range(4): k(f'v_mov_b32 v{8+i}, 0')
    La = label('cz'); Lb = label('cz')
    k(f's_cmp_eq_u32 s{S_PAR}, 0')
    k(f's_cbranch_scc0 {La}')
    k(f'v_mul_u32_u24 v7, 4160, v{V_LANE}')
    k(f'v_add_u32 v7, s{S_CHB}, v7')
    k(f'v_cmp_gt_u32 vcc, 8, v{V_LANE}')
    k('s_and_saveexec_b64 s[30:31], vcc')
    k('ds_write_b128 v7, v[8:11]')
    k('s_mov_b64 exec, s[30:31]')
    k(f's_branch {Lb}')
    k(f'{La}:')
    k(f'v_add_u32 v7, s{S_CHB}, v{V_L16}')
    k(f'v_add_u32 v7, {XRL_OFF + 4096}, v7')
    k(f'v_cmp_gt_u32 vcc, 30, v{V_LANE}')
    k('s_and_saveexec_b64 s[30:31], vcc')
    k('ds_write_b128 v7, v[8:11]')
    k('s_mov_b64 exec, s[30:31]')
    k(f'{Lb}:')
    for r in range(2):
        W = 96 + 8 * r
        for c in range(8):
            s = c + 1
            T = 16 + 4 * (c % 4) + 16 * r
            if s % 2 == 1:
                kk = (s - 1) // 2
                for i in range(4): k(f'v_alignbit_b32 v{T+i}, v{W+kk+i+1}, v{W+kk+i}, 16')
                src = T
            else:
                kk = s // 2
                if kk % 2 == 0: src = W + kk
                else:
                    for i in range(4): k(f'v_mov_b32 v{T+i}, v{W+kk+i}')
                    src = T
            k(f'ds_write_b128 v6, v[{src}:{src+3}] offset:{c*4160 + 1024*r}')

def g1_wload(k, ks):
    out = []
    if ks % 2 == 0: out.append(f's_add_u32 s45, s{S_WOFF}, {ks*2048}')
    o = (ks % 2) * 2048
    out.append(f'buffer_load_dwordx4 a[{8*ks}:{8*ks+3}], v{V_L16}, s[{SR_WGU}:{SR_WGU+3}], s45 offen offset:{o} sc1')
    out.append(f'buffer_load_dwordx4 a[{8*ks+4}:{8*ks+7}], v{V_L16}, s[{SR_WGU}:{SR_WGU+3}], s45 offen offset:{o+1024} sc1')
    return out

class Cap:
    def __init__(self): self.L = []
    def __call__(self, x): self.L.append(x)

def sprinkle(k, lines, fillers, tagf, skip_head=0, skip_tail=0):
    n = len(lines) - skip_head - skip_tail
    fi = 0; nf = len(fillers)
    masked = False
    for i, ln in enumerate(lines):
        if isinstance(ln, tuple): emit_vm(k, ln[0], ln[1])
        else:
            k(ln)
            if 'saveexec' in ln: masked = True
            if ln.startswith('s_mov_b64 exec'): masked = False
        j = i - skip_head + 1
        if j > 0 and n > 0 and not masked:
            tgt = min(nf, (nf * j + n - 1) // n)
            while fi < tgt:
                for ins in fillers[fi][0]: emit_vm(k, ins, fillers[fi][1])
                fi += 1
    while fi < nf:
        for ins in fillers[fi][0]: emit_vm(k, ins, fillers[fi][1])
        fi += 1

def step_cur(cur, lim, base, stride):
    return [f's_add_u32 s{cur}, s{cur}, {stride}', f's_cmp_eq_u32 s{cur}, s{lim}', f's_cselect_b32 s{cur}, s{base}, s{cur}']

def g1_pf_reset():
    return [f's_lshl_b32 s{S_WCUR}, s{S_R1}, 11', f's_add_u32 s{S_WCUR}, s{S_WCUR}, s{S_WOFF}', f's_add_u32 s{S_WLIM}, s{S_WOFF}, {28*2048}']

def g1_pf_groups(ks0, ks1):
    out = []
    for ks in range(ks0, ks1):
        pre = g1_pf_reset() if ks == 0 else step_cur(S_WCUR, S_WLIM, S_WOFF, 2048)
        out.append((pre + [f'buffer_load_dwordx4 a[{8*ks}:{8*ks+3}], v{V_L16}, s[{SR_WGU}:{SR_WGU+3}], s{S_WCUR} offen sc1'], ('W', ks)))
        out.append(([f'buffer_load_dwordx4 a[{8*ks+4}:{8*ks+7}], v{V_L16}, s[{SR_WGU}:{SR_WGU+3}], s{S_WCUR} offen offset:1024 sc1'], ('W', ks)))
    return out

def emit_vm(k, ins, tag):
    k(ins)
    if ins.startswith('buffer_'): vm.add(tag)

def g1_wprefetch(k, ks0, ks1):
    for grp, tag in g1_pf_groups(ks0, ks1):
        for ins in grp: emit_vm(k, ins, tag)

def l2_warm(k, sr, nbytes_half, whole=False):
    per = nbytes_half // 16
    assert per % 1024 == 0
    n = per // 1024
    k(f's_sub_u32 s12, s{S_I}, 28')
    k('s_lshl_b32 s12, s12, 2')
    k(f's_add_u32 s12, s12, s{S_WAVE}')
    k(f's_mul_i32 s12, s12, {per}')
    if not whole:
        k(f's_and_b32 s13, s{S_XCD}, 1')
        k(f's_mul_i32 s13, s13, {nbytes_half}')
        k('s_add_u32 s12, s12, s13')
    Ll = label('warm')
    k(f's_mov_b32 s13, {n // 4}')
    k(f'{Ll}:')
    for j in range(4):
        k(f'buffer_load_dwordx4 v[{16+4*j}:{19+4*j}], v{V_L16}, s[{sr}:{sr+3}], s12 offen offset:{1024*j} sc1')
    k('s_add_u32 s12, s12, 4096')
    k('s_sub_u32 s13, s13, 1')
    k('s_cmp_lg_u32 s13, 0')
    k('s_waitcnt vmcnt(24)')
    k(f's_cbranch_scc1 {Ll}')
    for j in range(n % 4):
        k(f'buffer_load_dwordx4 v[{16+4*j}:{19+4*j}], v{V_L16}, s[{sr}:{sr+3}], s12 offen offset:{1024*j} sc1')

def ph_conv(k):
    srd(k, 16, P_WS, OFF_XR, SZ_XR)
    srd(k, 24, P_WS, OFF_YT, SZ_ACT)
    k(f's_lshl_b32 s20, s{S_CH}, 12')
    k(f's_lshl_b32 s21, s{S_PAR}, 11')
    k('s_add_u32 s20, s20, s21')
    k(f'buffer_load_dwordx4 v[16:19], v{V_L16}, s[16:19], s20 offen sc1')
    k(f'buffer_load_dwordx4 v[20:23], v{V_L16}, s[16:19], s20 offen offset:1024 sc1')
    k(f's_and_b32 s28, s{S_CH}, 0xfffffffe')
    k('s_lshl_b32 s28, s28, 1')
    k(f's_load_dword s29, s[{P_SSD}:{P_SSD+1}], s28')
    k(f's_add_u32 s21, s21, s{S_CHB}')
    k(f's_add_u32 s21, s21, {XRL_OFF}')
    k(f'v_add_u32 v4, s21, v{V_L16}')
    k(f'v_and_b32 v5, 15, v{V_LANE}')
    k(f'v_lshrrev_b32 v6, 4, v{V_LANE}')
    k('v_lshlrev_b32 v7, 4, v6')
    k('v_lshlrev_b32 v8, 5, v5')
    k('v_sub_u32 v7, v7, v8')
    k(f's_lshl_b32 s22, s{S_PAR}, 6')
    k(f's_add_u32 s22, s22, s{S_CHB}')
    k(f's_add_u32 s22, s22, {XRL_OFF + 544 - 64}')
    k('v_add_u32 v7, s22, v7')
    k('v_and_b32 v12, 7, v5')
    k('v_mul_u32_u24 v12, 4160, v12')
    k('v_lshrrev_b32 v13, 3, v5')
    k('v_add_u32 v13, v6, v13')
    k('v_lshlrev_b32 v13, 4, v13')
    k('v_add_u32 v12, v12, v13')
    k(f's_lshl_b32 s22, s{S_PAR}, 6')
    k(f's_add_u32 s22, s22, s{S_CHB}')
    k('v_add_u32 v12, s22, v12')
    k('s_waitcnt vmcnt(0)')
    k('ds_write_b128 v4, v[16:19]')
    k('ds_write_b128 v4, v[20:23] offset:1024')
    k('s_waitcnt lgkmcnt(0)')
    k('s_barrier')
    mark(k, 'conv:x in lds')
    ph_p0_wfinish(k)
    ACC = 16; FR = 48; AR = 176; NA = 8
    order = list(range(31, -1, -1))
    def frags(jj): return [(at, 4 * at - jj + 3) for at in range(jj // 4, 8)]
    pend = []
    def issue(tag, txt): k(txt); pend.append(tag)
    def wait_for(tags):
        idx = [pend.index(t) for t in tags if t in pend]
        if idx:
            n = min(len(pend) - 1 - max(idx), 15)
            k(f's_waitcnt lgkmcnt({n})')
            pend[:] = pend[len(pend) - n:] if n > 0 else []
    loadedF = set()
    def issueA(idx):
        jj = order[idx]; r = AR + 4 * (idx % NA)
        issue(('A', jj), f'ds_read_b128 v[{r}:{r+3}], v12 offset:{128*jj}')
    def issueF(idx):
        for at, n in frags(order[idx]):
            if n not in loadedF:
                loadedF.add(n)
                issue(('F', n), f'ds_read_b128 v[{FR+4*n}:{FR+4*n+3}], v7 offset:{128*(31-n)}')
    LA = 4
    for idx in range(LA): issueA(idx); issueF(idx)
    first = set()
    nm = 0
    for idx, jj in enumerate(order):
        if idx + LA < 32: issueA(idx + LA); issueF(idx + LA)
        wait_for([('A', jj)] + [('F', n) for _, n in frags(jj)])
        r = AR + 4 * (idx % NA)
        for at, n in frags(jj):
            c = f'v[{ACC+4*at}:{ACC+4*at+3}]' if at in first else '0'
            first.add(at)
            k(f'v_mfma_f32_16x16x32_bf16 v[{ACC+4*at}:{ACC+4*at+3}], v[{r}:{r+3}], v[{FR+4*n}:{FR+4*n+3}], {c}')
    mark(k, 'conv:mfma done')
    k(f's_lshl_b32 s41, s{S_WAVE}, 12')
    k(f's_add_u32 s41, s41, {CONV_SCR}')
    k(f'v_add_u32 v8, s41, v{V_L16}')
    k(f's_xor_b32 s42, s{S_WAVE}, 1')
    k('s_lshl_b32 s42, s42, 12')
    k(f's_add_u32 s42, s42, {CONV_SCR}')
    k(f'v_add_u32 v9, s42, v{V_L16}')
    k('v_lshlrev_b32 v10, 5, v5')
    k('v_lshl_add_u32 v10, v6, 3, v10')
    k(f's_lshl_b32 s43, s{S_PAR}, 11')
    k(f's_sub_u32 s43, s{S_CHB}, s43')
    k(f's_add_u32 s43, s43, {XRL_OFF + 4088 - 512*3}')
    k('v_sub_u32 v11, s43, v10')
    k('v_and_b32 v13, 1, v6')
    k('v_lshlrev_b32 v13, 5, v13')
    k('v_lshl_add_u32 v13, v5, 1, v13')
    k('v_lshrrev_b32 v14, 1, v6')
    k('v_add_u32 v13, v13, v14')
    k(f's_lshl_b32 s44, s{S_PAR}, 7')
    k('v_add_u32 v13, s44, v13')
    k('v_lshlrev_b32 v13, 5, v13')
    k(f's_lshr_b32 s44, s{S_WAVE}, 1')
    k('s_lshl_b32 s44, s44, 4')
    k(f's_add_u32 s44, s44, {YB_SCR}')
    k('v_add_u32 v13, s44, v13')
    k(f's_lshl_b32 s44, s{S_WAVE}, 11')
    k(f's_add_u32 s44, s44, {YB_SCR}')
    k(f'v_add_u32 v14, s44, v{V_L16}')
    k(f'v_lshrrev_b32 v10, 1, v{V_LANE}')
    k('v_mul_u32_u24 v10, 7168, v10')
    k(f'v_and_b32 v15, 1, v{V_LANE}')
    k('v_lshl_add_u32 v10, v15, 4, v10')
    k(f's_and_b32 s44, s{S_CH}, 0xfffffffe')
    k('s_lshl_b32 s44, s44, 4')
    k(f's_mul_i32 s45, s{S_WAVE}, 64*7168')
    k('s_add_u32 s44, s44, s45')
    k('v_add_u32 v10, s44, v10')
    La = label('cp'); Lb = label('cp')
    k(f's_cmp_eq_u32 s{S_PAR}, 0')
    k(f's_cbranch_scc0 {La}')
    for i in range(4): k(f'ds_write_b128 v8, v[{ACC+16+4*i}:{ACC+16+4*i+3}] offset:{1024*i}')
    k(f's_branch {Lb}')
    k(f'{La}:')
    k('s_nop 7')
    for i in range(4): k(f'ds_write_b128 v8, v[{ACC+4*i}:{ACC+4*i+3}] offset:{1024*i}')
    for i in range(16): k(f'v_mov_b32 v{ACC+i}, v{ACC+16+i}')
    k(f'{Lb}:')
    k('s_waitcnt lgkmcnt(0)')
    k('s_lshl_b32 s36, s29, 16')
    k('s_and_b32 s37, s29, 0xffff0000')
    k(f's_and_b32 s34, s{S_CH}, 1')
    k('s_cmp_eq_u32 s34, 0')
    k('s_cselect_b32 s36, s36, s37')
    k('s_waitcnt vmcnt(0)')
    k('s_barrier')
    k(f's_add_u32 s59, s{S_XCD}, {L_W}')
    signal(k, line_sreg=59)
    for i in range(4): k(f'ds_read_b128 v[{48+4*i}:{51+4*i}], v9 offset:{1024*i}')
    for i in range(4): k(f'ds_read_b64 v[{64+2*i}:{65+2*i}], v11 offset:{512*(3-i)}')
    k('s_waitcnt lgkmcnt(0)')
    for i in range(4):
        a = ACC + 4 * i
        for r in range(4): k(f'v_add_f32 v{a+r}, v{a+r}, v{48+4*i+r}')
        x0, x1 = 64 + 2 * i, 65 + 2 * i
        k(f'v_and_b32 v72, 0xffff0000, v{x1}')
        k(f'v_lshlrev_b32 v73, 16, v{x1}')
        k(f'v_and_b32 v74, 0xffff0000, v{x0}')
        k(f'v_lshlrev_b32 v75, 16, v{x0}')
        for r in range(4): k(f'v_fmac_f32 v{a+r}, s36, v{72+r}')
        k(f'v_cvt_pk_bf16_f32 v{76+2*i}, v{a}, v{a+1}')
        k(f'v_cvt_pk_bf16_f32 v{77+2*i}, v{a+2}, v{a+3}')
    for p in range(2):
        o = 76 + 4 * p
        k(f'v_permlane16_swap_b32 v{o}, v{o+2}')
        k(f'v_permlane16_swap_b32 v{o+1}, v{o+3}')
        k(f'ds_write_b128 v13, v[{o}:{o+3}] offset:{2048*p}')
    k('s_waitcnt lgkmcnt(0)')
    k('s_barrier')
    k('ds_read_b128 v[84:87], v14')
    k('ds_read_b128 v[88:91], v14 offset:1024')
    k('s_waitcnt lgkmcnt(1)')
    emit_vm(k, 'buffer_store_dwordx4 v[84:87], v10, s[24:27], 0 offen sc1', ('YT', 0))
    k('s_mov_b32 s45, 32*7168')
    k('s_waitcnt lgkmcnt(0)')
    emit_vm(k, 'buffer_store_dwordx4 v[88:91], v10, s[24:27], s45 offen sc1', ('YT', 1))

def wave_reduce8(k, regs, tmp):
    for r in regs: k(f'v_add_f32_dpp v{r}, v{r}, v{r} row_ror:8 row_mask:0xf bank_mask:0xf')
    for r, t in zip(regs, tmp): k(f'v_mov_b32 v{t}, v{r}')
    for r, t in zip(regs, tmp): k(f'v_permlane16_swap_b32 v{r}, v{t}')
    for r, t in zip(regs, tmp): k(f'v_add_f32 v{r}, v{r}, v{t}')
    for r, t in zip(regs, tmp): k(f'v_mov_b32 v{t}, v{r}')
    for r, t in zip(regs, tmp): k(f'v_permlane32_swap_b32 v{r}, v{t}')
    for r, t in zip(regs, tmp): k(f'v_add_f32 v{r}, v{r}, v{t}')

LN_BASE = 122880
LN_PART = LN_BASE + 56 * 144
X_ = 16; Y_ = 24; XF = 36; YF = 52; T_ = 68

def ln_unpack(k, dst, src, n):
    for i in range(n):
        k(f'v_lshlrev_b32 v{dst+2*i}, 16, v{src+i}')
        k(f'v_and_b32 v{dst+2*i+1}, 0xffff0000, v{src+i}')

def ln_stats(k, buf):
    k(f'v_add_f32 v84, v{XF}, v{XF+1}')
    k(f'v_mul_f32 v85, v{XF}, v{XF}')
    k(f'v_add_f32 v86, v{XF+2}, v{XF+3}')
    k(f'v_mul_f32 v87, v{XF+1}, v{XF+1}')
    k(f'v_fmac_f32 v85, v{XF+2}, v{XF+2}')
    k(f'v_fmac_f32 v87, v{XF+3}, v{XF+3}')
    for i in range(4, 16, 2):
        k(f'v_add_f32 v84, v84, v{XF+i}')
        k(f'v_add_f32 v86, v86, v{XF+i+1}')
        k(f'v_fmac_f32 v85, v{XF+i}, v{XF+i}')
        k(f'v_fmac_f32 v87, v{XF+i+1}, v{XF+i+1}')
    k('v_add_f32 v84, v84, v86')
    k('v_add_f32 v85, v85, v87')
    wave_reduce8(k, [84, 85], [86, 87])
    k(f'v_cmp_gt_u32 vcc, 8, v{V_LANE}')
    k('s_and_saveexec_b64 s[40:41], vcc')
    k(f'ds_write_b64 v32, v[84:85] offset:{256*buf}')
    k('s_mov_b64 exec, s[40:41]')
    k('s_waitcnt lgkmcnt(0)')
    k('s_barrier')
    for w in range(4): k(f'ds_read_b64 v[{88+2*w}:{89+2*w}], v15 offset:{256*buf + 64*w}')

def ln_finish(k):
    k('v_add_f32 v88, v88, v90'); k('v_add_f32 v89, v89, v91')
    k('v_add_f32 v92, v92, v94'); k('v_add_f32 v93, v93, v95')
    k('v_add_f32 v88, v88, v92'); k('v_add_f32 v89, v89, v93')
    k('v_mul_f32 v84, 0x3b124925, v88')
    k('v_mul_f32 v85, 0x3b124925, v89')
    k('v_fma_f32 v85, -v84, v84, v85')
    k('v_max_f32 v85, 0, v85')
    k('v_add_f32 v85, 0x3727c5ac, v85')
    k('v_rsq_f32 v85, v85')
    k('v_mul_f32 v86, v84, v85')

def ln_addr(k):
    k(f'v_and_b32 v33, 7, v{V_LANE}')
    k(f'v_lshrrev_b32 v4, 3, v{V_LANE}')
    k(f's_mul_i32 s12, s{S_WAVE}, 14')
    k('v_add_u32 v5, s12, v4')
    k('s_lshr_b32 s13, s2, 2')
    k('s_mul_i32 s13, s13, 28672')
    k('s_and_b32 s14, s2, 3')
    k('s_lshl_b32 s14, s14, 7')
    k('s_add_u32 s13, s13, s14')
    k('v_lshlrev_b32 v6, 9, v5')
    k('v_lshl_add_u32 v6, v33, 4, v6')
    k('v_add_u32 v6, s13, v6')
    k('v_add_u32 v7, 4096, v6')
    k('v_mov_b32 v8, 0x80000000')
    k('v_cmp_gt_u32 vcc, 6, v4')
    k('v_cmp_gt_u32 s[38:39], 6, v4')
    k('v_cndmask_b32 v7, v8, v7, vcc')
    k('v_lshlrev_b32 v15, 3, v33')
    k(f'v_add_u32 v15, {LN_PART}, v15')
    k(f's_lshl_b32 s37, s{S_WAVE}, 6')
    k('v_add_u32 v32, s37, v15')

def ph_ln1_pre(k):
    ln_addr(k)
    k('v_lshlrev_b32 v11, 4, v0')
    k('v_add_u32 v12, 4096, v11')
    k('v_cmp_gt_u32 vcc, 192, v0')
    k('v_cndmask_b32 v12, v8, v12, vcc')
    k('v_lshrrev_b32 v13, 3, v0')
    k('v_add_u32 v13, v13, v0')
    k('v_lshlrev_b32 v13, 4, v13')
    k(f'v_add_u32 v13, {LN_BASE}, v13')
    k('v_mul_u32_u24 v14, 144, v5')
    k('v_lshl_add_u32 v14, v33, 1, v14')
    k(f'v_add_u32 v14, {LN_BASE}, v14')
    ln_unpack(k, XF, 232, 8)
    ln_stats(k, 0)
    k('s_waitcnt lgkmcnt(0)')
    ln_finish(k)
    for j in range(16): k(f'v_fma_f32 v{T_+j}, v{XF+j}, v85, -v86')

def ln_tail(k, sr_x, sr_xn, pf, tagp):
    c = Cap()
    for j in range(16): c(f'v_fmac_f32 v{XF+j}, v{T_+j}, v{YF+j}')
    for i in range(8): c(f'v_cvt_pk_bf16_f32 v{X_+i}, v{XF+2*i}, v{XF+2*i+1}')
    ln_unpack(c, XF, X_, 8)
    c((f'buffer_store_dwordx4 v[{X_}:{X_+3}], v6, s[{sr_x}:{sr_x+3}], 0 offen sc1', (tagp, 'x0')))
    c((f'buffer_store_dwordx4 v[{X_+4}:{X_+7}], v7, s[{sr_x}:{sr_x+3}], 0 offen sc1', (tagp, 'x1')))
    ln_stats(c, 1)
    c('s_waitcnt lgkmcnt(0)')
    ln_finish(c)
    for j in range(16): c(f'v_fma_f32 v{T_+j}, v{XF+j}, v85, -v86')
    for i in range(8): c(f'v_cvt_pk_bf16_f32 v{YF+i}, v{T_+2*i}, v{T_+2*i+1}')
    sprinkle(k, c.L, pf, None, skip_tail=8)
    emit_vm(k, f'buffer_store_dwordx4 v[{YF}:{YF+3}], v6, s[{sr_xn}:{sr_xn+3}], 0 offen sc1', (tagp, 'n0'))
    emit_vm(k, f'buffer_store_dwordx4 v[{YF+4}:{YF+7}], v7, s[{sr_xn}:{sr_xn+3}], 0 offen sc1', (tagp, 'n1'))

def ph_ln1(k, pf):
    srd(k, 32, P_WS, OFF_YT, SZ_ACT)
    k('s_mul_i32 s36, s2, 7168')
    k('buffer_load_dwordx4 v[24:27], v11, s[32:35], s36 offen sc1')
    k('buffer_load_dwordx4 v[28:31], v12, s[32:35], s36 offen sc1')
    srd(k, 16, P_WS, OFF_XN1, SZ_ACT); srd(k, 20, P_WS, OFF_X1, SZ_ACT); srd(k, 24, P_WS, OFF_YF, SZ_ACT)
    k('s_waitcnt vmcnt(0)')
    k('ds_write_b128 v13, v[24:27]')
    k('v_cmp_gt_u32 vcc, 192, v0')
    k('s_and_saveexec_b64 s[40:41], vcc')
    k('ds_write_b128 v13, v[28:31] offset:4608')
    k('s_mov_b64 exec, s[40:41]')
    k('s_waitcnt lgkmcnt(0)')
    k('s_barrier')
    mark(k, 'ln1:y in lds')
    for j in range(8): k(f'ds_read_u16 v{YF+j}, v14 offset:{16*j}')
    for j in range(8): k(f'ds_read_u16 v{YF+8+j}, v14 offset:{8*144 + 16*j}')
    k('s_waitcnt lgkmcnt(0)')
    for i in range(8): k(f'v_lshl_or_b32 v{Y_+i}, v{YF+2*i+1}, 16, v{YF+2*i}')
    for j in range(16): k(f'v_lshlrev_b32 v{YF+j}, 16, v{YF+j}')
    for j in range(8, 16): k(f'v_cndmask_b32 v{YF+j}, 0, v{YF+j}, s[38:39]')
    emit_vm(k, f'buffer_store_dwordx4 v[{Y_}:{Y_+3}], v6, s[24:27], 0 offen sc1', ('ln1', 'y0'))
    emit_vm(k, f'buffer_store_dwordx4 v[{Y_+4}:{Y_+7}], v7, s[24:27], 0 offen sc1', ('ln1', 'y1'))
    ln_tail(k, 20, 16, pf, 'ln1')

def ph_ln2_pre(k):
    ln_addr(k)
    srd(k, 24, P_WS, OFF_YF, SZ_ACT)
    k(f'buffer_load_dwordx4 v[{Y_}:{Y_+3}], v6, s[24:27], 0 offen sc1')
    k(f'buffer_load_dwordx4 v[{Y_+4}:{Y_+7}], v7, s[24:27], 0 offen sc1')
    srd(k, 16, P_WS, OFF_XN2, SZ_ACT); srd(k, 20, P_WS, OFF_X3, SZ_ACT); srd(k, 28, P_WS, OFF_X2, SZ_ACT)

def ph_ln2(k, pf):
    k(f'buffer_load_dwordx4 v[{X_}:{X_+3}], v6, s[28:31], 0 offen sc1')
    k(f'buffer_load_dwordx4 v[{X_+4}:{X_+7}], v7, s[28:31], 0 offen sc1')
    k('s_waitcnt vmcnt(2)')
    ln_unpack(k, YF, Y_, 8)
    k('s_waitcnt vmcnt(0)')
    mark(k, 'ln2:loaded')
    half = len(pf) // 3
    c = Cap()
    ln_unpack(c, XF, X_, 8)
    ln_stats(c, 0)
    c('s_waitcnt lgkmcnt(0)')
    ln_finish(c)
    for j in range(16): c(f'v_fma_f32 v{T_+j}, v{XF+j}, v85, -v86')
    sprinkle(k, c.L, pf[:half], None)
    ln_tail(k, 20, 16, pf[half:], 'ln2')

WD_LOC = [('a', 224 + 4*i) for i in range(8)] + [('v', 168 + 4*i) for i in range(20)] + \
         [('v', 112 + 4*i) for i in range(14)] + [('a', 4*i) for i in range(14)]
def rr(loc, n=4): return f'{loc[0]}[{loc[1]}:{loc[1]+n-1}]'

def wd_load(n):
    ks, ct = n >> 1, n & 1
    if ct == 0:
        pre = step_cur(20, 21, S_DOFF, 1024) if ks > 0 else []
        return pre + [f'buffer_load_dwordx4 {rr(WD_LOC[n])}, v{V_L16}, s[{SR_WD}:{SR_WD+3}], s20 offen sc1']
    return [f'buffer_load_dwordx4 {rr(WD_LOC[n])}, v{V_L16}, s[28:31], s20 offen sc1']

def ph_g1(k):
    layer = 'L'
    k(f's_mul_i32 s12, s{S_LAYER}, {OFF_XN2 - OFF_XN1:#x}')
    srd_soff(k, 16, P_WS, OFF_XN1, 12, SZ_ACT)
    k(f's_mul_i32 s12, s{S_LAYER}, {OFF_H2 - OFF_H1:#x}')
    srd_soff(k, 24, P_WS, OFF_H1, 12, SZ_H)
    k(f's_mul_i32 s15, s{S_LAYER}, {L_S6 - L_S3}')
    k(f's_add_u32 s15, s15, {L_S3}')
    k(f's_lshl_b32 s32, s{S_RB}, 2')
    k('s_mul_i32 s34, s32, 28672')
    k(f's_mul_i32 s36, s{S_WAVE}, 7168')
    k(f's_mul_i32 s35, s{S_WAVE}, 7')
    k(f's_add_u32 s35, s35, s{S_R1}')
    k('s_cmp_ge_u32 s35, 28')
    k('s_cselect_b32 s44, 28, 0')
    k('s_sub_u32 s35, s35, s44')
    k('s_lshl_b32 s35, s35, 10')
    k('s_add_u32 s34, s34, s35')
    ST = 112; ACC = 16; TF = 80; TM = 96
    lg = LG()
    def lds(ins, tag): k(ins); lg.add(tag)
    def tok_load(tt):
        for j in range(7):
            r = ST + 28 * (tt % 2) + 4 * j
            if j % 4 == 0: k(f's_add_u32 s37, s34, {tt*28672 + (j//4)*4096}')
            emit_vm(k, f'buffer_load_dwordx4 v[{r}:{r+3}], v{V_L16}, s[16:19], s37 offen offset:{(j%4)*1024} sc1', ('T', layer, tt, j))
    tok_load(0); tok_load(1)
    k(f'v_add_u32 v4, s36, v{V_L16}')
    k('v_add_u32 v5, 57344, v4')
    k(f'v_add_u32 v6, 57344, v{V_L16}')
    k(f's_lshl_b32 s31, s{S_FS}, 2')
    k(f's_add_u32 s31, s31, s{S_WAVE}')
    k('s_lshl_b32 s40, s31, 11')
    k(f's_lshl_b32 s33, s{S_RB}, 2')
    k('s_add_u32 s33, s33, s15')
    k(f's_lshr_b32 s12, s{S_RT}, 1')
    k(f's_and_b32 s13, s{S_RT}, 1')
    k('s_lshl_b32 s14, s12, 2')
    k('s_add_u32 s56, s14, s13')
    k('s_add_u32 s56, s56, s15')
    k('s_sub_u32 s57, 3, s13')
    k('s_add_u32 s57, s57, s14')
    k('s_add_u32 s57, s57, s15')
    srd(k, 28, P_WS, OFF_WD + 112 * 1024, SZ_WD - 112 * 1024)
    k(f's_lshl_b32 s20, s{S_R2}, 10')
    k(f's_add_u32 s20, s20, s{S_DOFF}')
    k(f's_add_u32 s21, s{S_DOFF}, {28*1024}')
    def tok_write_one(tt, j):
        base = 'v4' if tt < 2 else 'v5'
        r = ST + 28 * (tt % 2) + 4 * j
        lds(f'ds_write_b128 {base}, v[{r}:{r+3}] offset:{(tt%2)*28672 + j*1024}', ('w', tt, j))
    def tok_read(step):
        tt, ks = divmod(step, 28)
        r = TF + 4 * (step % 4)
        base = f'v{V_L16}' if tt < 2 else 'v6'
        lds(f'ds_read_b128 v[{r}:{r+3}], {base} offset:{(tt%2)*28672 + ks*1024}', ('r', step))
    def epilogue(tt):
        g = ACC + 32 * (tt % 2); u = g + 16
        out = [f's_add_u32 s41, s32, {tt}', 's_mul_i32 s41, s41, 112*1024', 's_add_u32 s41, s41, s40']
        for s in range(2):
            b = 8 * s
            for i in range(8): out.append(f'v_mul_f32 v{TM+i}, 0xbfb8aa3b, v{g+b+i}')
            for i in range(8): out.append(f'v_exp_f32 v{TM+i}, v{TM+i}')
            for i in range(8): out.append(f'v_mul_f32 v{u+b+i}, v{g+b+i}, v{u+b+i}')
            for i in range(8): out.append(f'v_add_f32 v{TM+i}, 1.0, v{TM+i}')
            for i in range(8): out.append(f'v_rcp_f32 v{TM+i}, v{TM+i}')
            for i in range(8): out.append(f'v_mul_f32 v{u+b+i}, v{u+b+i}, v{TM+i}')
            o = TM + 8 + 4 * s
            for q in range(4): out.append(f'v_cvt_pk_bf16_f32 v{o+q}, v{u+b+2*q}, v{u+b+2*q+1}')
            out.append(f'buffer_store_dwordx4 v[{o}:{o+3}], v{V_L16}, s[24:27], s41 offen offset:{1024*s} sc1')
        return out
    k(vm.wait(('T', layer, 0, 6)))
    for j in range(7): tok_write_one(0, j)
    tok_load(2)
    k(lg.wait(('w', 0, 6)))
    k('s_barrier')
    lmark(k, 'g1:tok0')
    sched = {0: [(n, 2) for n in range(0, 14)], 1: [(n, 0) for n in range(14, 28)],
             2: [(n, 16) for n in range(28, 35)],
             3: [(n, 16) for n in range(35, 42)]}
    sched = {0: [(n, 2) for n in range(0, 14)], 1: [(n, 0) for n in range(14, 28)],
             2: [(n, 0) for n in range(28, 35)] + [(n, 17) for n in range(35, 40)],
             3: [(n, 0) for n in range(40, 42)] + [(n, (n - 42) // 2 + 1) for n in range(42, 56)]}
    PD = 3
    for st in range(PD): tok_read(st)
    for tt in range(4):
        g = ACC + 32 * (tt % 2); u = g + 16
        fill = epilogue(tt - 1) if tt > 0 else []
        nf = len(fill); fi = 0
        wq = list(sched[tt])
        for ks in range(28):
            step = 28 * tt + ks
            if tt == 0 and ks >= PF_B:
                k(vm.wait(('W', ks)))
            w = lg.wait(('r', step))
            if w: k(w)
            b = TF + 4 * (step % 4)
            cg = f'v[{g}:{g+15}]' if ks else '0'
            cu = f'v[{u}:{u+15}]' if ks else '0'
            k(f'v_mfma_f32_32x32x16_bf16 v[{g}:{g+15}], a[{8*ks}:{8*ks+3}], v[{b}:{b+3}], {cg}')
            if step + PD < 112:
                tok_read(step + PD)
            tgt = (nf * (2 * ks) + 51) // 52 if ks >= 1 else 0
            while fi < min(tgt, nf):
                emit_vm(k, fill[fi], ('H', layer, tt - 1)); fi += 1
            k(f'v_mfma_f32_32x32x16_bf16 v[{u}:{u+15}], a[{8*ks+4}:{8*ks+7}], v[{b}:{b+3}], {cu}')
            tgt = (nf * (2 * ks + 1) + 51) // 52 if ks >= 1 else 0
            while fi < min(tgt, nf):
                emit_vm(k, fill[fi], ('H', layer, tt - 1)); fi += 1
            if tt < 3 and 8 <= ks < 15:
                if ks == 8: k(vm.wait(('T', layer, tt + 1, 6)))
                tok_write_one(tt + 1, ks - 8)
            if ks == 16:
                if tt < 3:
                    w = lg.wait(('w', tt + 1, 6))
                    if w: k(w)
                if tt >= 2: k(vm.wait(('H', layer, tt - 2)))
                k('s_barrier')
                if tt >= 2:
                    k(f's_add_u32 s62, s33, {tt-2}')
                    signal(k, line_sreg=62)
                if tt == 0: tok_load(3)
            if wq and wq[0][1] <= ks and (ks % 2 == 0 or len(wq) > (28 - ks) // 2):
                n, _ = wq.pop(0)
                for ins in wd_load(n): emit_vm(k, ins, ('D', layer, n))
        while fi < nf:
            emit_vm(k, fill[fi], ('H', layer, tt - 1)); fi += 1
        while wq:
            n, _ = wq.pop(0)
            for ins in wd_load(n): emit_vm(k, ins, ('D', layer, n))
        lmark(k, f'g1:pass{tt}')
    for s in epilogue(3): emit_vm(k, s, ('H', layer, 3))
    lmark(k, 'g1:epi3')

G2_SCR = 0
def ph_g2(k, pf):
    layer = 'L'
    k(f's_mul_i32 s12, s{S_LAYER}, {OFF_H2 - OFF_H1:#x}')
    srd_soff(k, 16, P_WS, OFF_H1, 12, SZ_H)
    k(f's_mul_i32 s12, s{S_LAYER}, {OFF_X3 - OFF_X1:#x}')
    srd_soff(k, 24, P_WS, OFF_X1, 12, SZ_ACT)
    k(f's_lshr_b32 s12, s{S_RT}, 1')
    k(f's_and_b32 s13, s{S_RT}, 1')
    k('s_lshl_b32 s14, s12, 2')
    k('s_add_u32 s20, s14, s13')
    k('s_sub_u32 s21, 3, s13')
    k('s_add_u32 s21, s21, s14')
    k(f's_mul_i32 s31, s{S_WAVE}, 28*1024')
    k('s_mul_i32 s30, s20, 112*1024')
    k('s_add_u32 s30, s30, s31')
    k('s_mul_i32 s32, s21, 112*1024')
    k('s_add_u32 s32, s32, s31')
    ACC = 16
    def hloc(t, ks):
        if t == 0: return 56 + 4 * ks
        return (168 + 4 * ks) if ks < 14 else (56 + 4 * (ks - 14))
    k('s_mov_b32 s22, s30'); k('s_add_u32 s23, s30, 28*1024')
    k('s_mov_b32 s34, s32'); k('s_add_u32 s35, s32, 28*1024')
    k(f's_lshl_b32 s33, s{S_R2}, 10')
    k('s_add_u32 s30, s30, s33'); k('s_add_u32 s32, s32, s33')
    def hload(t, ks):
        cur, base, lim = (30, 22, 23) if t == 0 else (32, 34, 35)
        if ks > 0:
            for ins in step_cur(cur, lim, base, 1024): k(ins)
        r = hloc(t, ks)
        emit_vm(k, f'buffer_load_dwordx4 a[{r}:{r+3}], v{V_L16}, s[16:19], s{cur} offen sc1', ('HL', layer, t, ks))
    for ks in range(14): hload(0, ks)
    def mm(t, ks):
        r = hloc(t, ks)
        for ct in range(2):
            acc = ACC + 32 * t + 16 * ct
            c = f'v[{acc}:{acc+15}]' if ks else '0'
            k(f'v_mfma_f32_32x32x16_bf16 v[{acc}:{acc+15}], {rr(WD_LOC[2*ks+ct])}, a[{r}:{r+3}], {c}')
    k(f'v_and_b32 v4, 31, v{V_LANE}')
    k(f'v_lshrrev_b32 v5, 5, v{V_LANE}')
    k(f's_lshr_b32 s12, s{S_WAVE}, 1')
    k('s_cmp_eq_u32 s12, 0')
    k('s_cselect_b32 s14, s20, s21')
    k(f's_and_b32 s13, s{S_WAVE}, 1')
    k('s_mul_i32 s15, s14, 28672')
    k(f's_lshl_b32 s28, s{S_CTP}, 12')
    k('s_add_u32 s15, s15, s28')
    k('s_lshl_b32 s28, s13, 11')
    k('s_add_u32 s15, s15, s28')
    k('v_lshlrev_b32 v7, 9, v5')
    k('v_lshl_add_u32 v7, v4, 4, v7')
    k('v_add_u32 v7, s15, v7')
    for j in range(14):
        hload(0, 14 + j)
        k(vm.wait(('HL', layer, 0, j)))
        mm(0, j)
    wait(k, 14, line_sreg=57)
    lmark(k, 'g2:B ready')
    for j in range(14):
        hload(1, j)
        k(vm.wait(('HL', layer, 0, 14 + j)))
        mm(0, 14 + j)
    for j in range(14):
        hload(1, 14 + j)
        k(vm.wait(('HL', layer, 1, j)))
        mm(1, j)
    emit_vm(k, 'buffer_load_dwordx4 v[80:83], v7, s[24:27], 0 offen sc1', ('R', layer, 0))
    emit_vm(k, 'buffer_load_dwordx4 v[84:87], v7, s[24:27], 0 offen offset:1024 sc1', ('R', layer, 1))
    for ks in range(14, 28):
        k(vm.wait(('HL', layer, 1, ks)))
        mm(1, ks)
    lmark(k, 'g2:main')
    Lv = [label('x') for _ in range(4)]; Lx = label('xe')
    for w in range(4):
        if w < 3:
            k(f's_cmp_eq_u32 s{S_WAVE}, {w}')
            k(f's_cbranch_scc0 {Lv[w+1]}')
        k('s_nop 7'); k('s_nop 3')
        for ti in range(4):
            if ti == w: continue
            slot = (w - ti - 1) % 4
            acc = ACC + 32 * (ti >> 1) + 16 * (ti & 1)
            for rg in range(4):
                k(f'ds_write_b128 v{V_L16}, v[{acc+4*rg}:{acc+4*rg+3}] offset:{G2_SCR + ti*12288 + slot*4096 + rg*1024}')
        acc = ACC + 32 * (w >> 1) + 16 * (w & 1)
        for i in range(16): k(f'v_mov_b32 v{96+i}, v{acc+i}')
        k(f's_branch {Lx}')
        if w < 3: k(f'{Lv[w+1]}:')
    k(f'{Lx}:')
    k(f's_mul_i32 s12, s{S_WAVE}, 12288')
    k(f'v_add_u32 v8, s12, v{V_L16}')
    k('s_waitcnt lgkmcnt(0)')
    k('s_barrier')
    def reduce_lines():
        c = Cap()
        for sl in range(3):
            for rg in range(4):
                r = 16 + 16 * sl + 4 * rg
                c(f'ds_read_b128 v[{r}:{r+3}], v8 offset:{G2_SCR + sl*4096 + rg*1024}')
        c('s_waitcnt lgkmcnt(4)')
        for i in range(16): c(f'v_add_f32 v{16+i}, v{16+i}, v{32+i}')
        c('s_waitcnt lgkmcnt(0)')
        for i in range(16): c(f'v_add_f32 v{96+i}, v{96+i}, v{48+i}')
        for i in range(16): c(f'v_add_f32 v{96+i}, v{96+i}, v{16+i}')
        for p in range(2):
            for j in range(4):
                c(f'v_permlane32_swap_b32 v{96+8*p+j}, v{96+8*p+4+j}')
        return c.L
    def resid_pack(p):
        rs = 80 + 4 * p
        for i in range(4):
            k(f'v_lshlrev_b32 v{88}, 16, v{rs+i}')
            k(f'v_and_b32 v{89}, 0xffff0000, v{rs+i}')
            k(f'v_add_f32 v{96+8*p+2*i}, v{96+8*p+2*i}, v88')
            k(f'v_add_f32 v{96+8*p+2*i+1}, v{96+8*p+2*i+1}, v89')
        o = 48 + 4 * p
        for i in range(4): k(f'v_cvt_pk_bf16_f32 v{o+i}, v{96+8*p+2*i}, v{96+8*p+2*i+1}')
        return o
    Lfin = label('g2fin')
    k(f's_cmp_lg_u32 s{S_LAYER}, 0')
    k(f's_cbranch_scc1 {Lfin}')
    srd(k, 36, P_WS, OFF_X2, SZ_ACT)
    nres = len(vm.l)
    sprinkle(k, reduce_lines(), pf, None)
    k(vm.wait(('R', layer, 1)))
    for p in range(2):
        o = resid_pack(p)
        emit_vm(k, f'buffer_store_dwordx4 v[{o}:{o+3}], v7, s[36:39], 0 offen offset:{1024*p} sc1', ('O', layer, p))
    return Lfin, (reduce_lines, resid_pack)

def ph_g2_final(k, fns):
    reduce_lines, resid_pack = fns
    srd(k, 36, P_OUT, 0, SZ_ACT)
    k('s_mul_i32 s28, s14, 32*896')
    k(f's_lshl_b32 s29, s{S_CTP}, 7')
    k('s_add_u32 s28, s28, s29')
    k('s_lshl_b32 s29, s13, 6')
    k('s_add_u32 s28, s28, s29')
    k('v_mul_u32_u24 v9, 896, v4')
    k('v_lshl_add_u32 v9, v5, 4, v9')
    k('v_add_u32 v9, s28, v9')
    for ln in reduce_lines(): k(ln)
    k('s_waitcnt vmcnt(0)')
    for p in range(2):
        o = resid_pack(p)
        k(f'buffer_store_dwordx4 v[{o}:{o+3}], v9, s[36:39], 0 offen offset:{32*p}')

def build():
    MARKS.clear(); LOOPMARKS.clear(); vm.l.clear(); _lab[0] = 0
    k = Kern(KNAME, vgprs=256, agprs=256, sgprs=102)
    ph_init(k)
    ph_p0(k)
    Lc = label('noconv')
    Lw = label('s0skip')
    k('s_cmp_ge_u32 s2, 224')
    k(f's_cbranch_scc1 {Lw}')
    k('s_waitcnt vmcnt(0)')
    init_check(k)
    k('s_barrier')
    signal(k, line_sreg=62)
    mark(k, 'S0 arrived')
    ph_p0_wdma(k)
    ph_conv_prep(k)
    mark(k, 'conv prep done')
    wait(k, 32, line_sreg=62)
    mark(k, 'S0 passed')
    ph_conv(k)
    k(f's_branch {Lc}')
    k(f'{Lw}:')
    ph_p0_wdma(k)
    ph_p0_wfinish(k)
    wait_init(k)
    k(f's_add_u32 s59, s{S_XCD}, {L_W}')
    arrive(k, line_sreg=59)
    k(f'{Lc}:')
    mark(k, 'conv done')
    k(f's_add_u32 s59, s{S_XCD}, {L_S1}')
    arrive(k, line_sreg=59)
    mark(k, 'S1 arrived')
    ph_ln1_pre(k)
    wait(k, 32, line=L_W, nlines=8)
    g1_wprefetch(k, 0, PF_A1)
    mark(k, 'ln1 pre done')
    wait(k, 32, line=L_S1, nlines=8)
    mark(k, 'S1 passed')
    ph_ln1(k, g1_pf_groups(PF_A, PF_B))
    k(f's_add_u32 s59, s{S_LNRB}, {L_S2}')
    arrive(k, line_sreg=59)
    mark(k, 'ln1 arrived')
    k(f's_mov_b32 s{S_LAYER}, 0')
    Lloop = label('layer'); Lskip = label('gskip'); Lend2 = label('fin')
    k(f'{Lloop}:')
    k(f's_cmp_ge_u32 s{S_I}, 28')
    k(f's_cbranch_scc1 {Lskip}')
    g1_wprefetch(k, PF_B, 28)
    k(f's_mul_i32 s59, s{S_LAYER}, {L_S5 - L_S2}')
    k(f's_add_u32 s59, s59, s{S_RB}')
    k(f's_add_u32 s59, s59, {L_S2}')
    wait(k, 16, line_sreg=59)
    lmark(k, 'S(ln->g1) passed')
    ph_g1(k)
    k('s_waitcnt vmcnt(0)')
    wait(k, 14, line_sreg=56, barrier=False)
    k('s_barrier')
    k('s_add_u32 s59, s33, 2')
    signal(k, line_sreg=59, n=2)
    lmark(k, 'g1 arrived')
    Lfin, fns = ph_g2(k, g1_pf_groups(0, PF_A2))
    k(f's_lshr_b32 s59, s{S_RT}, 1')
    k(f's_add_u32 s59, s59, {L_S4}')
    arrive(k, line_sreg=59)
    mark(k, 'S4 arrived')
    g1_wprefetch(k, PF_A2, PF_A)
    k(f's_branch {Lskip}')
    k(f'{Lfin}:')
    ph_g2_final(k, fns)
    mark(k, 'g2 final done')
    k(f's_branch {Lend2}')
    k(f'{Lskip}:')
    k(f's_cmp_lg_u32 s{S_LAYER}, 0')
    k(f's_cbranch_scc1 {Lend2}')
    ph_ln2_pre(k)
    k(f's_add_u32 s59, s{S_LNRB}, {L_S4}')
    wait(k, 14, line_sreg=59)
    mark(k, 'S4 passed')
    ph_ln2(k, g1_pf_groups(PF_A, PF_B))
    k(f's_add_u32 s59, s{S_LNRB}, {L_S5}')
    arrive(k, line_sreg=59)
    mark(k, 'ln2 arrived')
    k(f's_mov_b32 s{S_LAYER}, 1')
    k(f's_branch {Lloop}')
    k(f'{Lend2}:')
    if PROF:
        k('s_waitcnt vmcnt(0)')
        mark(k, 'end')
        k('s_memrealtime s[96:97]')
        k('s_waitcnt lgkmcnt(0)')
        k(f'v_writelane_b32 v{VPROF}, s96, 63')
        srd(k, 56, P_WS, OFF_PROF, 0x100000)
        k('s_lshl_b32 s60, s2, 2')
        k(f's_add_u32 s60, s60, s{S_WAVE}')
        k('s_lshl_b32 s60, s60, 8')
        k(f'v_lshlrev_b32 v4, 2, v{V_LANE}')
        k(f'buffer_store_dword v{VPROF}, v4, s[56:59], s60 offen')
    k('L_end:')
    k('s_endpgm')
    hdr = open('interleave_layers__ssm_conv_h3__swiglu_ffn__prompt.s.ref').read().split('; Override launch')[0]
    out = [hdr.rstrip('\n')]
    out.append(f'; @launch grid=({NWG},1,1) block=(256,1,1) lds={LDS_BYTES}')
    out.append('.amdgcn_target "amdgcn-amd-amdhsa--gfx950"')
    out.append('.text')
    out.append(k.emit())
    out.append('.section .rodata,"a"')
    out.append('.p2align 6')
    out.append(k.desc())
    return '\n'.join(out) + '\n'

if __name__ == '__main__':
    if '--prof' in sys.argv: PROF = True
    txt = build()
    dst = sys.argv[1]
    open(dst, 'w').write(txt)
    if PROF:
        import json
        assert len(MARKS) <= 24
        names = MARKS + [''] * (24 - len(MARKS)) + [f'L0 {n}' for n in LOOPMARKS] + [''] * (16 - len(LOOPMARKS)) + [f'L1 {n}' for n in LOOPMARKS]
        json.dump(names, open(dst + '.marks', 'w'))
    print('wrote', dst, len(txt), 'bytes', len(MARKS), 'marks')
```

```python
import sys
from asmlib import *

S = 2048; D = 448; F = 1792
SZ_ACT = 2048 * 448 * 2
OFF_XR = 0x0;       SZ_XR = 448 * 4096
OFF_YT = 0x200000
OFF_YF = 0x400000
OFF_X1 = 0x600000
OFF_XN1 = 0x800000
OFF_X2 = 0xA00000
OFF_X3 = 0xC00000
OFF_XN2 = 0xE00000
OFF_WGU = 0x1000000; SZ_WGU = 56 * 28 * 2 * 1024
OFF_WD = 0x1400000;  SZ_WD = 14 * 112 * 1024
OFF_H1 = 0x1600000;  SZ_H = 64 * 112 * 1024
OFF_H2 = 0x1E00000
OFF_SYNC = 0x2600000; SZ_SYNC = 512 * 128
OFF_PROF = 0x2800000
KNAME = 'interleave_layers__ssm_conv_h3__swiglu_ffn__prompt_kernel'
NWG = 256
LDS_BYTES = 160 * 1024
PROF = False
SPIN_MAX = 400000
L_S0, L_W, L_S1 = 0, 8, 16
L_XN0, L_H0, L_X2, L_XN1, L_H1 = 24, 88, 152, 216, 280
L_DELTA = L_XN1 - L_XN0
assert L_H1 - L_H0 == L_DELTA

P_Q, P_K, P_V, P_SH, P_SSK, P_SSD, P_BX, P_WG = 64, 66, 68, 70, 72, 74, 76, 78
P_WU, P_WD, P_OUT, P_DBG, P_WS = 80, 82, 84, 86, 88
SR_SYNC = 92
S_WAVE = 3
S_XCD, S_I = 90, 91
S_CH, S_PAR, S_CHB = 50, 51, 52
S_RB, S_FS, S_RT, S_CTP, S_LNRB = 53, 54, 55, 49, 63
SR_WGU = 4
SR_WD = 8
S_WOFF = 47
S_DOFF = 46
S_WCUR, S_WLIM = 100, 101
S_LAYER = 58
S_R1, S_R2 = 98, 99
VPROF = 255
V_LANE = 2
V_L16 = 3

import os
PF_A = int(os.environ.get('PF_A', 10)); PF_B = int(os.environ.get('PF_B', 18)); PF_A2 = int(os.environ.get('PF_A2', 10))
PF_A1 = PF_A
P0A = int(os.environ.get('P0A', 5)); P0B = int(os.environ.get('P0B', 8)); P1A = int(os.environ.get('P1A', 5)); P1B = int(os.environ.get('P1B', 8))
PB = int(os.environ.get('PB', 13)); PC = int(os.environ.get('PC', 19)); PD_ = int(os.environ.get('PD_', 23))
PF_XX = 0,0

class VM:
    def __init__(self): self.l = []
    def add(self, tag): self.l.append(tag)
    def wait(self, tag):
        idx = len(self.l) - 1 - self.l[::-1].index(tag)
        return f's_waitcnt vmcnt({min(len(self.l) - 1 - idx, 63)})'
vm = VM()

class LG:
    def __init__(self): self.l = []
    def add(self, tag): self.l.append(tag)
    def wait(self, tag):
        if tag not in self.l: return None
        idx = len(self.l) - 1 - self.l[::-1].index(tag)
        n = min(len(self.l) - 1 - idx, 15)
        self.l = self.l[len(self.l) - n:] if n else []
        return f's_waitcnt lgkmcnt({n})'

def srd(k, d, p, off, size):
    if off:
        k(f's_add_u32 s{d}, s{p}, {off:#x}')
        k(f's_addc_u32 s{d+1}, s{p+1}, 0')
    else:
        k(f's_mov_b32 s{d}, s{p}')
        k(f's_mov_b32 s{d+1}, s{p+1}')
    k(f's_mov_b32 s{d+2}, {size:#x}')
    k(f's_mov_b32 s{d+3}, 0x20000')

def srd_soff(k, d, p, off, soff, size):
    k(f's_add_u32 s{d}, s{p}, {off:#x}')
    k(f's_addc_u32 s{d+1}, s{p+1}, 0')
    k(f's_add_u32 s{d}, s{d}, s{soff}')
    k(f's_addc_u32 s{d+1}, s{d+1}, 0')
    k(f's_mov_b32 s{d+2}, {size:#x}')
    k(f's_mov_b32 s{d+3}, 0x20000')

def udiv(k, dst, src, d):
    m = (2**32 + d - 1) // d
    k(f's_mul_hi_u32 s{dst}, s{src}, {m:#x}')

MARKS = []
def mark(k, name):
    if not PROF: return
    i = len(MARKS); MARKS.append(name)
    k('s_memrealtime s[96:97]')
    k('s_waitcnt lgkmcnt(0)')
    k(f'v_writelane_b32 v{VPROF}, s96, {i}')

LOOPMARKS = []
def lmark(k, name):
    if not PROF: return
    i = len(LOOPMARKS); LOOPMARKS.append(name)
    assert i < 16
    k('s_memrealtime s[96:97]')
    k(f's_lshl_b32 s97, s{S_LAYER}, 4') if False else None
    k('s_waitcnt lgkmcnt(0)')
    k(f's_lshl_b32 s97, s{S_LAYER}, 4')
    k(f's_add_u32 m0, s97, {24 + i}')
    k('s_nop 0')
    k(f'v_writelane_b32 v{VPROF}, s96, m0')

_lab = [0]
def label(p):
    _lab[0] += 1
    return f'L_{p}_{_lab[0]}'

def signal(k, line_sreg=None, line=None, n=1):
    L = label('sig')
    k(f's_cmp_lg_u32 s{S_WAVE}, 0')
    k(f's_cbranch_scc1 {L}')
    k(f'v_lshlrev_b32 v250, 7, v{V_LANE}')
    if line_sreg is not None:
        k(f's_lshl_b32 s60, s{line_sreg}, 7')
        k('v_add_u32 v250, s60, v250')
    else:
        k(f'v_add_u32 v250, {line*128}, v250')
    k('v_mov_b32 v251, 1')
    k(f's_mov_b64 exec, {(1 << n) - 1}')
    k(f'buffer_atomic_add v251, v250, s[{SR_SYNC}:{SR_SYNC+3}], 0 offen sc1')
    k('s_mov_b64 exec, -1')
    k(f'{L}:')

def arrive(k, line_sreg=None, line=None, vmwait='s_waitcnt vmcnt(0)', n=1):
    k(vmwait)
    k('s_waitcnt lgkmcnt(0)')
    k('s_barrier')
    signal(k, line_sreg, line, n)

def wait(k, target, line_sreg=None, line=None, nlines=1, barrier=True):
    L = label('wt'); Lp = label('pl'); Ld = label('pd')
    k(f's_cmp_lg_u32 s{S_WAVE}, 0')
    k(f's_cbranch_scc1 {L}')
    k(f'v_lshlrev_b32 v250, 7, v{V_LANE}')
    if line_sreg is not None:
        k(f's_lshl_b32 s60, s{line_sreg}, 7')
        k('v_add_u32 v250, s60, v250')
    else:
        k(f'v_add_u32 v250, {line*128}, v250')
    k(f's_mov_b64 exec, {(1 << nlines) - 1}')
    k('s_mov_b32 s61, 0')
    k(f'{Lp}:')
    k(f'buffer_load_dword v251, v250, s[{SR_SYNC}:{SR_SYNC+3}], 0 offen sc1')
    k('s_add_u32 s61, s61, 1')
    k('s_waitcnt vmcnt(0)')
    k(f'v_cmp_le_u32 vcc, {target}, v251')
    k(f's_cmp_ge_u32 s61, {SPIN_MAX}')
    k(f's_cbranch_scc1 {Ld}')
    k('s_cmp_eq_u64 vcc, exec')
    k(f's_cbranch_scc0 {Lp}')
    k(f'{Ld}:')
    k('s_mov_b64 exec, -1')
    k(f'{L}:')
    if barrier: k('s_barrier')

def init_issue(k):
    L = label('ii')
    k(f's_cmp_lg_u32 s{S_WAVE}, 0')
    k(f's_cbranch_scc1 {L}')
    srd(k, 56, P_DBG, 0, 256)
    k('v_mov_b32 v248, 0')
    k('buffer_load_dword v249, v248, s[56:59], 0 offen sc1')
    k(f'{L}:')

def init_check(k):
    L = label('ic'); Lp = label('icp')
    k(f's_cmp_lg_u32 s{S_WAVE}, 0')
    k(f's_cbranch_scc1 {L}')
    k('v_readfirstlane_b32 s61, v249')
    k('s_cmp_lg_u32 s61, 0')
    k(f's_cbranch_scc1 {L}')
    wait_init(k)
    k(f'{L}:')

def wait_init(k):
    L = label('wi'); Lp = label('wip'); Ld = label('wid')
    k(f's_cmp_lg_u32 s{S_WAVE}, 0')
    k(f's_cbranch_scc1 {L}')
    srd(k, 56, P_DBG, 0, 256)
    k('v_mov_b32 v250, 0')
    k('s_mov_b64 exec, 1')
    k('s_mov_b32 s61, 0')
    k(f'{Lp}:')
    k('buffer_load_dword v251, v250, s[56:59], 0 offen sc1')
    k('s_add_u32 s61, s61, 1')
    k('s_waitcnt vmcnt(0)')
    k('v_cmp_ne_u32 vcc, 0, v251')
    k(f's_cmp_ge_u32 s61, {SPIN_MAX}')
    k(f's_cbranch_scc1 {Ld}')
    k('s_cmp_eq_u64 vcc, exec')
    k(f's_cbranch_scc0 {Lp}')
    k(f'{Ld}:')
    k('s_mov_b64 exec, -1')
    k(f'{L}:')

def ph_init(k):
    k(f's_cmp_ge_u32 s2, {NWG}')
    k('s_cbranch_scc1 L_end')
    k('s_load_dwordx16 s[64:79], s[0:1], 0')
    k('s_load_dwordx8 s[80:87], s[0:1], 64')
    k('s_load_dwordx2 s[88:89], s[0:1], 96')
    k('v_lshrrev_b32 v1, 6, v0')
    k(f'v_and_b32 v{V_LANE}, 63, v0')
    k(f'v_readfirstlane_b32 s{S_WAVE}, v1')
    k(f'v_lshlrev_b32 v{V_L16}, 4, v{V_LANE}')
    k(f's_and_b32 s{S_XCD}, s2, 7')
    k(f's_lshr_b32 s{S_I}, s2, 3')
    if PROF: k(f'v_mov_b32 v{VPROF}, 0')
    udiv(k, 15, S_I, 7)
    k('s_mul_i32 s28, s15, 7')
    k(f's_sub_u32 s{S_CTP}, s{S_I}, s28')
    k(f's_lshr_b32 s29, s{S_XCD}, 1')
    k('s_lshl_b32 s29, s29, 2')
    k(f's_add_u32 s{S_RB}, s29, s15')
    k(f's_and_b32 s30, s{S_XCD}, 1')
    k('s_mul_i32 s30, s30, 7')
    k(f's_add_u32 s{S_FS}, s30, s{S_CTP}')
    k(f's_lshl_b32 s29, s{S_XCD}, 2')
    k(f's_add_u32 s{S_RT}, s29, s15')
    k(f's_lshr_b32 s{S_LNRB}, s2, 4')
    k(f's_lshl_b32 s31, s{S_FS}, 2')
    k(f's_add_u32 s31, s31, s{S_WAVE}')
    k(f's_mul_i32 s{S_WOFF}, s31, 57344')
    k(f's_mul_i32 s{S_DOFF}, s{S_CTP}, 224*1024')
    k(f's_mul_i32 s31, s{S_WAVE}, 28*1024')
    k(f's_add_u32 s{S_DOFF}, s{S_DOFF}, s31')
    k(f's_and_b32 s{S_R1}, s{S_RB}, 3')
    k(f's_mul_i32 s{S_R1}, s{S_R1}, 7')
    k(f's_and_b32 s31, s{S_RT}, 3')
    k('s_mul_i32 s31, s31, 7')
    k(f's_lshl_b32 s{S_R2}, s{S_CTP}, 2')
    k(f's_add_u32 s{S_R2}, s{S_R2}, s31')
    k(f's_cmp_ge_u32 s{S_R2}, 28')
    k(f's_cselect_b32 s31, 28, 0')
    k(f's_sub_u32 s{S_R2}, s{S_R2}, s31')
    k('s_waitcnt lgkmcnt(0)')
    srd(k, SR_SYNC, P_WS, OFF_SYNC, SZ_SYNC)
    srd(k, SR_WGU, P_WS, OFF_WGU, SZ_WGU)
    srd(k, SR_WD, P_WS, OFF_WD, SZ_WD)
    mark(k, 'start')
    if PROF:
        k('s_memrealtime s[96:97]')
        k('s_waitcnt lgkmcnt(0)')
        k(f'v_writelane_b32 v{VPROF}, s96, 62')
    Lt = label('tlb')
    k(f's_cmp_lg_u32 s{S_WAVE}, 1')
    k(f's_cbranch_scc1 {Lt}')
    srd(k, 16, P_WS, 0, 0x2800000)
    srd(k, 20, P_OUT, 0, SZ_ACT)
    k(f'v_lshlrev_b32 v4, 21, v{V_LANE}')
    k('v_add_u32 v4, 0x1fff80, v4')
    k('v_mov_b32 v5, 0')
    k('s_mov_b64 exec, 0xfffff')
    k('buffer_load_dword v246, v4, s[16:19], 0 offen sc1')
    k('s_mov_b64 exec, 1')
    k('buffer_load_dword v247, v5, s[20:23], 0 offen sc1')
    k('s_mov_b64 exec, -1')
    k(f'{Lt}:')
    L = label('ini')
    k('s_cmp_lg_u32 s2, 255')
    k(f's_cbranch_scc1 {L}')
    k(f's_cmp_lg_u32 s{S_WAVE}, 3')
    k(f's_cbranch_scc1 {L}')
    for i in range(4): k(f'v_mov_b32 v{8+i}, 0')
    for i in range(3):
        k(f'buffer_store_dwordx4 v[8:11], v{V_L16}, s[{SR_SYNC}:{SR_SYNC+3}], 0 offen offset:{1024*i} sc1')
    srd(k, 56, P_DBG, 0, 256)
    k('s_waitcnt vmcnt(0)')
    k('v_mov_b32 v4, 0')
    k('v_mov_b32 v5, 1')
    k('s_mov_b64 exec, 1')
    k('buffer_store_dword v5, v4, s[56:59], 0 offen sc1')
    k('s_mov_b64 exec, -1')
    k('s_movk_i32 s12, 3072')
    Lz = label('zero')
    k(f'{Lz}:')
    k(f'buffer_store_dwordx4 v[8:11], v{V_L16}, s[{SR_SYNC}:{SR_SYNC+3}], s12 offen sc1')
    k('s_add_u32 s12, s12, 1024')
    k(f's_cmp_lt_u32 s12, {344*128}')
    k(f's_cbranch_scc1 {Lz}')
    k(f'{L}:')

CH_STRIDE = 37888
XRL_OFF = 33280
CONV_SCR = 2 * CH_STRIDE
YB_SCR = 92160
WST_OFF = 100352

def p0_weight_dma(k, rnd):
    fl = 34 + rnd; ds = 40 + rnd
    if rnd < 3:
        if rnd: k(f's_add_u32 s12, s48, {1024*rnd}')
        else: k('s_mov_b32 s12, s48')
        kind = 'gu'
    elif rnd == 3:
        k('s_mov_b32 s12, s48'); kind = 'wd'
    Lskip = None
    if rnd == 4:
        Lgu = label('w4g'); Lskip = label('w4s'); Ldone = label('w4d')
        k(f's_mov_b32 s{fl}, 2')
        k('s_cmp_ge_u32 s48, 608')
        k(f's_cbranch_scc1 {Lskip}')
        k('s_cmp_ge_u32 s48, 544')
        k(f's_cbranch_scc1 {Lgu}')
        k('s_add_u32 s12, s48, 1024')
        _w_dma(k, 'wd', rnd, fl, ds)
        k(f's_branch {Ldone}')
        k(f'{Lgu}:')
        k('s_add_u32 s12, s48, 3072-544')
        _w_dma(k, 'gu', rnd, fl, ds)
        k(f's_branch {Ldone}')
        k(f'{Lskip}:')
        k(f's_mul_i32 s13, s{S_WAVE}, 5120')
        k(f's_add_u32 s13, s13, {WST_OFF + 1024*rnd}')
        k('s_mov_b32 m0, s13')
        srd(k, 16, P_WD, 0, 0)
        k('buffer_load_dwordx4 v61, s[16:19], 0 offen lds')
        k(f'{Ldone}:')
    else:
        _w_dma(k, kind, rnd, fl, ds)

def _w_dma(k, kind, rnd, fl, ds):
    k(f's_mul_i32 s13, s{S_WAVE}, 5120')
    k(f's_add_u32 s13, s13, {WST_OFF + 1024*rnd}')
    k('s_mov_b32 m0, s13')
    if kind == 'gu':
        udiv(k, 14, 12, 56)
        k('s_mul_i32 s15, s14, 56')
        k('s_sub_u32 s15, s12, s15')
        k('s_lshr_b32 s28, s15, 1')
        k('s_mul_i32 s28, s28, 16*3584')
        k('s_lshl_b32 s29, s14, 6')
        k('s_add_u32 s28, s28, s29')
        k('s_and_b32 s15, s15, 1')
        k('s_cmp_eq_u32 s15, 0')
        k(f's_cselect_b32 s16, s{P_WG}, s{P_WU}')
        k(f's_cselect_b32 s17, s{P_WG+1}, s{P_WU+1}')
        k(f's_mov_b32 s18, {448*1792*2:#x}')
        k('s_mov_b32 s19, 0x20000')
        k('buffer_load_dwordx4 v60, s[16:19], s28 offen lds')
        k(f's_lshl_b32 s{ds}, s12, 10')
        k(f's_mov_b32 s{fl}, 0')
    else:
        udiv(k, 14, 12, 112)
        k('s_mul_i32 s15, s14, 112')
        k('s_sub_u32 s15, s12, s15')
        k('s_mul_i32 s28, s15, 16*896')
        k('s_lshl_b32 s29, s14, 6')
        k('s_add_u32 s28, s28, s29')
        srd(k, 16, P_WD, 0, 1792 * 448 * 2)
        k('buffer_load_dwordx4 v61, s[16:19], s28 offen lds')
        k(f's_lshl_b32 s{ds}, s12, 10')
        k(f's_mov_b32 s{fl}, 1')

def ph_p0(k):
    k('s_lshl_b32 s48, s2, 2')
    k(f's_add_u32 s48, s48, s{S_WAVE}')
    Lnokv = label('nokv')
    ln_addr(k)
    srd(k, 28, P_Q, 0, SZ_ACT)
    k('s_mul_i32 s15, s2, 8*896')
    k('v_mul_u32_u24 v9, 896, v33')
    k('v_lshl_add_u32 v9, v5, 4, v9')
    k('v_add_u32 v9, s15, v9')
    k('v_add_u32 v10, 128, v9')
    k('v_cndmask_b32 v10, v8, v10, s[38:39]')
    k('s_cmp_ge_u32 s2, 224')
    k(f's_cbranch_scc1 {Lnokv}')
    udiv(k, 12, 2, 7)
    k('s_mul_i32 s13, s12, 7')
    k('s_sub_u32 s13, s2, s13')
    k('s_mov_b32 s62, s13')
    k(f'v_and_b32 v40, 7, v{V_LANE}')
    k(f'v_lshrrev_b32 v1, 3, v{V_LANE}')
    k(f's_lshl_b32 s14, s{S_WAVE}, 5')
    k('s_lshl_b32 s15, s13, 7')
    k('s_add_u32 s14, s14, s15')
    k('v_lshl_add_u32 v41, v1, 2, s14')
    k('s_mul_i32 s15, s12, 64*896')
    k('v_mul_u32_u24 v42, 8*896, v40')
    k('v_add3_u32 v42, v42, v41, s15')
    k('v_add_u32 v43, 5*896, v42')
    k('v_subrev_u32 v44, 3*896, v42')
    k('v_lshlrev_b32 v45, 2, v41')
    srd(k, 16, P_K, 0, SZ_ACT); srd(k, 20, P_V, 0, SZ_ACT); srd(k, 24, P_SH, 0, 448 * 8)
    K0 = 16; V0 = 48
    for j in range(3): k(f'buffer_load_dword v{K0+j}, v44, s[16:19], 0 offen offset:{896*j}')
    for j in range(5): k(f'buffer_load_dword v{K0+3+j}, v42, s[16:19], 0 offen offset:{896*j}')
    for j in range(3): k(f'buffer_load_dword v{K0+8+j}, v43, s[16:19], 0 offen offset:{896*j}')
    for j in range(5): k(f'buffer_load_dword v{V0+j}, v42, s[20:23], 0 offen offset:{896*j}')
    for j in range(3): k(f'buffer_load_dword v{V0+5+j}, v43, s[20:23], 0 offen offset:{896*j}')
    k('buffer_load_dwordx4 v[36:39], v45, s[24:27], 0 offen')
    k('s_lshl_b32 s13, s13, 6')
    k('s_lshl_b32 s14, s12, 1')
    k('s_add_u32 s13, s13, s14')
    k(f's_lshr_b32 s14, s{S_WAVE}, 1')
    k(f's_and_b32 s{S_PAR}, s{S_WAVE}, 1')
    k(f's_add_u32 s{S_CH}, s13, s14')
    k(f's_mul_i32 s{S_CHB}, s14, {CH_STRIDE}')
    k(f's_lshl_b32 s16, s{S_CH}, 12')
    srd_soff(k, 20, P_SSK, 0, 16, 4096)
    k(f's_lshl_b32 s17, s{S_PAR}, 11')
    k(f'v_add_u32 v92, s17, v{V_L16}')
    k('v_subrev_u32 v93, 16, v92')
    for r in range(2):
        k(f'buffer_load_dwordx4 v[{96+8*r}:{99+8*r}], v93, s[20:23], 0 offen offset:{1024*r}')
        k(f'buffer_load_dwordx4 v[{100+8*r}:{103+8*r}], v92, s[20:23], 0 offen offset:{1024*r}')
    k('buffer_load_dwordx4 v[232:235], v9, s[28:31], 0 offen')
    k('buffer_load_dwordx4 v[236:239], v10, s[28:31], 0 offen')
    k('v_lshlrev_b32 v46, 11, v41')
    k('s_lshl_b32 s32, s12, 7')
    k('v_lshlrev_b32 v47, 4, v40')
    k('v_add_u32 v47, s32, v47')
    k('v_sub_u32 v47, 4080, v47')
    k('v_add_u32 v47, v46, v47')
    srd(k, 28, P_WS, OFF_XR, SZ_XR)
    k('s_movk_i32 s33, 4096')
    mark(k, 'p0 issued')
    k('s_waitcnt vmcnt(6)')
    SK = 56
    for c in range(2):
        k(f'v_lshlrev_b32 v{SK+4*c+0}, 16, v{36+2*c}')
        k(f'v_and_b32 v{SK+4*c+1}, 0xffff0000, v{36+2*c}')
        k(f'v_lshlrev_b32 v{SK+4*c+2}, 16, v{37+2*c}')
        k(f'v_and_b32 v{SK+4*c+3}, 0xffff0000, v{37+2*c}')
    KF = 64
    for c in range(2):
        for j in range(11):
            if c == 0: k(f'v_lshlrev_b32 v{KF+j}, 16, v{K0+j}')
            else: k(f'v_and_b32 v{KF+j}, 0xffff0000, v{K0+j}')
        for t in range(8):
            if c == 0: k(f'v_lshlrev_b32 v{112+t}, 16, v{V0+t}')
            else: k(f'v_and_b32 v{112+t}, 0xffff0000, v{V0+t}')
        for t in range(8): k(f'v_mul_f32 v{76+t}, v{SK+4*c+3}, v{KF+t}')
        for t in range(8): k(f'v_fmac_f32 v{76+t}, v{SK+4*c+2}, v{KF+t+1}')
        for t in range(8): k(f'v_fmac_f32 v{76+t}, v{SK+4*c+1}, v{KF+t+2}')
        for t in range(8): k(f'v_fmac_f32 v{76+t}, v{SK+4*c+0}, v{KF+t+3}')
        for t in range(8): k(f'v_mul_f32 v{76+t}, v{76+t}, v{112+t}')
        o = 84 + 4 * c
        for i in range(4):
            k(f'v_cvt_pk_bf16_f32 v{o+i}, v{76+7-2*i}, v{76+6-2*i}')
        if c == 0: k(f'buffer_store_dwordx4 v[{o}:{o+3}], v47, s[28:31], 0 offen sc1')
        else: k(f'buffer_store_dwordx4 v[{o}:{o+3}], v47, s[28:31], s33 offen sc1')
    mark(k, 'kv stored')
    init_issue(k)
    Lj = label('p0j')
    k(f's_branch {Lj}')
    k(f'{Lnokv}:')
    k('buffer_load_dwordx4 v[232:235], v9, s[28:31], 0 offen')
    k('buffer_load_dwordx4 v[236:239], v10, s[28:31], 0 offen')
    k(f'{Lj}:')

def ph_p0_wdma(k):
    k(f'v_lshrrev_b32 v62, 2, v{V_LANE}')
    k(f'v_and_b32 v63, 3, v{V_LANE}')
    k('v_lshlrev_b32 v63, 4, v63')
    k('v_mul_u32_u24 v60, 3584, v62')
    k('v_add_u32 v60, v60, v63')
    k('v_mul_u32_u24 v61, 896, v62')
    k('v_add_u32 v61, v61, v63')
    for rnd in range(5): p0_weight_dma(k, rnd)
    mark(k, 'p0 dma issued')

def ph_p0_wfinish(k):
    k('s_waitcnt vmcnt(0)')
    k(f'v_and_b32 v62, 15, v{V_LANE}')
    k(f'v_lshrrev_b32 v63, 4, v{V_LANE}')
    k('v_lshrrev_b32 v64, 2, v62')
    k('v_and_b32 v65, 3, v62')
    k('v_lshlrev_b32 v65, 3, v65')
    k('v_and_b32 v66, 1, v63')
    k('v_lshl_add_u32 v65, v66, 5, v65')
    k('v_lshl_add_u32 v65, v64, 6, v65')
    k('v_lshrrev_b32 v63, 1, v63')
    k(f's_mul_i32 s13, s{S_WAVE}, 5120')
    k(f's_add_u32 s13, s13, {WST_OFF}')
    k('v_add_u32 v65, s13, v65')
    k('v_lshl_add_u32 v66, v63, 9, v65')
    k('v_lshl_add_u32 v67, v63, 8, v65')
    for rnd in range(5):
        fl = 34 + rnd
        o = 112 + 4 * rnd
        Lwd = label('trw'); Le = label('tre')
        if rnd < 3:
            k(f'ds_read_b64_tr_b16 v[{o}:{o+1}], v66 offset:{1024*rnd}')
            k(f'ds_read_b64_tr_b16 v[{o+2}:{o+3}], v66 offset:{1024*rnd + 256}')
        elif rnd == 3:
            k(f'ds_read_b64_tr_b16 v[{o}:{o+1}], v67 offset:{1024*rnd}')
            k(f'ds_read_b64_tr_b16 v[{o+2}:{o+3}], v67 offset:{1024*rnd + 512}')
        else:
            k(f's_cmp_eq_u32 s{fl}, 1')
            k(f's_cbranch_scc1 {Lwd}')
            k(f'ds_read_b64_tr_b16 v[{o}:{o+1}], v66 offset:{1024*rnd}')
            k(f'ds_read_b64_tr_b16 v[{o+2}:{o+3}], v66 offset:{1024*rnd + 256}')
            k(f's_branch {Le}')
            k(f'{Lwd}:')
            k(f'ds_read_b64_tr_b16 v[{o}:{o+1}], v67 offset:{1024*rnd}')
            k(f'ds_read_b64_tr_b16 v[{o+2}:{o+3}], v67 offset:{1024*rnd + 512}')
            k(f'{Le}:')
    k('s_waitcnt lgkmcnt(0)')
    for rnd in range(4):
        o = 112 + 4 * rnd
        sr = SR_WGU if rnd < 3 else SR_WD
        k(f'buffer_store_dwordx4 v[{o}:{o+3}], v{V_L16}, s[{sr}:{sr+3}], s{40+rnd} offen sc1')
    Lwd = label('stw'); Le = label('ste')
    k('s_cmp_eq_u32 s38, 2')
    k(f's_cbranch_scc1 {Le}')
    k('s_cmp_eq_u32 s38, 1')
    k(f's_cbranch_scc1 {Lwd}')
    k(f'buffer_store_dwordx4 v[128:131], v{V_L16}, s[{SR_WGU}:{SR_WGU+3}], s44 offen sc1')
    k(f's_branch {Le}')
    k(f'{Lwd}:')
    k(f'buffer_store_dwordx4 v[128:131], v{V_L16}, s[{SR_WD}:{SR_WD+3}], s44 offen sc1')
    k(f'{Le}:')
    mark(k, 'w stored')

def ph_conv_prep(k):
    k(f'v_add_u32 v6, s{S_CHB}, v92')
    k('v_add_u32 v6, 16, v6')
    for i in range(4): k(f'v_mov_b32 v{8+i}, 0')
    La = label('cz'); Lb = label('cz')
    k(f's_cmp_eq_u32 s{S_PAR}, 0')
    k(f's_cbranch_scc0 {La}')
    k(f'v_mul_u32_u24 v7, 4160, v{V_LANE}')
    k(f'v_add_u32 v7, s{S_CHB}, v7')
    k(f'v_cmp_gt_u32 vcc, 8, v{V_LANE}')
    k('s_and_saveexec_b64 s[30:31], vcc')
    k('ds_write_b128 v7, v[8:11]')
    k('s_mov_b64 exec, s[30:31]')
    k(f's_branch {Lb}')
    k(f'{La}:')
    k(f'v_add_u32 v7, s{S_CHB}, v{V_L16}')
    k(f'v_add_u32 v7, {XRL_OFF + 4096}, v7')
    k(f'v_cmp_gt_u32 vcc, 30, v{V_LANE}')
    k('s_and_saveexec_b64 s[30:31], vcc')
    k('ds_write_b128 v7, v[8:11]')
    k('s_mov_b64 exec, s[30:31]')
    k(f'{Lb}:')
    for r in range(2):
        W = 96 + 8 * r
        for c in range(8):
            s = c + 1
            T = 16 + 4 * (c % 4) + 16 * r
            if s % 2 == 1:
                kk = (s - 1) // 2
                for i in range(4): k(f'v_alignbit_b32 v{T+i}, v{W+kk+i+1}, v{W+kk+i}, 16')
                src = T
            else:
                kk = s // 2
                if kk % 2 == 0: src = W + kk
                else:
                    for i in range(4): k(f'v_mov_b32 v{T+i}, v{W+kk+i}')
                    src = T
            k(f'ds_write_b128 v6, v[{src}:{src+3}] offset:{c*4160 + 1024*r}')

def g1_wload(k, ks):
    out = []
    if ks % 2 == 0: out.append(f's_add_u32 s45, s{S_WOFF}, {ks*2048}')
    o = (ks % 2) * 2048
    out.append(f'buffer_load_dwordx4 a[{8*ks}:{8*ks+3}], v{V_L16}, s[{SR_WGU}:{SR_WGU+3}], s45 offen offset:{o} sc1')
    out.append(f'buffer_load_dwordx4 a[{8*ks+4}:{8*ks+7}], v{V_L16}, s[{SR_WGU}:{SR_WGU+3}], s45 offen offset:{o+1024} sc1')
    return out

class Cap:
    def __init__(self): self.L = []
    def __call__(self, x): self.L.append(x)

def sprinkle(k, lines, fillers, tagf, skip_head=0, skip_tail=0):
    n = len(lines) - skip_head - skip_tail
    fi = 0; nf = len(fillers)
    masked = False
    for i, ln in enumerate(lines):
        if isinstance(ln, tuple): emit_vm(k, ln[0], ln[1])
        else:
            k(ln)
            if 'saveexec' in ln: masked = True
            if ln.startswith('s_mov_b64 exec'): masked = False
        j = i - skip_head + 1
        if j > 0 and n > 0 and not masked:
            tgt = min(nf, (nf * j + n - 1) // n)
            while fi < tgt:
                for ins in fillers[fi][0]: emit_vm(k, ins, fillers[fi][1])
                fi += 1
    while fi < nf:
        for ins in fillers[fi][0]: emit_vm(k, ins, fillers[fi][1])
        fi += 1

def g1_pf_groups(ks0, ks1):
    out = []
    for ks in range(ks0, ks1):
        base = ks - (ks % 2); o = (ks % 2) * 2048
        pre = [f's_add_u32 s45, s{S_WOFF}, {base*2048}'] if (ks % 2 == 0 or ks == ks0) else []
        out.append((pre + [f'buffer_load_dwordx4 a[{8*ks}:{8*ks+3}], v{V_L16}, s[{SR_WGU}:{SR_WGU+3}], s45 offen offset:{o} sc1'], ('W', ks)))
        out.append(([f'buffer_load_dwordx4 a[{8*ks+4}:{8*ks+7}], v{V_L16}, s[{SR_WGU}:{SR_WGU+3}], s45 offen offset:{o+1024} sc1'], ('W', ks)))
    return out

def emit_vm(k, ins, tag):
    k(ins)
    if ins.startswith('buffer_'): vm.add(tag)

def g1_wprefetch(k, ks0, ks1):
    for grp, tag in g1_pf_groups(ks0, ks1):
        for ins in grp: emit_vm(k, ins, tag)

def l2_warm(k, sr, nbytes_half, whole=False):
    per = nbytes_half // 16
    assert per % 1024 == 0
    n = per // 1024
    k(f's_sub_u32 s12, s{S_I}, 28')
    k('s_lshl_b32 s12, s12, 2')
    k(f's_add_u32 s12, s12, s{S_WAVE}')
    k(f's_mul_i32 s12, s12, {per}')
    if not whole:
        k(f's_and_b32 s13, s{S_XCD}, 1')
        k(f's_mul_i32 s13, s13, {nbytes_half}')
        k('s_add_u32 s12, s12, s13')
    Ll = label('warm')
    k(f's_mov_b32 s13, {n // 4}')
    k(f'{Ll}:')
    for j in range(4):
        k(f'buffer_load_dwordx4 v[{16+4*j}:{19+4*j}], v{V_L16}, s[{sr}:{sr+3}], s12 offen offset:{1024*j} sc1')
    k('s_add_u32 s12, s12, 4096')
    k('s_sub_u32 s13, s13, 1')
    k('s_cmp_lg_u32 s13, 0')
    k('s_waitcnt vmcnt(24)')
    k(f's_cbranch_scc1 {Ll}')
    for j in range(n % 4):
        k(f'buffer_load_dwordx4 v[{16+4*j}:{19+4*j}], v{V_L16}, s[{sr}:{sr+3}], s12 offen offset:{1024*j} sc1')

def ph_conv(k):
    srd(k, 16, P_WS, OFF_XR, SZ_XR)
    srd(k, 24, P_WS, OFF_YT, SZ_ACT)
    k(f's_lshl_b32 s20, s{S_CH}, 12')
    k(f's_lshl_b32 s21, s{S_PAR}, 11')
    k('s_add_u32 s20, s20, s21')
    k(f'buffer_load_dwordx4 v[16:19], v{V_L16}, s[16:19], s20 offen sc1')
    k(f'buffer_load_dwordx4 v[20:23], v{V_L16}, s[16:19], s20 offen offset:1024 sc1')
    k(f's_and_b32 s28, s{S_CH}, 0xfffffffe')
    k('s_lshl_b32 s28, s28, 1')
    k(f's_load_dword s29, s[{P_SSD}:{P_SSD+1}], s28')
    k(f's_add_u32 s21, s21, s{S_CHB}')
    k(f's_add_u32 s21, s21, {XRL_OFF}')
    k(f'v_add_u32 v4, s21, v{V_L16}')
    k(f'v_and_b32 v5, 15, v{V_LANE}')
    k(f'v_lshrrev_b32 v6, 4, v{V_LANE}')
    k('v_lshlrev_b32 v7, 4, v6')
    k('v_lshlrev_b32 v8, 5, v5')
    k('v_sub_u32 v7, v7, v8')
    k(f's_lshl_b32 s22, s{S_PAR}, 6')
    k(f's_add_u32 s22, s22, s{S_CHB}')
    k(f's_add_u32 s22, s22, {XRL_OFF + 544 - 64}')
    k('v_add_u32 v7, s22, v7')
    k('v_and_b32 v12, 7, v5')
    k('v_mul_u32_u24 v12, 4160, v12')
    k('v_lshrrev_b32 v13, 3, v5')
    k('v_add_u32 v13, v6, v13')
    k('v_lshlrev_b32 v13, 4, v13')
    k('v_add_u32 v12, v12, v13')
    k(f's_lshl_b32 s22, s{S_PAR}, 6')
    k(f's_add_u32 s22, s22, s{S_CHB}')
    k('v_add_u32 v12, s22, v12')
    k('s_waitcnt vmcnt(0)')
    k('ds_write_b128 v4, v[16:19]')
    k('ds_write_b128 v4, v[20:23] offset:1024')
    k('s_waitcnt lgkmcnt(0)')
    k('s_barrier')
    mark(k, 'conv:x in lds')
    ph_p0_wfinish(k)
    ACC = 16; FR = 48; AR = 176; NA = 8
    order = list(range(31, -1, -1))
    def frags(jj): return [(at, 4 * at - jj + 3) for at in range(jj // 4, 8)]
    pend = []
    def issue(tag, txt): k(txt); pend.append(tag)
    def wait_for(tags):
        idx = [pend.index(t) for t in tags if t in pend]
        if idx:
            n = min(len(pend) - 1 - max(idx), 15)
            k(f's_waitcnt lgkmcnt({n})')
            pend[:] = pend[len(pend) - n:] if n > 0 else []
    loadedF = set()
    def issueA(idx):
        jj = order[idx]; r = AR + 4 * (idx % NA)
        issue(('A', jj), f'ds_read_b128 v[{r}:{r+3}], v12 offset:{128*jj}')
    def issueF(idx):
        for at, n in frags(order[idx]):
            if n not in loadedF:
                loadedF.add(n)
                issue(('F', n), f'ds_read_b128 v[{FR+4*n}:{FR+4*n+3}], v7 offset:{128*(31-n)}')
    LA = 4
    for idx in range(LA): issueA(idx); issueF(idx)
    first = set()
    nm = 0
    for idx, jj in enumerate(order):
        if idx + LA < 32: issueA(idx + LA); issueF(idx + LA)
        wait_for([('A', jj)] + [('F', n) for _, n in frags(jj)])
        r = AR + 4 * (idx % NA)
        for at, n in frags(jj):
            c = f'v[{ACC+4*at}:{ACC+4*at+3}]' if at in first else '0'
            first.add(at)
            k(f'v_mfma_f32_16x16x32_bf16 v[{ACC+4*at}:{ACC+4*at+3}], v[{r}:{r+3}], v[{FR+4*n}:{FR+4*n+3}], {c}')
    mark(k, 'conv:mfma done')
    k(f's_lshl_b32 s41, s{S_WAVE}, 12')
    k(f's_add_u32 s41, s41, {CONV_SCR}')
    k(f'v_add_u32 v8, s41, v{V_L16}')
    k(f's_xor_b32 s42, s{S_WAVE}, 1')
    k('s_lshl_b32 s42, s42, 12')
    k(f's_add_u32 s42, s42, {CONV_SCR}')
    k(f'v_add_u32 v9, s42, v{V_L16}')
    k('v_lshlrev_b32 v10, 5, v5')
    k('v_lshl_add_u32 v10, v6, 3, v10')
    k(f's_lshl_b32 s43, s{S_PAR}, 11')
    k(f's_sub_u32 s43, s{S_CHB}, s43')
    k(f's_add_u32 s43, s43, {XRL_OFF + 4088 - 512*3}')
    k('v_sub_u32 v11, s43, v10')
    k('v_and_b32 v13, 1, v6')
    k('v_lshlrev_b32 v13, 5, v13')
    k('v_lshl_add_u32 v13, v5, 1, v13')
    k('v_lshrrev_b32 v14, 1, v6')
    k('v_add_u32 v13, v13, v14')
    k(f's_lshl_b32 s44, s{S_PAR}, 7')
    k('v_add_u32 v13, s44, v13')
    k('v_lshlrev_b32 v13, 5, v13')
    k(f's_lshr_b32 s44, s{S_WAVE}, 1')
    k('s_lshl_b32 s44, s44, 4')
    k(f's_add_u32 s44, s44, {YB_SCR}')
    k('v_add_u32 v13, s44, v13')
    k(f's_lshl_b32 s44, s{S_WAVE}, 11')
    k(f's_add_u32 s44, s44, {YB_SCR}')
    k(f'v_add_u32 v14, s44, v{V_L16}')
    k(f'v_lshrrev_b32 v10, 1, v{V_LANE}')
    k('v_mul_u32_u24 v10, 7168, v10')
    k(f'v_and_b32 v15, 1, v{V_LANE}')
    k('v_lshl_add_u32 v10, v15, 4, v10')
    k(f's_and_b32 s44, s{S_CH}, 0xfffffffe')
    k('s_lshl_b32 s44, s44, 4')
    k(f's_mul_i32 s45, s{S_WAVE}, 64*7168')
    k('s_add_u32 s44, s44, s45')
    k('v_add_u32 v10, s44, v10')
    La = label('cp'); Lb = label('cp')
    k(f's_cmp_eq_u32 s{S_PAR}, 0')
    k(f's_cbranch_scc0 {La}')
    for i in range(4): k(f'ds_write_b128 v8, v[{ACC+16+4*i}:{ACC+16+4*i+3}] offset:{1024*i}')
    k(f's_branch {Lb}')
    k(f'{La}:')
    k('s_nop 7')
    for i in range(4): k(f'ds_write_b128 v8, v[{ACC+4*i}:{ACC+4*i+3}] offset:{1024*i}')
    for i in range(16): k(f'v_mov_b32 v{ACC+i}, v{ACC+16+i}')
    k(f'{Lb}:')
    k('s_waitcnt lgkmcnt(0)')
    k('s_lshl_b32 s36, s29, 16')
    k('s_and_b32 s37, s29, 0xffff0000')
    k(f's_and_b32 s34, s{S_CH}, 1')
    k('s_cmp_eq_u32 s34, 0')
    k('s_cselect_b32 s36, s36, s37')
    k('s_waitcnt vmcnt(0)')
    k('s_barrier')
    k(f's_add_u32 s59, s{S_XCD}, {L_W}')
    signal(k, line_sreg=59)
    for i in range(4): k(f'ds_read_b128 v[{48+4*i}:{51+4*i}], v9 offset:{1024*i}')
    for i in range(4): k(f'ds_read_b64 v[{64+2*i}:{65+2*i}], v11 offset:{512*(3-i)}')
    k('s_waitcnt lgkmcnt(0)')
    for i in range(4):
        a = ACC + 4 * i
        for r in range(4): k(f'v_add_f32 v{a+r}, v{a+r}, v{48+4*i+r}')
        x0, x1 = 64 + 2 * i, 65 + 2 * i
        k(f'v_and_b32 v72, 0xffff0000, v{x1}')
        k(f'v_lshlrev_b32 v73, 16, v{x1}')
        k(f'v_and_b32 v74, 0xffff0000, v{x0}')
        k(f'v_lshlrev_b32 v75, 16, v{x0}')
        for r in range(4): k(f'v_fmac_f32 v{a+r}, s36, v{72+r}')
        k(f'v_cvt_pk_bf16_f32 v{76+2*i}, v{a}, v{a+1}')
        k(f'v_cvt_pk_bf16_f32 v{77+2*i}, v{a+2}, v{a+3}')
    for p in range(2):
        o = 76 + 4 * p
        k(f'v_permlane16_swap_b32 v{o}, v{o+2}')
        k(f'v_permlane16_swap_b32 v{o+1}, v{o+3}')
        k(f'ds_write_b128 v13, v[{o}:{o+3}] offset:{2048*p}')
    k('s_waitcnt lgkmcnt(0)')
    k('s_barrier')
    k('ds_read_b128 v[84:87], v14')
    k('ds_read_b128 v[88:91], v14 offset:1024')
    k('s_waitcnt lgkmcnt(1)')
    emit_vm(k, 'buffer_store_dwordx4 v[84:87], v10, s[24:27], 0 offen sc1', ('YT', 0))
    k('s_mov_b32 s45, 32*7168')
    k('s_waitcnt lgkmcnt(0)')
    emit_vm(k, 'buffer_store_dwordx4 v[88:91], v10, s[24:27], s45 offen sc1', ('YT', 1))

def wave_reduce8(k, regs, tmp):
    for r in regs: k(f'v_add_f32_dpp v{r}, v{r}, v{r} row_ror:8 row_mask:0xf bank_mask:0xf')
    for r, t in zip(regs, tmp): k(f'v_mov_b32 v{t}, v{r}')
    for r, t in zip(regs, tmp): k(f'v_permlane16_swap_b32 v{r}, v{t}')
    for r, t in zip(regs, tmp): k(f'v_add_f32 v{r}, v{r}, v{t}')
    for r, t in zip(regs, tmp): k(f'v_mov_b32 v{t}, v{r}')
    for r, t in zip(regs, tmp): k(f'v_permlane32_swap_b32 v{r}, v{t}')
    for r, t in zip(regs, tmp): k(f'v_add_f32 v{r}, v{r}, v{t}')

LN_BASE = 122880
LN_PART = LN_BASE + 56 * 144
X_ = 16; Y_ = 24; XF = 36; YF = 52; T_ = 68

def ln_unpack(k, dst, src, n):
    for i in range(n):
        k(f'v_lshlrev_b32 v{dst+2*i}, 16, v{src+i}')
        k(f'v_and_b32 v{dst+2*i+1}, 0xffff0000, v{src+i}')

def ln_stats(k, buf):
    k(f'v_add_f32 v84, v{XF}, v{XF+1}')
    k(f'v_mul_f32 v85, v{XF}, v{XF}')
    k(f'v_add_f32 v86, v{XF+2}, v{XF+3}')
    k(f'v_mul_f32 v87, v{XF+1}, v{XF+1}')
    k(f'v_fmac_f32 v85, v{XF+2}, v{XF+2}')
    k(f'v_fmac_f32 v87, v{XF+3}, v{XF+3}')
    for i in range(4, 16, 2):
        k(f'v_add_f32 v84, v84, v{XF+i}')
        k(f'v_add_f32 v86, v86, v{XF+i+1}')
        k(f'v_fmac_f32 v85, v{XF+i}, v{XF+i}')
        k(f'v_fmac_f32 v87, v{XF+i+1}, v{XF+i+1}')
    k('v_add_f32 v84, v84, v86')
    k('v_add_f32 v85, v85, v87')
    wave_reduce8(k, [84, 85], [86, 87])
    k(f'v_cmp_gt_u32 vcc, 8, v{V_LANE}')
    k('s_and_saveexec_b64 s[40:41], vcc')
    k(f'ds_write_b64 v32, v[84:85] offset:{256*buf}')
    k('s_mov_b64 exec, s[40:41]')
    k('s_waitcnt lgkmcnt(0)')
    k('s_barrier')
    for w in range(4): k(f'ds_read_b64 v[{88+2*w}:{89+2*w}], v15 offset:{256*buf + 64*w}')

def ln_finish(k):
    k('v_add_f32 v88, v88, v90'); k('v_add_f32 v89, v89, v91')
    k('v_add_f32 v92, v92, v94'); k('v_add_f32 v93, v93, v95')
    k('v_add_f32 v88, v88, v92'); k('v_add_f32 v89, v89, v93')
    k('v_mul_f32 v84, 0x3b124925, v88')
    k('v_mul_f32 v85, 0x3b124925, v89')
    k('v_fma_f32 v85, -v84, v84, v85')
    k('v_max_f32 v85, 0, v85')
    k('v_add_f32 v85, 0x3727c5ac, v85')
    k('v_rsq_f32 v85, v85')
    k('v_mul_f32 v86, v84, v85')

def ln_addr(k):
    k(f'v_and_b32 v33, 7, v{V_LANE}')
    k(f'v_lshrrev_b32 v4, 3, v{V_LANE}')
    k(f's_mul_i32 s12, s{S_WAVE}, 14')
    k('v_add_u32 v5, s12, v4')
    k('s_lshr_b32 s13, s2, 2')
    k('s_mul_i32 s13, s13, 28672')
    k('s_and_b32 s14, s2, 3')
    k('s_lshl_b32 s14, s14, 7')
    k('s_add_u32 s13, s13, s14')
    k('v_lshlrev_b32 v6, 9, v5')
    k('v_lshl_add_u32 v6, v33, 4, v6')
    k('v_add_u32 v6, s13, v6')
    k('v_add_u32 v7, 4096, v6')
    k('v_mov_b32 v8, 0x80000000')
    k('v_cmp_gt_u32 vcc, 6, v4')
    k('v_cmp_gt_u32 s[38:39], 6, v4')
    k('v_cndmask_b32 v7, v8, v7, vcc')
    k('v_lshlrev_b32 v15, 3, v33')
    k(f'v_add_u32 v15, {LN_PART}, v15')
    k(f's_lshl_b32 s37, s{S_WAVE}, 6')
    k('v_add_u32 v32, s37, v15')

def ph_ln1_pre(k):
    ln_addr(k)
    k('v_lshlrev_b32 v11, 4, v0')
    k('v_add_u32 v12, 4096, v11')
    k('v_cmp_gt_u32 vcc, 192, v0')
    k('v_cndmask_b32 v12, v8, v12, vcc')
    k('v_lshrrev_b32 v13, 3, v0')
    k('v_add_u32 v13, v13, v0')
    k('v_lshlrev_b32 v13, 4, v13')
    k(f'v_add_u32 v13, {LN_BASE}, v13')
    k('v_mul_u32_u24 v14, 144, v5')
    k('v_lshl_add_u32 v14, v33, 1, v14')
    k(f'v_add_u32 v14, {LN_BASE}, v14')
    ln_unpack(k, XF, 232, 8)
    ln_stats(k, 0)
    k('s_waitcnt lgkmcnt(0)')
    ln_finish(k)
    for j in range(16): k(f'v_fma_f32 v{T_+j}, v{XF+j}, v85, -v86')

def ln_tail(k, sr_x, sr_xn, pf_range, tagp):
    for j in range(16): k(f'v_fmac_f32 v{XF+j}, v{T_+j}, v{YF+j}')
    for i in range(8): k(f'v_cvt_pk_bf16_f32 v{X_+i}, v{XF+2*i}, v{XF+2*i+1}')
    ln_unpack(k, XF, X_, 8)
    emit_vm(k, f'buffer_store_dwordx4 v[{X_}:{X_+3}], v6, s[{sr_x}:{sr_x+3}], 0 offen sc1', (tagp, 'x0'))
    emit_vm(k, f'buffer_store_dwordx4 v[{X_+4}:{X_+7}], v7, s[{sr_x}:{sr_x+3}], 0 offen sc1', (tagp, 'x1'))
    ln_stats(k, 1)
    k('s_waitcnt lgkmcnt(0)')
    ln_finish(k)
    for j in range(16): k(f'v_fma_f32 v{T_+j}, v{XF+j}, v85, -v86')
    for i in range(8): k(f'v_cvt_pk_bf16_f32 v{YF+i}, v{T_+2*i}, v{T_+2*i+1}')
    emit_vm(k, f'buffer_store_dwordx4 v[{YF}:{YF+3}], v6, s[{sr_xn}:{sr_xn+3}], 0 offen sc1', (tagp, 'n0'))
    emit_vm(k, f'buffer_store_dwordx4 v[{YF+4}:{YF+7}], v7, s[{sr_xn}:{sr_xn+3}], 0 offen sc1', (tagp, 'n1'))
    g1_wprefetch(k, *pf_range)
    return vm.wait((tagp, 'n1'))

def ph_ln1(k):
    srd(k, 32, P_WS, OFF_YT, SZ_ACT)
    k('s_mul_i32 s36, s2, 7168')
    emit_vm(k, 'buffer_load_dwordx4 v[24:27], v11, s[32:35], s36 offen sc1', ('ln1', 'yl0'))
    emit_vm(k, 'buffer_load_dwordx4 v[28:31], v12, s[32:35], s36 offen sc1', ('ln1', 'yl1'))
    srd(k, 16, P_WS, OFF_XN1, SZ_ACT); srd(k, 20, P_WS, OFF_X1, SZ_ACT); srd(k, 24, P_WS, OFF_YF, SZ_ACT)
    g1_wprefetch(k, P0A, P0B)
    k(vm.wait(('ln1', 'yl1')))
    k('ds_write_b128 v13, v[24:27]')
    k('v_cmp_gt_u32 vcc, 192, v0')
    k('s_and_saveexec_b64 s[40:41], vcc')
    k('ds_write_b128 v13, v[28:31] offset:4608')
    k('s_mov_b64 exec, s[40:41]')
    k('s_waitcnt lgkmcnt(0)')
    k('s_barrier')
    mark(k, 'ln1:y in lds')
    for j in range(8): k(f'ds_read_u16 v{YF+j}, v14 offset:{16*j}')
    for j in range(8): k(f'ds_read_u16 v{YF+8+j}, v14 offset:{8*144 + 16*j}')
    k('s_waitcnt lgkmcnt(0)')
    for i in range(8): k(f'v_lshl_or_b32 v{Y_+i}, v{YF+2*i+1}, 16, v{YF+2*i}')
    for j in range(16): k(f'v_lshlrev_b32 v{YF+j}, 16, v{YF+j}')
    for j in range(8, 16): k(f'v_cndmask_b32 v{YF+j}, 0, v{YF+j}, s[38:39]')
    emit_vm(k, f'buffer_store_dwordx4 v[{Y_}:{Y_+3}], v6, s[24:27], 0 offen sc1', ('ln1', 'y0'))
    emit_vm(k, f'buffer_store_dwordx4 v[{Y_+4}:{Y_+7}], v7, s[24:27], 0 offen sc1', ('ln1', 'y1'))
    return ln_tail(k, 20, 16, (P0B, PB), 'ln1')

def ph_ln2_pre(k):
    ln_addr(k)
    srd(k, 24, P_WS, OFF_YF, SZ_ACT)
    k(f'buffer_load_dwordx4 v[{Y_}:{Y_+3}], v6, s[24:27], 0 offen sc1')
    k(f'buffer_load_dwordx4 v[{Y_+4}:{Y_+7}], v7, s[24:27], 0 offen sc1')
    srd(k, 16, P_WS, OFF_XN2, SZ_ACT); srd(k, 20, P_WS, OFF_X3, SZ_ACT); srd(k, 28, P_WS, OFF_X2, SZ_ACT)

def ph_ln2(k):
    emit_vm(k, f'buffer_load_dwordx4 v[{X_}:{X_+3}], v6, s[28:31], 0 offen sc1', ('ln2', 'xl0'))
    emit_vm(k, f'buffer_load_dwordx4 v[{X_+4}:{X_+7}], v7, s[28:31], 0 offen sc1', ('ln2', 'xl1'))
    g1_wprefetch(k, P1A, P1B)
    k(vm.wait(('ln2', 'xl1')))
    mark(k, 'ln2:loaded')
    ln_unpack(k, YF, Y_, 8)
    ln_unpack(k, XF, X_, 8)
    ln_stats(k, 0)
    k('s_waitcnt lgkmcnt(0)')
    ln_finish(k)
    for j in range(16): k(f'v_fma_f32 v{T_+j}, v{XF+j}, v85, -v86')
    return ln_tail(k, 20, 16, (P1B, PB), 'ln2')

WD_LOC = [('a', 224 + 4*i) for i in range(8)] + [('v', 168 + 4*i) for i in range(20)] + \
         [('v', 112 + 4*i) for i in range(14)] + [('a', 4*i) for i in range(14)]
def rr(loc, n=4): return f'{loc[0]}[{loc[1]}:{loc[1]+n-1}]'

def wd_load(n):
    ks, ct = n >> 1, n & 1
    pre = ['s_add_u32 s20, s20, 4096'] if (ct == 0 and ks % 4 == 0 and ks > 0) else []
    sr = SR_WD if ct == 0 else 28
    return pre + [f'buffer_load_dwordx4 {rr(WD_LOC[n])}, v{V_L16}, s[{sr}:{sr+3}], s20 offen offset:{(ks%4)*1024} sc1']

def hloc(t, ks):
    if t == 0: return 56 + 4 * ks
    return (168 + 4 * ks) if ks < 14 else (56 + 4 * (ks - 14))

def hload_ins(t, ks):
    cur = 22 if t == 0 else 23
    pre = [f's_add_u32 s{cur}, s{cur}, 4096'] if (ks % 4 == 0 and ks > 0) else []
    r = hloc(t, ks)
    return pre + [f'buffer_load_dwordx4 a[{r}:{r+3}], v{V_L16}, s[24:27], s{cur} offen offset:{(ks%4)*1024} sc1']

TOK_PD = 4
def ph_g1(k):
    layer = 'L'
    k(f's_mul_i32 s12, s{S_LAYER}, {OFF_XN2 - OFF_XN1:#x}')
    srd_soff(k, 16, P_WS, OFF_XN1, 12, SZ_ACT)
    k(f's_lshl_b32 s32, s{S_RB}, 2')
    k('s_mul_i32 s34, s32, 28672')
    k(f's_mul_i32 s36, s{S_WAVE}, 7168')
    k('s_add_u32 s34, s34, s36')
    ST = 112; ACC = 16; TF = 80; TM = 100
    NR = TOK_PD + 1
    lg = LG()
    def lds(ins, tag): k(ins); lg.add(tag)
    def tok_load(tt):
        for j in range(7):
            r = ST + 28 * (tt % 2) + 4 * j
            if j % 4 == 0: k(f's_add_u32 s37, s34, {tt*28672 + (j//4)*4096}')
            emit_vm(k, f'buffer_load_dwordx4 v[{r}:{r+3}], v{V_L16}, s[16:19], s37 offen offset:{(j%4)*1024} sc1', ('T', layer, tt, j))
    tok_load(0); tok_load(1)
    g1_wprefetch(k, PC, PD_)
    k(f's_mul_i32 s12, s{S_LAYER}, {OFF_H2 - OFF_H1:#x}')
    srd_soff(k, 24, P_WS, OFF_H1, 12, SZ_H)
    k(f'v_add_u32 v4, s36, v{V_L16}')
    k('v_add_u32 v5, 57344, v4')
    k(f'v_add_u32 v6, 57344, v{V_L16}')
    k(f's_lshl_b32 s31, s{S_FS}, 2')
    k(f's_add_u32 s31, s31, s{S_WAVE}')
    k('s_lshl_b32 s40, s31, 11')
    k(f's_mul_i32 s15, s{S_LAYER}, {L_DELTA}')
    k(f's_add_u32 s33, s32, s15')
    k(f's_add_u32 s21, s33, {L_XN0 + 2}')
    k(f's_add_u32 s33, s33, {L_H0}')
    k(f's_lshr_b32 s12, s{S_RT}, 1')
    k(f's_and_b32 s13, s{S_RT}, 1')
    k('s_lshl_b32 s14, s12, 2')
    k('s_add_u32 s42, s14, s13')
    k('s_sub_u32 s43, 3, s13')
    k('s_add_u32 s43, s43, s14')
    k('s_add_u32 s56, s42, s15'); k(f's_add_u32 s56, s56, {L_H0}')
    k('s_add_u32 s57, s43, s15'); k(f's_add_u32 s57, s57, {L_H0}')
    k(f's_mul_i32 s12, s{S_WAVE}, 28*1024')
    k('s_mul_i32 s22, s42, 112*1024'); k('s_add_u32 s22, s22, s12')
    k('s_mul_i32 s23, s43, 112*1024'); k('s_add_u32 s23, s23, s12')
    srd(k, 28, P_WS, OFF_WD + 112 * 1024, SZ_WD - 112 * 1024)
    k(f's_mov_b32 s20, s{S_DOFF}')
    def tok_write_one(tt, j):
        base = 'v4' if tt < 2 else 'v5'
        r = ST + 28 * (tt % 2) + 4 * j
        lds(f'ds_write_b128 {base}, v[{r}:{r+3}] offset:{(tt%2)*28672 + j*1024}', ('w', tt, j))
    def tok_read(step):
        tt, ks = divmod(step, 28)
        r = TF + 4 * (step % NR)
        base = f'v{V_L16}' if tt < 2 else 'v6'
        lds(f'ds_read_b128 v[{r}:{r+3}], {base} offset:{(tt%2)*28672 + ks*1024}', ('r', step))
    def epilogue(tt):
        g = ACC + 32 * (tt % 2); u = g + 16
        T = TM
        out = [f's_add_u32 s41, s32, {tt}', 's_mul_i32 s41, s41, 112*1024', 's_add_u32 s41, s41, s40']
        for s in range(2):
            b = 8 * s
            for i in range(8): out.append(f'v_mul_f32 v{T+i}, 0xbfb8aa3b, v{g+b+i}')
            for i in range(8): out.append(f'v_exp_f32 v{T+i}, v{T+i}')
            for i in range(8): out.append(f'v_mul_f32 v{u+b+i}, v{g+b+i}, v{u+b+i}')
            for i in range(8): out.append(f'v_add_f32 v{T+i}, 1.0, v{T+i}')
            for i in range(8): out.append(f'v_rcp_f32 v{T+i}, v{T+i}')
            for i in range(8): out.append(f'v_mul_f32 v{u+b+i}, v{u+b+i}, v{T+i}')
            o = g + b
            for q in range(4): out.append(f'v_cvt_pk_bf16_f32 v{o+q}, v{u+b+2*q}, v{u+b+2*q+1}')
            out.append(f'buffer_store_dwordx4 v[{o}:{o+3}], v{V_L16}, s[24:27], s41 offen offset:{1024*s} sc1')
        return out
    k(vm.wait(('T', layer, 0, 6)))
    for j in range(7): tok_write_one(0, j)
    k(lg.wait(('w', 0, 6)))
    k('s_barrier')
    lmark(k, 'g1:tok0')
    sched = {0: [(n, 6) for n in range(0, 11)], 1: [(n, 0) for n in range(11, 28)],
             2: [(n, 0) for n in range(28, 35)] + [(n, 17) for n in range(35, 40)],
             3: [(n, 0) for n in range(40, 42)] + [(n, (n - 42) // 2 + 1) for n in range(42, 56)]}
    PD = TOK_PD
    for st in range(PD): tok_read(st)
    for tt in range(4):
        g = ACC + 32 * (tt % 2); u = g + 16
        fill = epilogue(tt - 1) if tt > 0 else []
        nf = len(fill); fi = 0
        wq = list(sched[tt])
        for ks in range(28):
            step = 28 * tt + ks
            if tt == 0 and ks >= PB:
                k(vm.wait(('W', ks)))
            w = lg.wait(('r', step))
            if w: k(w)
            b = TF + 4 * (step % NR)
            cg = f'v[{g}:{g+15}]' if ks else '0'
            cu = f'v[{u}:{u+15}]' if ks else '0'
            k(f'v_mfma_f32_32x32x16_bf16 v[{g}:{g+15}], a[{8*ks}:{8*ks+3}], v[{b}:{b+3}], {cg}')
            if step + PD < 112: tok_read(step + PD)
            tgt = (nf * (2 * ks) + 49) // 50 if ks >= 1 else 0
            while fi < min(tgt, nf):
                emit_vm(k, fill[fi], ('H', layer, tt - 1)); fi += 1
            k(f'v_mfma_f32_32x32x16_bf16 v[{u}:{u+15}], a[{8*ks+4}:{8*ks+7}], v[{b}:{b+3}], {cu}')
            tgt = (nf * (2 * ks + 1) + 49) // 50 if ks >= 1 else 0
            while fi < min(tgt, nf):
                emit_vm(k, fill[fi], ('H', layer, tt - 1)); fi += 1
            if tt == 0 and ks < 28 - PD_:
                g1_wprefetch(k, PD_ + ks, PD_ + ks + 1)
            if tt < 3 and 8 <= ks < 15:
                if ks == 8: k(vm.wait(('T', layer, tt + 1, 6)))
                tok_write_one(tt + 1, ks - 8)
            if ks == 16:
                if tt < 3:
                    w = lg.wait(('w', tt + 1, 6))
                    if w: k(w)
                if tt >= 2: k(vm.wait(('H', layer, tt - 2)))
                k('s_barrier')
                if tt >= 2:
                    k(f's_add_u32 s62, s33, {tt-2}')
                    signal(k, line_sreg=62)
            if tt == 0 and ks == 22:
                wait(k, 4, line_sreg=21, nlines=2)
                tok_load(2); tok_load(3)
            if tt == 3 and ks == 25:
                wait(k, 14, line_sreg=56, barrier=False)
            if wq and wq[0][1] <= ks and (ks % 2 == 0 or len(wq) > (28 - ks) // 2):
                n, _ = wq.pop(0)
                for ins in wd_load(n): emit_vm(k, ins, ('D', layer, n))
        while fi < nf:
            emit_vm(k, fill[fi], ('H', layer, tt - 1)); fi += 1
        while wq:
            n, _ = wq.pop(0)
            for ins in wd_load(n): emit_vm(k, ins, ('D', layer, n))
        lmark(k, f'g1:pass{tt}')
    k('s_barrier')
    pf = [(hload_ins(0, ks), ('HL', layer, 0, ks)) for ks in range(14)]
    lines = [(x, ('H', layer, 3)) if x.startswith('buffer_') else x for x in epilogue(3)]
    sprinkle(k, lines, pf, None, skip_head=4)
    lmark(k, 'g1:epi3')

G2_SCR = 0
def ph_g2(k):
    layer = 'L'
    ACC = 16
    def hload(t, ks):
        for ins in hload_ins(t, ks): emit_vm(k, ins, ('HL', layer, t, ks))
    def mm(t, ks):
        r = hloc(t, ks)
        out = []
        for ct in range(2):
            acc = ACC + 32 * t + 16 * ct
            c = f'v[{acc}:{acc+15}]' if ks else '0'
            out.append(f'v_mfma_f32_32x32x16_bf16 v[{acc}:{acc+15}], {rr(WD_LOC[2*ks+ct])}, a[{r}:{r+3}], {c}')
        return out
    k(vm.wait(('H', layer, 3)))
    k('s_barrier')
    k('s_add_u32 s59, s33, 2')
    signal(k, line_sreg=59, n=2)
    lmark(k, 'g1 arrived')
    k(f's_mul_i32 s12, s{S_LAYER}, {OFF_X3 - OFF_X1:#x}')
    srd_soff(k, 16, P_WS, OFF_X1, 12, SZ_ACT)
    k(f'v_and_b32 v4, 31, v{V_LANE}')
    k(f'v_lshrrev_b32 v5, 5, v{V_LANE}')
    k(f's_and_b32 s13, s{S_WAVE}, 1')
    k(f's_lshr_b32 s12, s{S_WAVE}, 1')
    k(f's_lshl_b32 s14, s{S_CTP}, 12')
    k('s_lshl_b32 s15, s13, 11'); k('s_add_u32 s14, s14, s15')
    k('s_lshl_b32 s15, s12, 10'); k('s_add_u32 s14, s14, s15')
    k('v_lshlrev_b32 v7, 9, v5')
    k('v_lshl_add_u32 v7, v4, 4, v7')
    k('v_add_u32 v7, s14, v7')
    k('s_mul_i32 s34, s42, 28672'); k('s_mul_i32 s35, s43, 28672')
    k(f's_lshl_b32 s14, s{S_WAVE}, 11')
    k(f'v_add_u32 v8, s14, v{V_L16}')
    k(f's_lshl_b32 s14, s{S_WAVE}, 13')
    k(f'v_add_u32 v9, s14, v{V_L16}')
    for j in range(14):
        hload(0, 14 + j)
        k(vm.wait(('HL', layer, 0, j)))
        for x in mm(0, j): k(x)
    wait(k, 14, line_sreg=57)
    lmark(k, 'g2:B ready')
    emit_vm(k, 'buffer_load_dwordx4 v[80:83], v7, s[16:19], s34 offen sc1', ('R', layer, 0))
    emit_vm(k, 'buffer_load_dwordx4 v[84:87], v7, s[16:19], s35 offen sc1', ('R', layer, 1))
    for j in range(14):
        hload(1, j)
        k(vm.wait(('HL', layer, 0, 14 + j)))
        for x in mm(0, 14 + j): k(x)
    def xch_write(t):
        out = []
        for o in range(4):
            acc = ACC + 32 * t + 16 * (o & 1) + 8 * (o >> 1)
            for r in range(2):
                out.append(f'ds_write_b128 v8, v[{acc+4*r}:{acc+4*r+3}] offset:{G2_SCR + 32768*t + o*8192 + r*1024}')
        return out
    def xch_finish(t, R):
        out = []
        for sidx in range(4):
            for r in range(2):
                d = R + 8 * sidx + 4 * r
                out.append(f'ds_read_b128 v[{d}:{d+3}], v9 offset:{G2_SCR + 32768*t + sidx*2048 + r*1024}')
        out.append('s_waitcnt lgkmcnt(4)')
        for i in range(8): out.append(f'v_add_f32 v{R+i}, v{R+i}, v{R+8+i}')
        out.append('s_waitcnt lgkmcnt(0)')
        for i in range(8): out.append(f'v_add_f32 v{R+16+i}, v{R+16+i}, v{R+24+i}')
        for i in range(8): out.append(f'v_add_f32 v{R+i}, v{R+i}, v{R+16+i}')
        for j in range(4): out.append(f'v_permlane32_swap_b32 v{R+j}, v{R+4+j}')
        rs = 80 + 4 * t
        for i in range(4):
            out.append(f'v_lshlrev_b32 v{R+8}, 16, v{rs+i}')
            out.append(f'v_and_b32 v{R+9}, 0xffff0000, v{rs+i}')
            out.append(f'v_add_f32 v{R+2*i}, v{R+2*i}, v{R+8}')
            out.append(f'v_add_f32 v{R+2*i+1}, v{R+2*i+1}, v{R+9}')
        for i in range(4): out.append(f'v_cvt_pk_bf16_f32 v{R+12+i}, v{R+2*i}, v{R+2*i+1}')
        return out
    return (layer, hload, mm, xch_write, xch_finish)

def g2_out_setup(k, final):
    if not final:
        srd(k, 36, P_WS, OFF_X2, SZ_ACT)
        k('v_mov_b32 v10, v7'); k('s_mov_b32 s40, s34'); k('s_mov_b32 s41, s35')
    else:
        srd(k, 36, P_OUT, 0, SZ_ACT)
        k(f's_lshl_b32 s14, s{S_CTP}, 7')
        k(f's_and_b32 s13, s{S_WAVE}, 1'); k('s_lshl_b32 s13, s13, 6'); k('s_add_u32 s14, s14, s13')
        k(f's_lshr_b32 s13, s{S_WAVE}, 1'); k('s_lshl_b32 s13, s13, 5'); k('s_add_u32 s14, s14, s13')
        k('v_mul_u32_u24 v10, 896, v4')
        k('v_lshl_add_u32 v10, v5, 4, v10')
        k('v_add_u32 v10, s14, v10')
        k('s_mul_i32 s40, s42, 32*896'); k('s_mul_i32 s41, s43, 32*896')

def ph_g2_tail(k, fns):
    layer, hload, mm, xch_write, xch_finish = fns
    Lf = label('of'); Lj = label('oj')
    k(f's_cmp_lg_u32 s{S_LAYER}, 0')
    k(f's_cbranch_scc1 {Lf}')
    g2_out_setup(k, False)
    k(f's_branch {Lj}')
    k(f'{Lf}:')
    g2_out_setup(k, True)
    k(f'{Lj}:')
    wr = xch_write(0)
    fin = xch_finish(0, 16)
    nf = len(fin); fi = 0
    for j in range(14):
        hload(1, 14 + j)
        k(vm.wait(('HL', layer, 1, j)))
        m = mm(1, j)
        k(m[0])
        if 1 <= j <= 4: k(wr[2 * (j - 1)])
        if j >= 6:
            tgt = min(nf, (nf * (2 * (j - 6) + 1) + 15) // 16)
            while fi < tgt: k(fin[fi]); fi += 1
        k(m[1])
        if 1 <= j <= 4: k(wr[2 * (j - 1) + 1])
        if j >= 6:
            tgt = min(nf, (nf * (2 * (j - 6) + 2) + 15) // 16)
            while fi < tgt: k(fin[fi]); fi += 1
        if j == 5:
            k('s_waitcnt lgkmcnt(0)')
            k('s_barrier')
    while fi < nf: k(fin[fi]); fi += 1
    emit_vm(k, 'buffer_store_dwordx4 v[28:31], v10, s[36:39], s40 offen sc1', ('O', layer, 0))
    for j in range(14, 28):
        k(vm.wait(('HL', layer, 1, j)))
        for x in mm(1, j): k(x)
    lmark(k, 'g2:main')
    for x in xch_write(1): k(x)
    k(vm.wait(('O', layer, 0)))
    k('s_waitcnt lgkmcnt(0)')
    k('s_barrier')
    La = label('na')
    k(f's_cmp_lg_u32 s{S_LAYER}, 0')
    k(f's_cbranch_scc1 {La}')
    k(f's_add_u32 s59, s42, {L_X2}')
    signal(k, line_sreg=59)
    k(f'{La}:')
    for x in xch_finish(1, 48): k(x)
    emit_vm(k, 'buffer_store_dwordx4 v[60:63], v10, s[36:39], s41 offen sc1', ('O', layer, 1))

def build():
    MARKS.clear(); LOOPMARKS.clear(); vm.l.clear(); _lab[0] = 0
    k = Kern(KNAME, vgprs=256, agprs=256, sgprs=102)
    ph_init(k)
    ph_p0(k)
    Lc = label('noconv')
    Lw = label('s0skip')
    k('s_cmp_ge_u32 s2, 224')
    k(f's_cbranch_scc1 {Lw}')
    k('s_waitcnt vmcnt(0)')
    init_check(k)
    k('s_barrier')
    signal(k, line_sreg=62)
    mark(k, 'S0 arrived')
    ph_p0_wdma(k)
    ph_conv_prep(k)
    mark(k, 'conv prep done')
    wait(k, 32, line_sreg=62)
    mark(k, 'S0 passed')
    ph_conv(k)
    k(f's_branch {Lc}')
    k(f'{Lw}:')
    ph_p0_wdma(k)
    ph_p0_wfinish(k)
    wait_init(k)
    k(f's_add_u32 s59, s{S_XCD}, {L_W}')
    arrive(k, line_sreg=59)
    k(f'{Lc}:')
    mark(k, 'conv done')
    k(f's_add_u32 s59, s{S_XCD}, {L_S1}')
    arrive(k, line_sreg=59)
    mark(k, 'S1 arrived')
    ph_ln1_pre(k)
    wait(k, 32, line=L_W, nlines=8)
    g1_wprefetch(k, 0, P0A)
    mark(k, 'ln1 pre done')
    wait(k, 32, line=L_S1, nlines=8)
    mark(k, 'S1 passed')
    w = ph_ln1(k)
    k('s_lshr_b32 s59, s2, 2')
    k(f's_add_u32 s59, s59, {L_XN0}')
    arrive(k, line_sreg=59, vmwait=w)
    mark(k, 'ln1 arrived')
    k(f's_mov_b32 s{S_LAYER}, 0')
    Lloop = label('layer'); Lskip = label('gskip'); Lend2 = label('fin')
    k(f'{Lloop}:')
    k(f's_cmp_ge_u32 s{S_I}, 28')
    k(f's_cbranch_scc1 {Lskip}')
    g1_wprefetch(k, PB, PC)
    k(f's_mul_i32 s59, s{S_LAYER}, {L_DELTA}')
    k(f's_lshl_b32 s12, s{S_RB}, 2')
    k('s_add_u32 s59, s59, s12')
    k(f's_add_u32 s59, s59, {L_XN0}')
    wait(k, 4, line_sreg=59, nlines=2)
    lmark(k, 'S(ln->g1) passed')
    ph_g1(k)
    fns = ph_g2(k)
    ph_g2_tail(k, fns)
    k(f's_cmp_lg_u32 s{S_LAYER}, 0')
    k(f's_cbranch_scc1 {Lend2}')
    g1_wprefetch(k, 0, P1A)
    k(f's_add_u32 s59, s43, {L_X2}')
    arrive(k, line_sreg=59, vmwait=vm.wait(('O', 'L', 1)))
    mark(k, 'S4 arrived')
    k(f'{Lskip}:')
    k(f's_cmp_lg_u32 s{S_LAYER}, 0')
    k(f's_cbranch_scc1 {Lend2}')
    ph_ln2_pre(k)
    k('s_lshr_b32 s59, s2, 2')
    k(f's_add_u32 s59, s59, {L_X2}')
    wait(k, 7, line_sreg=59)
    mark(k, 'S4 passed')
    w = ph_ln2(k)
    k('s_lshr_b32 s59, s2, 2')
    k(f's_add_u32 s59, s59, {L_XN1}')
    arrive(k, line_sreg=59, vmwait=w)
    mark(k, 'ln2 arrived')
    k(f's_mov_b32 s{S_LAYER}, 1')
    k(f's_branch {Lloop}')
    k(f'{Lend2}:')
    if PROF:
        k('s_waitcnt vmcnt(0)')
        mark(k, 'end')
        k('s_memrealtime s[96:97]')
        k('s_waitcnt lgkmcnt(0)')
        k(f'v_writelane_b32 v{VPROF}, s96, 63')
        srd(k, 56, P_WS, OFF_PROF, 0x100000)
        k('s_lshl_b32 s60, s2, 2')
        k(f's_add_u32 s60, s60, s{S_WAVE}')
        k('s_lshl_b32 s60, s60, 8')
        k(f'v_lshlrev_b32 v4, 2, v{V_LANE}')
        k(f'buffer_store_dword v{VPROF}, v4, s[56:59], s60 offen')
    k('L_end:')
    k('s_endpgm')
    hdr = open('interleave_layers__ssm_conv_h3__swiglu_ffn__prompt.s.ref').read().split('; Override launch')[0]
    out = [hdr.rstrip('\n')]
    out.append(f'; @launch grid=({NWG},1,1) block=(256,1,1) lds={LDS_BYTES}')
    out.append('.amdgcn_target "amdgcn-amd-amdhsa--gfx950"')
    out.append('.text')
    out.append(k.emit())
    out.append('.section .rodata,"a"')
    out.append('.p2align 6')
    out.append(k.desc())
    return '\n'.join(out) + '\n'

if __name__ == '__main__':
    if '--prof' in sys.argv: PROF = True
    txt = build()
    dst = sys.argv[1]
    open(dst, 'w').write(txt)
    if PROF:
        import json
        assert len(MARKS) <= 24
        names = MARKS + [''] * (24 - len(MARKS)) + [f'L0 {n}' for n in LOOPMARKS] + [''] * (16 - len(LOOPMARKS)) + [f'L1 {n}' for n in LOOPMARKS]
        json.dump(names, open(dst + '.marks', 'w'))
    print('wrote', dst, len(txt), 'bytes', len(MARKS), 'marks')
```

```python
import sys
from asmlib import *

S = 2048; D = 448; F = 1792
SZ_ACT = 2048 * 448 * 2
OFF_XR = 0x0;       SZ_XR = 448 * 4096
OFF_YT = 0x200000
OFF_YF = 0x400000
OFF_X1 = 0x600000
OFF_XN1 = 0x800000
OFF_X2 = 0xA00000
OFF_X3 = 0xC00000
OFF_XN2 = 0xE00000
OFF_WGU = 0x1000000; SZ_WGU = 56 * 28 * 2 * 1024
OFF_WD = 0x1400000;  SZ_WD = 14 * 112 * 1024
OFF_H1 = 0x1600000;  SZ_H = 64 * 112 * 1024
OFF_H2 = 0x1E00000
OFF_SYNC = 0x2600000; SZ_SYNC = 512 * 128
OFF_PROF = 0x2800000
KNAME = 'interleave_layers__ssm_conv_h3__swiglu_ffn__prompt_kernel'
NWG = 256
LDS_BYTES = 160 * 1024
PROF = False
SPIN_MAX = 400000
L_S0, L_W, L_S1 = 0, 8, 16
L_TK, L_OV = 24, 7
L_XN0, L_H0, L_X2, L_XN1, L_H1 = 32, 96, 160, 224, 288
L_DELTA = L_XN1 - L_XN0
assert L_H1 - L_H0 == L_DELTA

P_Q, P_K, P_V, P_SH, P_SSK, P_SSD, P_BX, P_WG = 64, 66, 68, 70, 72, 74, 76, 78
P_WU, P_WD, P_OUT, P_DBG, P_WS = 80, 82, 84, 86, 88
SR_SYNC = 92
S_WAVE = 3
S_XCD, S_I = 90, 91
S_XD = 98
ROLE_LDS = 163832
S_CH, S_PAR, S_CHB = 50, 51, 52
S_RB, S_FS, S_RT, S_CTP, S_LNRB = 53, 54, 55, 49, 63
SR_WGU = 4
SR_WD = 8
S_WOFF = 47
S_DOFF = 46
S_LAYER = 58
S_R1_UNUSED = 0
VPROF = 255
V_LANE = 2
V_L16 = 3

import os
PF_A = int(os.environ.get('PF_A', 10)); PF_B = int(os.environ.get('PF_B', 18)); PF_A2 = int(os.environ.get('PF_A2', 10))
PF_A1 = PF_A
P0A = int(os.environ.get('P0A', 5)); P0B = int(os.environ.get('P0B', 8)); P1A = int(os.environ.get('P1A', 5)); P1B = int(os.environ.get('P1B', 8))
PB = int(os.environ.get('PB', 13)); PC = int(os.environ.get('PC', 19)); PD_ = int(os.environ.get('PD_', 23))
PF_XX = 0,0

class VM:
    def __init__(self): self.l = []
    def add(self, tag): self.l.append(tag)
    def wait(self, tag):
        idx = len(self.l) - 1 - self.l[::-1].index(tag)
        return f's_waitcnt vmcnt({min(len(self.l) - 1 - idx, 63)})'
vm = VM()

class LG:
    def __init__(self): self.l = []
    def add(self, tag): self.l.append(tag)
    def wait(self, tag):
        if tag not in self.l: return None
        idx = len(self.l) - 1 - self.l[::-1].index(tag)
        n = min(len(self.l) - 1 - idx, 15)
        self.l = self.l[len(self.l) - n:] if n else []
        return f's_waitcnt lgkmcnt({n})'

def srd(k, d, p, off, size):
    if off:
        k(f's_add_u32 s{d}, s{p}, {off:#x}')
        k(f's_addc_u32 s{d+1}, s{p+1}, 0')
    else:
        k(f's_mov_b32 s{d}, s{p}')
        k(f's_mov_b32 s{d+1}, s{p+1}')
    k(f's_mov_b32 s{d+2}, {size:#x}')
    k(f's_mov_b32 s{d+3}, 0x20000')

def srd_soff(k, d, p, off, soff, size):
    k(f's_add_u32 s{d}, s{p}, {off:#x}')
    k(f's_addc_u32 s{d+1}, s{p+1}, 0')
    k(f's_add_u32 s{d}, s{d}, s{soff}')
    k(f's_addc_u32 s{d+1}, s{d+1}, 0')
    k(f's_mov_b32 s{d+2}, {size:#x}')
    k(f's_mov_b32 s{d+3}, 0x20000')

def udiv(k, dst, src, d):
    m = (2**32 + d - 1) // d
    k(f's_mul_hi_u32 s{dst}, s{src}, {m:#x}')

MARKS = []
def mark(k, name):
    if not PROF: return
    i = len(MARKS); MARKS.append(name)
    k('s_memrealtime s[96:97]')
    k('s_waitcnt lgkmcnt(0)')
    k(f'v_writelane_b32 v{VPROF}, s96, {i}')

LOOPMARKS = []
def lmark(k, name):
    if not PROF: return
    i = len(LOOPMARKS); LOOPMARKS.append(name)
    assert i < 16
    k('s_memrealtime s[96:97]')
    k(f's_lshl_b32 s97, s{S_LAYER}, 4') if False else None
    k('s_waitcnt lgkmcnt(0)')
    k(f's_lshl_b32 s97, s{S_LAYER}, 4')
    k(f's_add_u32 m0, s97, {24 + i}')
    k('s_nop 0')
    k(f'v_writelane_b32 v{VPROF}, s96, m0')

_lab = [0]
def label(p):
    _lab[0] += 1
    return f'L_{p}_{_lab[0]}'

def signal(k, line_sreg=None, line=None, n=1):
    L = label('sig')
    k(f's_cmp_lg_u32 s{S_WAVE}, 0')
    k(f's_cbranch_scc1 {L}')
    k(f'v_lshlrev_b32 v250, 7, v{V_LANE}')
    if line_sreg is not None:
        k(f's_lshl_b32 s60, s{line_sreg}, 7')
        k('v_add_u32 v250, s60, v250')
    else:
        k(f'v_add_u32 v250, {line*128}, v250')
    k('v_mov_b32 v251, 1')
    k(f's_mov_b64 exec, {(1 << n) - 1}')
    k(f'buffer_atomic_add v251, v250, s[{SR_SYNC}:{SR_SYNC+3}], 0 offen sc1')
    k('s_mov_b64 exec, -1')
    k(f'{L}:')

def arrive(k, line_sreg=None, line=None, vmwait='s_waitcnt vmcnt(0)', n=1):
    k(vmwait)
    k('s_waitcnt lgkmcnt(0)')
    k('s_barrier')
    signal(k, line_sreg, line, n)

def wait(k, target, line_sreg=None, line=None, nlines=1, barrier=True):
    L = label('wt'); Lp = label('pl'); Ld = label('pd')
    k(f's_cmp_lg_u32 s{S_WAVE}, 0')
    k(f's_cbranch_scc1 {L}')
    k(f'v_lshlrev_b32 v250, 7, v{V_LANE}')
    if line_sreg is not None:
        k(f's_lshl_b32 s60, s{line_sreg}, 7')
        k('v_add_u32 v250, s60, v250')
    else:
        k(f'v_add_u32 v250, {line*128}, v250')
    k(f's_mov_b64 exec, {(1 << nlines) - 1}')
    k('s_mov_b32 s61, 0')
    k(f'{Lp}:')
    k(f'buffer_load_dword v251, v250, s[{SR_SYNC}:{SR_SYNC+3}], 0 offen sc1')
    k('s_add_u32 s61, s61, 1')
    k('s_waitcnt vmcnt(0)')
    k(f'v_cmp_le_u32 vcc, {target}, v251')
    k(f's_cmp_ge_u32 s61, {SPIN_MAX}')
    k(f's_cbranch_scc1 {Ld}')
    k('s_cmp_eq_u64 vcc, exec')
    k(f's_cbranch_scc0 {Lp}')
    k(f'{Ld}:')
    k('s_mov_b64 exec, -1')
    k(f'{L}:')
    if barrier: k('s_barrier')

def init_issue(k):
    L = label('ii')
    k(f's_cmp_lg_u32 s{S_WAVE}, 0')
    k(f's_cbranch_scc1 {L}')
    srd(k, 56, P_DBG, 0, 256)
    k('v_mov_b32 v248, 0')
    k('buffer_load_dword v249, v248, s[56:59], 0 offen sc1')
    k(f'{L}:')

def init_check(k):
    L = label('ic'); Lp = label('icp')
    k(f's_cmp_lg_u32 s{S_WAVE}, 0')
    k(f's_cbranch_scc1 {L}')
    k('v_readfirstlane_b32 s61, v249')
    k('s_cmp_lg_u32 s61, 0')
    k(f's_cbranch_scc1 {L}')
    wait_init(k)
    k(f'{L}:')

def wait_init(k):
    L = label('wi'); Lp = label('wip'); Ld = label('wid')
    k(f's_cmp_lg_u32 s{S_WAVE}, 0')
    k(f's_cbranch_scc1 {L}')
    srd(k, 56, P_DBG, 0, 256)
    k('v_mov_b32 v250, 0')
    k('s_mov_b64 exec, 1')
    k('s_mov_b32 s61, 0')
    k(f'{Lp}:')
    k('buffer_load_dword v251, v250, s[56:59], 0 offen sc1')
    k('s_add_u32 s61, s61, 1')
    k('s_waitcnt vmcnt(0)')
    k('v_cmp_ne_u32 vcc, 0, v251')
    k(f's_cmp_ge_u32 s61, {SPIN_MAX}')
    k(f's_cbranch_scc1 {Ld}')
    k('s_cmp_eq_u64 vcc, exec')
    k(f's_cbranch_scc0 {Lp}')
    k(f'{Ld}:')
    k('s_mov_b64 exec, -1')
    k(f'{L}:')

def ph_init(k):
    k(f's_cmp_ge_u32 s2, {NWG}')
    k('s_cbranch_scc1 L_end')
    k('s_load_dwordx16 s[64:79], s[0:1], 0')
    k('s_load_dwordx8 s[80:87], s[0:1], 64')
    k('s_load_dwordx2 s[88:89], s[0:1], 96')
    k('v_lshrrev_b32 v1, 6, v0')
    k(f'v_and_b32 v{V_LANE}, 63, v0')
    k(f'v_readfirstlane_b32 s{S_WAVE}, v1')
    k(f'v_lshlrev_b32 v{V_L16}, 4, v{V_LANE}')
    k(f's_and_b32 s{S_XCD}, s2, 7')
    k(f's_lshr_b32 s{S_LNRB}, s2, 4')
    if PROF: k(f'v_mov_b32 v{VPROF}, 0')
    k('s_waitcnt lgkmcnt(0)')
    srd(k, SR_SYNC, P_WS, OFF_SYNC, SZ_SYNC)
    srd(k, SR_WGU, P_WS, OFF_WGU, SZ_WGU)
    srd(k, SR_WD, P_WS, OFF_WD, SZ_WD)
    mark(k, 'start')
    if PROF:
        k('s_memrealtime s[96:97]')
        k('s_waitcnt lgkmcnt(0)')
        k(f'v_writelane_b32 v{VPROF}, s96, 62')
    Lt = label('tlb')
    k(f's_cmp_lg_u32 s{S_WAVE}, 1')
    k(f's_cbranch_scc1 {Lt}')
    srd(k, 16, P_WS, 0, 0x2800000)
    srd(k, 20, P_OUT, 0, SZ_ACT)
    k(f'v_lshlrev_b32 v4, 21, v{V_LANE}')
    k('v_add_u32 v4, 0x1fff80, v4')
    k('v_mov_b32 v5, 0')
    k('s_mov_b64 exec, 0xfffff')
    k('buffer_load_dword v246, v4, s[16:19], 0 offen sc1')
    k('s_mov_b64 exec, 1')
    k('buffer_load_dword v247, v5, s[20:23], 0 offen sc1')
    k('s_mov_b64 exec, -1')
    k(f'{Lt}:')
    L = label('ini')
    k('s_cmp_lg_u32 s2, 255')
    k(f's_cbranch_scc1 {L}')
    k(f's_cmp_lg_u32 s{S_WAVE}, 3')
    k(f's_cbranch_scc1 {L}')
    for i in range(4): k(f'v_mov_b32 v{8+i}, 0')
    for i in range(4):
        k(f'buffer_store_dwordx4 v[8:11], v{V_L16}, s[{SR_SYNC}:{SR_SYNC+3}], 0 offen offset:{1024*i} sc1')
    srd(k, 56, P_DBG, 0, 256)
    k('s_waitcnt vmcnt(0)')
    k('v_mov_b32 v4, 0')
    k('v_mov_b32 v5, 1')
    k('s_mov_b64 exec, 1')
    k('buffer_store_dword v5, v4, s[56:59], 0 offen sc1')
    k('s_mov_b64 exec, -1')
    k('s_movk_i32 s12, 4096')
    Lz = label('zero')
    k(f'{Lz}:')
    k(f'buffer_store_dwordx4 v[8:11], v{V_L16}, s[{SR_SYNC}:{SR_SYNC+3}], s12 offen sc1')
    k('s_add_u32 s12, s12, 1024')
    k(f's_cmp_lt_u32 s12, {352*128}')
    k(f's_cbranch_scc1 {Lz}')
    k(f'{L}:')

def ticket_issue(k):
    L = label('tk')
    k(f's_cmp_lg_u32 s{S_WAVE}, 3')
    k(f's_cbranch_scc1 {L}')
    k(f's_getreg_b32 s{S_XD}, hwreg(HW_REG_XCC_ID, 0, 4)')
    k(f's_and_b32 s{S_XD}, s{S_XD}, 7')
    k(f's_add_u32 s12, s{S_XD}, {L_TK}')
    k('s_lshl_b32 s12, s12, 7')
    k('v_mov_b32 v244, s12')
    k('v_mov_b32 v245, 1')
    k('s_mov_b64 exec, 1')
    k(f'buffer_atomic_add v245, v244, s[{SR_SYNC}:{SR_SYNC+3}], 0 offen sc0 sc1')
    k('s_mov_b64 exec, -1')
    k(f'{L}:')

def ticket_resolve(k):
    L = label('tr'); Lok = label('trok'); Lp = label('trp'); Lw = label('trw'); Ln = label('trn'); Lt = label('trt')
    k(f's_cmp_lg_u32 s{S_WAVE}, 3')
    k(f's_cbranch_scc1 {L}')
    k('v_readfirstlane_b32 s12, v245')
    k('s_cmp_lt_u32 s12, 32')
    k(f's_cbranch_scc1 {Lok}')
    k(f'v_lshlrev_b32 v244, 7, v{V_LANE}')
    k(f'v_add_u32 v244, {L_TK*128}, v244')
    k('s_mov_b32 s15, 0')
    k(f'{Lp}:')
    k('s_mov_b64 exec, 0xff')
    k(f'buffer_load_dword v243, v244, s[{SR_SYNC}:{SR_SYNC+3}], 0 offen sc1')
    k('s_waitcnt vmcnt(0)')
    k('s_mov_b64 exec, -1')
    k('s_mov_b32 s13, 0')
    for x in range(8):
        k(f'v_readlane_b32 s14, v243, {x}')
        k('s_add_u32 s13, s13, s14')
    k('s_add_u32 s15, s15, 1')
    k(f's_cmp_ge_u32 s15, {SPIN_MAX}')
    k(f's_cbranch_scc1 {Lt}')
    k(f's_cmp_lt_u32 s13, {NWG}')
    k(f's_cbranch_scc1 {Lp}')
    k(f'{Lt}:')
    k(f'v_mov_b32 v244, {L_OV*128}')
    k('v_mov_b32 v245, 1')
    k('s_mov_b64 exec, 1')
    k(f'buffer_atomic_add v245, v244, s[{SR_SYNC}:{SR_SYNC+3}], 0 offen sc0 sc1')
    k('s_waitcnt vmcnt(0)')
    k('s_mov_b64 exec, -1')
    k('v_readfirstlane_b32 s13, v245')
    k(f's_mov_b32 s{S_XD}, 0')
    k('s_mov_b32 s12, 31')
    for x in range(8):
        Lx = label('trx')
        k(f'v_readlane_b32 s14, v243, {x}')
        k('s_min_u32 s14, s14, 32')
        k('s_sub_u32 s15, 32, s14')
        k('s_cmp_lt_u32 s13, s15')
        k(f's_cbranch_scc0 {Lx}')
        k(f's_mov_b32 s{S_XD}, {x}')
        k('s_add_u32 s12, s14, s13')
        k(f's_branch {Lok}')
        k(f'{Lx}:')
        k('s_sub_u32 s13, s13, s15')
    k(f'{Lok}:')
    k(f's_lshl_b32 s13, s{S_XD}, 5')
    k('s_add_u32 s13, s13, s12')
    k('v_mov_b32 v244, s13')
    k(f'v_mov_b32 v243, {ROLE_LDS}')
    k('ds_write_b32 v243, v244')
    k(f'{L}:')

def role_compute(k):
    k(f'v_mov_b32 v243, {ROLE_LDS}')
    k('ds_read_b32 v244, v243')
    k('s_waitcnt lgkmcnt(0)')
    k('v_readfirstlane_b32 s12, v244')
    k(f's_lshr_b32 s{S_XD}, s12, 5')
    k(f's_and_b32 s{S_I}, s12, 31')
    udiv(k, 15, S_I, 7)
    k('s_mul_i32 s28, s15, 7')
    k(f's_sub_u32 s{S_CTP}, s{S_I}, s28')
    k(f's_lshr_b32 s29, s{S_XD}, 1')
    k('s_lshl_b32 s29, s29, 2')
    k(f's_add_u32 s{S_RB}, s29, s15')
    k(f's_and_b32 s30, s{S_XD}, 1')
    k('s_mul_i32 s30, s30, 7')
    k(f's_add_u32 s{S_FS}, s30, s{S_CTP}')
    k(f's_lshl_b32 s29, s{S_XD}, 2')
    k(f's_add_u32 s{S_RT}, s29, s15')
    k(f's_lshl_b32 s31, s{S_FS}, 2')
    k(f's_add_u32 s31, s31, s{S_WAVE}')
    k(f's_mul_i32 s{S_WOFF}, s31, 57344')
    k(f's_mul_i32 s{S_DOFF}, s{S_CTP}, 224*1024')
    k(f's_mul_i32 s31, s{S_WAVE}, 28*1024')
    k(f's_add_u32 s{S_DOFF}, s{S_DOFF}, s31')


CH_STRIDE = 37888
XRL_OFF = 33280
CONV_SCR = 2 * CH_STRIDE
YB_SCR = 92160
WST_OFF = 100352

def p0_weight_dma(k, rnd):
    fl = 34 + rnd; ds = 40 + rnd
    if rnd < 3:
        if rnd: k(f's_add_u32 s12, s48, {1024*rnd}')
        else: k('s_mov_b32 s12, s48')
        kind = 'gu'
    elif rnd == 3:
        k('s_mov_b32 s12, s48'); kind = 'wd'
    Lskip = None
    if rnd == 4:
        Lgu = label('w4g'); Lskip = label('w4s'); Ldone = label('w4d')
        k(f's_mov_b32 s{fl}, 2')
        k('s_cmp_ge_u32 s48, 608')
        k(f's_cbranch_scc1 {Lskip}')
        k('s_cmp_ge_u32 s48, 544')
        k(f's_cbranch_scc1 {Lgu}')
        k('s_add_u32 s12, s48, 1024')
        _w_dma(k, 'wd', rnd, fl, ds)
        k(f's_branch {Ldone}')
        k(f'{Lgu}:')
        k('s_add_u32 s12, s48, 3072-544')
        _w_dma(k, 'gu', rnd, fl, ds)
        k(f's_branch {Ldone}')
        k(f'{Lskip}:')
        k(f's_mul_i32 s13, s{S_WAVE}, 5120')
        k(f's_add_u32 s13, s13, {WST_OFF + 1024*rnd}')
        k('s_mov_b32 m0, s13')
        srd(k, 16, P_WD, 0, 0)
        k('buffer_load_dwordx4 v61, s[16:19], 0 offen lds')
        k(f'{Ldone}:')
    else:
        _w_dma(k, kind, rnd, fl, ds)

def _w_dma(k, kind, rnd, fl, ds):
    k(f's_mul_i32 s13, s{S_WAVE}, 5120')
    k(f's_add_u32 s13, s13, {WST_OFF + 1024*rnd}')
    k('s_mov_b32 m0, s13')
    if kind == 'gu':
        udiv(k, 14, 12, 56)
        k('s_mul_i32 s15, s14, 56')
        k('s_sub_u32 s15, s12, s15')
        k('s_lshr_b32 s28, s15, 1')
        k('s_mul_i32 s28, s28, 16*3584')
        k('s_lshl_b32 s29, s14, 6')
        k('s_add_u32 s28, s28, s29')
        k('s_and_b32 s15, s15, 1')
        k('s_cmp_eq_u32 s15, 0')
        k(f's_cselect_b32 s16, s{P_WG}, s{P_WU}')
        k(f's_cselect_b32 s17, s{P_WG+1}, s{P_WU+1}')
        k(f's_mov_b32 s18, {448*1792*2:#x}')
        k('s_mov_b32 s19, 0x20000')
        k('buffer_load_dwordx4 v60, s[16:19], s28 offen lds')
        k(f's_lshl_b32 s{ds}, s12, 10')
        k(f's_mov_b32 s{fl}, 0')
    else:
        udiv(k, 14, 12, 112)
        k('s_mul_i32 s15, s14, 112')
        k('s_sub_u32 s15, s12, s15')
        k('s_mul_i32 s28, s15, 16*896')
        k('s_lshl_b32 s29, s14, 6')
        k('s_add_u32 s28, s28, s29')
        srd(k, 16, P_WD, 0, 1792 * 448 * 2)
        k('buffer_load_dwordx4 v61, s[16:19], s28 offen lds')
        k(f's_lshl_b32 s{ds}, s12, 10')
        k(f's_mov_b32 s{fl}, 1')

def ph_p0(k):
    k('s_lshl_b32 s48, s2, 2')
    k(f's_add_u32 s48, s48, s{S_WAVE}')
    Lnokv = label('nokv')
    ln_addr(k)
    srd(k, 28, P_Q, 0, SZ_ACT)
    k('s_mul_i32 s15, s2, 8*896')
    k('v_mul_u32_u24 v9, 896, v33')
    k('v_lshl_add_u32 v9, v5, 4, v9')
    k('v_add_u32 v9, s15, v9')
    k('v_add_u32 v10, 128, v9')
    k('v_cndmask_b32 v10, v8, v10, s[38:39]')
    k('s_cmp_ge_u32 s2, 224')
    k(f's_cbranch_scc1 {Lnokv}')
    udiv(k, 12, 2, 7)
    k('s_mul_i32 s13, s12, 7')
    k('s_sub_u32 s13, s2, s13')
    k('s_mov_b32 s62, s13')
    k(f'v_and_b32 v40, 7, v{V_LANE}')
    k(f'v_lshrrev_b32 v1, 3, v{V_LANE}')
    k(f's_lshl_b32 s14, s{S_WAVE}, 5')
    k('s_lshl_b32 s15, s13, 7')
    k('s_add_u32 s14, s14, s15')
    k('v_lshl_add_u32 v41, v1, 2, s14')
    k('s_mul_i32 s15, s12, 64*896')
    k('v_mul_u32_u24 v42, 8*896, v40')
    k('v_add3_u32 v42, v42, v41, s15')
    k('v_add_u32 v43, 5*896, v42')
    k('v_subrev_u32 v44, 3*896, v42')
    k('v_lshlrev_b32 v45, 2, v41')
    srd(k, 16, P_K, 0, SZ_ACT); srd(k, 20, P_V, 0, SZ_ACT); srd(k, 24, P_SH, 0, 448 * 8)
    K0 = 16; V0 = 48
    for j in range(3): k(f'buffer_load_dword v{K0+j}, v44, s[16:19], 0 offen offset:{896*j}')
    for j in range(5): k(f'buffer_load_dword v{K0+3+j}, v42, s[16:19], 0 offen offset:{896*j}')
    for j in range(3): k(f'buffer_load_dword v{K0+8+j}, v43, s[16:19], 0 offen offset:{896*j}')
    for j in range(5): k(f'buffer_load_dword v{V0+j}, v42, s[20:23], 0 offen offset:{896*j}')
    for j in range(3): k(f'buffer_load_dword v{V0+5+j}, v43, s[20:23], 0 offen offset:{896*j}')
    k('buffer_load_dwordx4 v[36:39], v45, s[24:27], 0 offen')
    k('s_lshl_b32 s13, s13, 6')
    k('s_lshl_b32 s14, s12, 1')
    k('s_add_u32 s13, s13, s14')
    k(f's_lshr_b32 s14, s{S_WAVE}, 1')
    k(f's_and_b32 s{S_PAR}, s{S_WAVE}, 1')
    k(f's_add_u32 s{S_CH}, s13, s14')
    k(f's_mul_i32 s{S_CHB}, s14, {CH_STRIDE}')
    k(f's_lshl_b32 s16, s{S_CH}, 12')
    srd_soff(k, 20, P_SSK, 0, 16, 4096)
    k(f's_lshl_b32 s17, s{S_PAR}, 11')
    k(f'v_add_u32 v92, s17, v{V_L16}')
    k('v_subrev_u32 v93, 16, v92')
    for r in range(2):
        k(f'buffer_load_dwordx4 v[{96+8*r}:{99+8*r}], v93, s[20:23], 0 offen offset:{1024*r}')
        k(f'buffer_load_dwordx4 v[{100+8*r}:{103+8*r}], v92, s[20:23], 0 offen offset:{1024*r}')
    k('buffer_load_dwordx4 v[232:235], v9, s[28:31], 0 offen')
    k('buffer_load_dwordx4 v[236:239], v10, s[28:31], 0 offen')
    k('v_lshlrev_b32 v46, 11, v41')
    k('s_lshl_b32 s32, s12, 7')
    k('v_lshlrev_b32 v47, 4, v40')
    k('v_add_u32 v47, s32, v47')
    k('v_sub_u32 v47, 4080, v47')
    k('v_add_u32 v47, v46, v47')
    srd(k, 28, P_WS, OFF_XR, SZ_XR)
    k('s_movk_i32 s33, 4096')
    mark(k, 'p0 issued')
    k('s_waitcnt vmcnt(6)')
    SK = 56
    for c in range(2):
        k(f'v_lshlrev_b32 v{SK+4*c+0}, 16, v{36+2*c}')
        k(f'v_and_b32 v{SK+4*c+1}, 0xffff0000, v{36+2*c}')
        k(f'v_lshlrev_b32 v{SK+4*c+2}, 16, v{37+2*c}')
        k(f'v_and_b32 v{SK+4*c+3}, 0xffff0000, v{37+2*c}')
    KF = 64
    for c in range(2):
        for j in range(11):
            if c == 0: k(f'v_lshlrev_b32 v{KF+j}, 16, v{K0+j}')
            else: k(f'v_and_b32 v{KF+j}, 0xffff0000, v{K0+j}')
        for t in range(8):
            if c == 0: k(f'v_lshlrev_b32 v{112+t}, 16, v{V0+t}')
            else: k(f'v_and_b32 v{112+t}, 0xffff0000, v{V0+t}')
        for t in range(8): k(f'v_mul_f32 v{76+t}, v{SK+4*c+3}, v{KF+t}')
        for t in range(8): k(f'v_fmac_f32 v{76+t}, v{SK+4*c+2}, v{KF+t+1}')
        for t in range(8): k(f'v_fmac_f32 v{76+t}, v{SK+4*c+1}, v{KF+t+2}')
        for t in range(8): k(f'v_fmac_f32 v{76+t}, v{SK+4*c+0}, v{KF+t+3}')
        for t in range(8): k(f'v_mul_f32 v{76+t}, v{76+t}, v{112+t}')
        o = 84 + 4 * c
        for i in range(4):
            k(f'v_cvt_pk_bf16_f32 v{o+i}, v{76+7-2*i}, v{76+6-2*i}')
        if c == 0: k(f'buffer_store_dwordx4 v[{o}:{o+3}], v47, s[28:31], 0 offen sc1')
        else: k(f'buffer_store_dwordx4 v[{o}:{o+3}], v47, s[28:31], s33 offen sc1')
    mark(k, 'kv stored')
    init_issue(k)
    Lj = label('p0j')
    k(f's_branch {Lj}')
    k(f'{Lnokv}:')
    k('buffer_load_dwordx4 v[232:235], v9, s[28:31], 0 offen')
    k('buffer_load_dwordx4 v[236:239], v10, s[28:31], 0 offen')
    k(f'{Lj}:')

def ph_p0_wdma(k):
    k(f'v_lshrrev_b32 v62, 2, v{V_LANE}')
    k(f'v_and_b32 v63, 3, v{V_LANE}')
    k('v_lshlrev_b32 v63, 4, v63')
    k('v_mul_u32_u24 v60, 3584, v62')
    k('v_add_u32 v60, v60, v63')
    k('v_mul_u32_u24 v61, 896, v62')
    k('v_add_u32 v61, v61, v63')
    for rnd in range(5): p0_weight_dma(k, rnd)
    mark(k, 'p0 dma issued')

def ph_p0_wfinish(k):
    k('s_waitcnt vmcnt(0)')
    k(f'v_and_b32 v62, 15, v{V_LANE}')
    k(f'v_lshrrev_b32 v63, 4, v{V_LANE}')
    k('v_lshrrev_b32 v64, 2, v62')
    k('v_and_b32 v65, 3, v62')
    k('v_lshlrev_b32 v65, 3, v65')
    k('v_and_b32 v66, 1, v63')
    k('v_lshl_add_u32 v65, v66, 5, v65')
    k('v_lshl_add_u32 v65, v64, 6, v65')
    k('v_lshrrev_b32 v63, 1, v63')
    k(f's_mul_i32 s13, s{S_WAVE}, 5120')
    k(f's_add_u32 s13, s13, {WST_OFF}')
    k('v_add_u32 v65, s13, v65')
    k('v_lshl_add_u32 v66, v63, 9, v65')
    k('v_lshl_add_u32 v67, v63, 8, v65')
    for rnd in range(5):
        fl = 34 + rnd
        o = 112 + 4 * rnd
        Lwd = label('trw'); Le = label('tre')
        if rnd < 3:
            k(f'ds_read_b64_tr_b16 v[{o}:{o+1}], v66 offset:{1024*rnd}')
            k(f'ds_read_b64_tr_b16 v[{o+2}:{o+3}], v66 offset:{1024*rnd + 256}')
        elif rnd == 3:
            k(f'ds_read_b64_tr_b16 v[{o}:{o+1}], v67 offset:{1024*rnd}')
            k(f'ds_read_b64_tr_b16 v[{o+2}:{o+3}], v67 offset:{1024*rnd + 512}')
        else:
            k(f's_cmp_eq_u32 s{fl}, 1')
            k(f's_cbranch_scc1 {Lwd}')
            k(f'ds_read_b64_tr_b16 v[{o}:{o+1}], v66 offset:{1024*rnd}')
            k(f'ds_read_b64_tr_b16 v[{o+2}:{o+3}], v66 offset:{1024*rnd + 256}')
            k(f's_branch {Le}')
            k(f'{Lwd}:')
            k(f'ds_read_b64_tr_b16 v[{o}:{o+1}], v67 offset:{1024*rnd}')
            k(f'ds_read_b64_tr_b16 v[{o+2}:{o+3}], v67 offset:{1024*rnd + 512}')
            k(f'{Le}:')
    k('s_waitcnt lgkmcnt(0)')
    for rnd in range(4):
        o = 112 + 4 * rnd
        sr = SR_WGU if rnd < 3 else SR_WD
        k(f'buffer_store_dwordx4 v[{o}:{o+3}], v{V_L16}, s[{sr}:{sr+3}], s{40+rnd} offen sc1')
    Lwd = label('stw'); Le = label('ste')
    k('s_cmp_eq_u32 s38, 2')
    k(f's_cbranch_scc1 {Le}')
    k('s_cmp_eq_u32 s38, 1')
    k(f's_cbranch_scc1 {Lwd}')
    k(f'buffer_store_dwordx4 v[128:131], v{V_L16}, s[{SR_WGU}:{SR_WGU+3}], s44 offen sc1')
    k(f's_branch {Le}')
    k(f'{Lwd}:')
    k(f'buffer_store_dwordx4 v[128:131], v{V_L16}, s[{SR_WD}:{SR_WD+3}], s44 offen sc1')
    k(f'{Le}:')
    mark(k, 'w stored')

def ph_conv_prep(k):
    k(f'v_add_u32 v6, s{S_CHB}, v92')
    k('v_add_u32 v6, 16, v6')
    for i in range(4): k(f'v_mov_b32 v{8+i}, 0')
    La = label('cz'); Lb = label('cz')
    k(f's_cmp_eq_u32 s{S_PAR}, 0')
    k(f's_cbranch_scc0 {La}')
    k(f'v_mul_u32_u24 v7, 4160, v{V_LANE}')
    k(f'v_add_u32 v7, s{S_CHB}, v7')
    k(f'v_cmp_gt_u32 vcc, 8, v{V_LANE}')
    k('s_and_saveexec_b64 s[30:31], vcc')
    k('ds_write_b128 v7, v[8:11]')
    k('s_mov_b64 exec, s[30:31]')
    k(f's_branch {Lb}')
    k(f'{La}:')
    k(f'v_add_u32 v7, s{S_CHB}, v{V_L16}')
    k(f'v_add_u32 v7, {XRL_OFF + 4096}, v7')
    k(f'v_cmp_gt_u32 vcc, 30, v{V_LANE}')
    k('s_and_saveexec_b64 s[30:31], vcc')
    k('ds_write_b128 v7, v[8:11]')
    k('s_mov_b64 exec, s[30:31]')
    k(f'{Lb}:')
    for r in range(2):
        W = 96 + 8 * r
        for c in range(8):
            s = c + 1
            T = 16 + 4 * (c % 4) + 16 * r
            if s % 2 == 1:
                kk = (s - 1) // 2
                for i in range(4): k(f'v_alignbit_b32 v{T+i}, v{W+kk+i+1}, v{W+kk+i}, 16')
                src = T
            else:
                kk = s // 2
                if kk % 2 == 0: src = W + kk
                else:
                    for i in range(4): k(f'v_mov_b32 v{T+i}, v{W+kk+i}')
                    src = T
            k(f'ds_write_b128 v6, v[{src}:{src+3}] offset:{c*4160 + 1024*r}')

def g1_wload(k, ks):
    out = []
    if ks % 2 == 0: out.append(f's_add_u32 s45, s{S_WOFF}, {ks*2048}')
    o = (ks % 2) * 2048
    out.append(f'buffer_load_dwordx4 a[{8*ks}:{8*ks+3}], v{V_L16}, s[{SR_WGU}:{SR_WGU+3}], s45 offen offset:{o} sc1')
    out.append(f'buffer_load_dwordx4 a[{8*ks+4}:{8*ks+7}], v{V_L16}, s[{SR_WGU}:{SR_WGU+3}], s45 offen offset:{o+1024} sc1')
    return out

class Cap:
    def __init__(self): self.L = []
    def __call__(self, x): self.L.append(x)

def sprinkle(k, lines, fillers, tagf, skip_head=0, skip_tail=0):
    n = len(lines) - skip_head - skip_tail
    fi = 0; nf = len(fillers)
    masked = False
    for i, ln in enumerate(lines):
        if isinstance(ln, tuple): emit_vm(k, ln[0], ln[1])
        else:
            k(ln)
            if 'saveexec' in ln: masked = True
            if ln.startswith('s_mov_b64 exec'): masked = False
        j = i - skip_head + 1
        if j > 0 and n > 0 and not masked:
            tgt = min(nf, (nf * j + n - 1) // n)
            while fi < tgt:
                for ins in fillers[fi][0]: emit_vm(k, ins, fillers[fi][1])
                fi += 1
    while fi < nf:
        for ins in fillers[fi][0]: emit_vm(k, ins, fillers[fi][1])
        fi += 1

def g1_pf_groups(ks0, ks1):
    out = []
    for ks in range(ks0, ks1):
        base = ks - (ks % 2); o = (ks % 2) * 2048
        pre = [f's_add_u32 s45, s{S_WOFF}, {base*2048}'] if (ks % 2 == 0 or ks == ks0) else []
        out.append((pre + [f'buffer_load_dwordx4 a[{8*ks}:{8*ks+3}], v{V_L16}, s[{SR_WGU}:{SR_WGU+3}], s45 offen offset:{o} sc1'], ('W', ks)))
        out.append(([f'buffer_load_dwordx4 a[{8*ks+4}:{8*ks+7}], v{V_L16}, s[{SR_WGU}:{SR_WGU+3}], s45 offen offset:{o+1024} sc1'], ('W', ks)))
    return out

def emit_vm(k, ins, tag):
    k(ins)
    if ins.startswith('buffer_'): vm.add(tag)

def g1_wprefetch(k, ks0, ks1):
    for grp, tag in g1_pf_groups(ks0, ks1):
        for ins in grp: emit_vm(k, ins, tag)

def l2_warm(k, sr, nbytes_half, whole=False):
    per = nbytes_half // 16
    assert per % 1024 == 0
    n = per // 1024
    k(f's_sub_u32 s12, s{S_I}, 28')
    k('s_lshl_b32 s12, s12, 2')
    k(f's_add_u32 s12, s12, s{S_WAVE}')
    k(f's_mul_i32 s12, s12, {per}')
    if not whole:
        k(f's_and_b32 s13, s{S_XCD}, 1')
        k(f's_mul_i32 s13, s13, {nbytes_half}')
        k('s_add_u32 s12, s12, s13')
    Ll = label('warm')
    k(f's_mov_b32 s13, {n // 4}')
    k(f'{Ll}:')
    for j in range(4):
        k(f'buffer_load_dwordx4 v[{16+4*j}:{19+4*j}], v{V_L16}, s[{sr}:{sr+3}], s12 offen offset:{1024*j} sc1')
    k('s_add_u32 s12, s12, 4096')
    k('s_sub_u32 s13, s13, 1')
    k('s_cmp_lg_u32 s13, 0')
    k('s_waitcnt vmcnt(24)')
    k(f's_cbranch_scc1 {Ll}')
    for j in range(n % 4):
        k(f'buffer_load_dwordx4 v[{16+4*j}:{19+4*j}], v{V_L16}, s[{sr}:{sr+3}], s12 offen offset:{1024*j} sc1')

def ph_conv(k):
    srd(k, 16, P_WS, OFF_XR, SZ_XR)
    srd(k, 24, P_WS, OFF_YT, SZ_ACT)
    k(f's_lshl_b32 s20, s{S_CH}, 12')
    k(f's_lshl_b32 s21, s{S_PAR}, 11')
    k('s_add_u32 s20, s20, s21')
    k(f'buffer_load_dwordx4 v[16:19], v{V_L16}, s[16:19], s20 offen sc1')
    k(f'buffer_load_dwordx4 v[20:23], v{V_L16}, s[16:19], s20 offen offset:1024 sc1')
    k(f's_and_b32 s28, s{S_CH}, 0xfffffffe')
    k('s_lshl_b32 s28, s28, 1')
    k(f's_load_dword s29, s[{P_SSD}:{P_SSD+1}], s28')
    k(f's_add_u32 s21, s21, s{S_CHB}')
    k(f's_add_u32 s21, s21, {XRL_OFF}')
    k(f'v_add_u32 v4, s21, v{V_L16}')
    k(f'v_and_b32 v5, 15, v{V_LANE}')
    k(f'v_lshrrev_b32 v6, 4, v{V_LANE}')
    k('v_lshlrev_b32 v7, 4, v6')
    k('v_lshlrev_b32 v8, 5, v5')
    k('v_sub_u32 v7, v7, v8')
    k(f's_lshl_b32 s22, s{S_PAR}, 6')
    k(f's_add_u32 s22, s22, s{S_CHB}')
    k(f's_add_u32 s22, s22, {XRL_OFF + 544 - 64}')
    k('v_add_u32 v7, s22, v7')
    k('v_and_b32 v12, 7, v5')
    k('v_mul_u32_u24 v12, 4160, v12')
    k('v_lshrrev_b32 v13, 3, v5')
    k('v_add_u32 v13, v6, v13')
    k('v_lshlrev_b32 v13, 4, v13')
    k('v_add_u32 v12, v12, v13')
    k(f's_lshl_b32 s22, s{S_PAR}, 6')
    k(f's_add_u32 s22, s22, s{S_CHB}')
    k('v_add_u32 v12, s22, v12')
    k('s_waitcnt vmcnt(0)')
    k('ds_write_b128 v4, v[16:19]')
    k('ds_write_b128 v4, v[20:23] offset:1024')
    k('s_waitcnt lgkmcnt(0)')
    k('s_barrier')
    mark(k, 'conv:x in lds')
    ph_p0_wfinish(k)
    ACC = 16; FR = 48; AR = 176; NA = 8
    order = list(range(31, -1, -1))
    def frags(jj): return [(at, 4 * at - jj + 3) for at in range(jj // 4, 8)]
    pend = []
    def issue(tag, txt): k(txt); pend.append(tag)
    def wait_for(tags):
        idx = [pend.index(t) for t in tags if t in pend]
        if idx:
            n = min(len(pend) - 1 - max(idx), 15)
            k(f's_waitcnt lgkmcnt({n})')
            pend[:] = pend[len(pend) - n:] if n > 0 else []
    loadedF = set()
    def issueA(idx):
        jj = order[idx]; r = AR + 4 * (idx % NA)
        issue(('A', jj), f'ds_read_b128 v[{r}:{r+3}], v12 offset:{128*jj}')
    def issueF(idx):
        for at, n in frags(order[idx]):
            if n not in loadedF:
                loadedF.add(n)
                issue(('F', n), f'ds_read_b128 v[{FR+4*n}:{FR+4*n+3}], v7 offset:{128*(31-n)}')
    LA = 4
    for idx in range(LA): issueA(idx); issueF(idx)
    first = set()
    nm = 0
    for idx, jj in enumerate(order):
        if idx + LA < 32: issueA(idx + LA); issueF(idx + LA)
        wait_for([('A', jj)] + [('F', n) for _, n in frags(jj)])
        r = AR + 4 * (idx % NA)
        for at, n in frags(jj):
            c = f'v[{ACC+4*at}:{ACC+4*at+3}]' if at in first else '0'
            first.add(at)
            k(f'v_mfma_f32_16x16x32_bf16 v[{ACC+4*at}:{ACC+4*at+3}], v[{r}:{r+3}], v[{FR+4*n}:{FR+4*n+3}], {c}')
    mark(k, 'conv:mfma done')
    k(f's_lshl_b32 s41, s{S_WAVE}, 12')
    k(f's_add_u32 s41, s41, {CONV_SCR}')
    k(f'v_add_u32 v8, s41, v{V_L16}')
    k(f's_xor_b32 s42, s{S_WAVE}, 1')
    k('s_lshl_b32 s42, s42, 12')
    k(f's_add_u32 s42, s42, {CONV_SCR}')
    k(f'v_add_u32 v9, s42, v{V_L16}')
    k('v_lshlrev_b32 v10, 5, v5')
    k('v_lshl_add_u32 v10, v6, 3, v10')
    k(f's_lshl_b32 s43, s{S_PAR}, 11')
    k(f's_sub_u32 s43, s{S_CHB}, s43')
    k(f's_add_u32 s43, s43, {XRL_OFF + 4088 - 512*3}')
    k('v_sub_u32 v11, s43, v10')
    k('v_and_b32 v13, 1, v6')
    k('v_lshlrev_b32 v13, 5, v13')
    k('v_lshl_add_u32 v13, v5, 1, v13')
    k('v_lshrrev_b32 v14, 1, v6')
    k('v_add_u32 v13, v13, v14')
    k(f's_lshl_b32 s44, s{S_PAR}, 7')
    k('v_add_u32 v13, s44, v13')
    k('v_lshlrev_b32 v13, 5, v13')
    k(f's_lshr_b32 s44, s{S_WAVE}, 1')
    k('s_lshl_b32 s44, s44, 4')
    k(f's_add_u32 s44, s44, {YB_SCR}')
    k('v_add_u32 v13, s44, v13')
    k(f's_lshl_b32 s44, s{S_WAVE}, 11')
    k(f's_add_u32 s44, s44, {YB_SCR}')
    k(f'v_add_u32 v14, s44, v{V_L16}')
    k(f'v_lshrrev_b32 v10, 1, v{V_LANE}')
    k('v_mul_u32_u24 v10, 7168, v10')
    k(f'v_and_b32 v15, 1, v{V_LANE}')
    k('v_lshl_add_u32 v10, v15, 4, v10')
    k(f's_and_b32 s44, s{S_CH}, 0xfffffffe')
    k('s_lshl_b32 s44, s44, 4')
    k(f's_mul_i32 s45, s{S_WAVE}, 64*7168')
    k('s_add_u32 s44, s44, s45')
    k('v_add_u32 v10, s44, v10')
    La = label('cp'); Lb = label('cp')
    k(f's_cmp_eq_u32 s{S_PAR}, 0')
    k(f's_cbranch_scc0 {La}')
    for i in range(4): k(f'ds_write_b128 v8, v[{ACC+16+4*i}:{ACC+16+4*i+3}] offset:{1024*i}')
    k(f's_branch {Lb}')
    k(f'{La}:')
    k('s_nop 7')
    for i in range(4): k(f'ds_write_b128 v8, v[{ACC+4*i}:{ACC+4*i+3}] offset:{1024*i}')
    for i in range(16): k(f'v_mov_b32 v{ACC+i}, v{ACC+16+i}')
    k(f'{Lb}:')
    k('s_waitcnt lgkmcnt(0)')
    k('s_lshl_b32 s36, s29, 16')
    k('s_and_b32 s37, s29, 0xffff0000')
    k(f's_and_b32 s34, s{S_CH}, 1')
    k('s_cmp_eq_u32 s34, 0')
    k('s_cselect_b32 s36, s36, s37')
    k('s_waitcnt vmcnt(0)')
    k('s_barrier')
    k(f's_add_u32 s59, s{S_XCD}, {L_W}')
    signal(k, line_sreg=59)
    for i in range(4): k(f'ds_read_b128 v[{48+4*i}:{51+4*i}], v9 offset:{1024*i}')
    for i in range(4): k(f'ds_read_b64 v[{64+2*i}:{65+2*i}], v11 offset:{512*(3-i)}')
    k('s_waitcnt lgkmcnt(0)')
    for i in range(4):
        a = ACC + 4 * i
        for r in range(4): k(f'v_add_f32 v{a+r}, v{a+r}, v{48+4*i+r}')
        x0, x1 = 64 + 2 * i, 65 + 2 * i
        k(f'v_and_b32 v72, 0xffff0000, v{x1}')
        k(f'v_lshlrev_b32 v73, 16, v{x1}')
        k(f'v_and_b32 v74, 0xffff0000, v{x0}')
        k(f'v_lshlrev_b32 v75, 16, v{x0}')
        for r in range(4): k(f'v_fmac_f32 v{a+r}, s36, v{72+r}')
        k(f'v_cvt_pk_bf16_f32 v{76+2*i}, v{a}, v{a+1}')
        k(f'v_cvt_pk_bf16_f32 v{77+2*i}, v{a+2}, v{a+3}')
    for p in range(2):
        o = 76 + 4 * p
        k(f'v_permlane16_swap_b32 v{o}, v{o+2}')
        k(f'v_permlane16_swap_b32 v{o+1}, v{o+3}')
        k(f'ds_write_b128 v13, v[{o}:{o+3}] offset:{2048*p}')
    k('s_waitcnt lgkmcnt(0)')
    k('s_barrier')
    k('ds_read_b128 v[84:87], v14')
    k('ds_read_b128 v[88:91], v14 offset:1024')
    k('s_waitcnt lgkmcnt(1)')
    emit_vm(k, 'buffer_store_dwordx4 v[84:87], v10, s[24:27], 0 offen sc1', ('YT', 0))
    k('s_mov_b32 s45, 32*7168')
    k('s_waitcnt lgkmcnt(0)')
    emit_vm(k, 'buffer_store_dwordx4 v[88:91], v10, s[24:27], s45 offen sc1', ('YT', 1))

def wave_reduce8(k, regs, tmp):
    for r in regs: k(f'v_add_f32_dpp v{r}, v{r}, v{r} row_ror:8 row_mask:0xf bank_mask:0xf')
    for r, t in zip(regs, tmp): k(f'v_mov_b32 v{t}, v{r}')
    for r, t in zip(regs, tmp): k(f'v_permlane16_swap_b32 v{r}, v{t}')
    for r, t in zip(regs, tmp): k(f'v_add_f32 v{r}, v{r}, v{t}')
    for r, t in zip(regs, tmp): k(f'v_mov_b32 v{t}, v{r}')
    for r, t in zip(regs, tmp): k(f'v_permlane32_swap_b32 v{r}, v{t}')
    for r, t in zip(regs, tmp): k(f'v_add_f32 v{r}, v{r}, v{t}')

LN_BASE = 122880
LN_PART = LN_BASE + 56 * 144
X_ = 16; Y_ = 24; XF = 36; YF = 52; T_ = 68

def ln_unpack(k, dst, src, n):
    for i in range(n):
        k(f'v_lshlrev_b32 v{dst+2*i}, 16, v{src+i}')
        k(f'v_and_b32 v{dst+2*i+1}, 0xffff0000, v{src+i}')

def ln_stats(k, buf):
    k(f'v_add_f32 v84, v{XF}, v{XF+1}')
    k(f'v_mul_f32 v85, v{XF}, v{XF}')
    k(f'v_add_f32 v86, v{XF+2}, v{XF+3}')
    k(f'v_mul_f32 v87, v{XF+1}, v{XF+1}')
    k(f'v_fmac_f32 v85, v{XF+2}, v{XF+2}')
    k(f'v_fmac_f32 v87, v{XF+3}, v{XF+3}')
    for i in range(4, 16, 2):
        k(f'v_add_f32 v84, v84, v{XF+i}')
        k(f'v_add_f32 v86, v86, v{XF+i+1}')
        k(f'v_fmac_f32 v85, v{XF+i}, v{XF+i}')
        k(f'v_fmac_f32 v87, v{XF+i+1}, v{XF+i+1}')
    k('v_add_f32 v84, v84, v86')
    k('v_add_f32 v85, v85, v87')
    wave_reduce8(k, [84, 85], [86, 87])
    k(f'v_cmp_gt_u32 vcc, 8, v{V_LANE}')
    k('s_and_saveexec_b64 s[40:41], vcc')
    k(f'ds_write_b64 v32, v[84:85] offset:{256*buf}')
    k('s_mov_b64 exec, s[40:41]')
    k('s_waitcnt lgkmcnt(0)')
    k('s_barrier')
    for w in range(4): k(f'ds_read_b64 v[{88+2*w}:{89+2*w}], v15 offset:{256*buf + 64*w}')

def ln_finish(k):
    k('v_add_f32 v88, v88, v90'); k('v_add_f32 v89, v89, v91')
    k('v_add_f32 v92, v92, v94'); k('v_add_f32 v93, v93, v95')
    k('v_add_f32 v88, v88, v92'); k('v_add_f32 v89, v89, v93')
    k('v_mul_f32 v84, 0x3b124925, v88')
    k('v_mul_f32 v85, 0x3b124925, v89')
    k('v_fma_f32 v85, -v84, v84, v85')
    k('v_max_f32 v85, 0, v85')
    k('v_add_f32 v85, 0x3727c5ac, v85')
    k('v_rsq_f32 v85, v85')
    k('v_mul_f32 v86, v84, v85')

def ln_addr(k):
    k(f'v_and_b32 v33, 7, v{V_LANE}')
    k(f'v_lshrrev_b32 v4, 3, v{V_LANE}')
    k(f's_mul_i32 s12, s{S_WAVE}, 14')
    k('v_add_u32 v5, s12, v4')
    k('s_lshr_b32 s13, s2, 2')
    k('s_mul_i32 s13, s13, 28672')
    k('s_and_b32 s14, s2, 3')
    k('s_lshl_b32 s14, s14, 7')
    k('s_add_u32 s13, s13, s14')
    k('v_lshlrev_b32 v6, 9, v5')
    k('v_lshl_add_u32 v6, v33, 4, v6')
    k('v_add_u32 v6, s13, v6')
    k('v_add_u32 v7, 4096, v6')
    k('v_mov_b32 v8, 0x80000000')
    k('v_cmp_gt_u32 vcc, 6, v4')
    k('v_cmp_gt_u32 s[38:39], 6, v4')
    k('v_cndmask_b32 v7, v8, v7, vcc')
    k('v_lshlrev_b32 v15, 3, v33')
    k(f'v_add_u32 v15, {LN_PART}, v15')
    k(f's_lshl_b32 s37, s{S_WAVE}, 6')
    k('v_add_u32 v32, s37, v15')

def ph_ln1_pre(k):
    ln_addr(k)
    k('v_lshlrev_b32 v11, 4, v0')
    k('v_add_u32 v12, 4096, v11')
    k('v_cmp_gt_u32 vcc, 192, v0')
    k('v_cndmask_b32 v12, v8, v12, vcc')
    k('v_lshrrev_b32 v13, 3, v0')
    k('v_add_u32 v13, v13, v0')
    k('v_lshlrev_b32 v13, 4, v13')
    k(f'v_add_u32 v13, {LN_BASE}, v13')
    k('v_mul_u32_u24 v14, 144, v5')
    k('v_lshl_add_u32 v14, v33, 1, v14')
    k(f'v_add_u32 v14, {LN_BASE}, v14')
    ln_unpack(k, XF, 232, 8)
    ln_stats(k, 0)
    k('s_waitcnt lgkmcnt(0)')
    ln_finish(k)
    for j in range(16): k(f'v_fma_f32 v{T_+j}, v{XF+j}, v85, -v86')

def ln_tail(k, sr_x, sr_xn, pf_range, tagp):
    for j in range(16): k(f'v_fmac_f32 v{XF+j}, v{T_+j}, v{YF+j}')
    for i in range(8): k(f'v_cvt_pk_bf16_f32 v{X_+i}, v{XF+2*i}, v{XF+2*i+1}')
    ln_unpack(k, XF, X_, 8)
    emit_vm(k, f'buffer_store_dwordx4 v[{X_}:{X_+3}], v6, s[{sr_x}:{sr_x+3}], 0 offen sc1', (tagp, 'x0'))
    emit_vm(k, f'buffer_store_dwordx4 v[{X_+4}:{X_+7}], v7, s[{sr_x}:{sr_x+3}], 0 offen sc1', (tagp, 'x1'))
    ln_stats(k, 1)
    k('s_waitcnt lgkmcnt(0)')
    ln_finish(k)
    for j in range(16): k(f'v_fma_f32 v{T_+j}, v{XF+j}, v85, -v86')
    for i in range(8): k(f'v_cvt_pk_bf16_f32 v{YF+i}, v{T_+2*i}, v{T_+2*i+1}')
    emit_vm(k, f'buffer_store_dwordx4 v[{YF}:{YF+3}], v6, s[{sr_xn}:{sr_xn+3}], 0 offen sc1', (tagp, 'n0'))
    emit_vm(k, f'buffer_store_dwordx4 v[{YF+4}:{YF+7}], v7, s[{sr_xn}:{sr_xn+3}], 0 offen sc1', (tagp, 'n1'))
    g1_wprefetch(k, *pf_range)
    return vm.wait((tagp, 'n1'))

def ph_ln1(k):
    srd(k, 32, P_WS, OFF_YT, SZ_ACT)
    k('s_mul_i32 s36, s2, 7168')
    emit_vm(k, 'buffer_load_dwordx4 v[24:27], v11, s[32:35], s36 offen sc1', ('ln1', 'yl0'))
    emit_vm(k, 'buffer_load_dwordx4 v[28:31], v12, s[32:35], s36 offen sc1', ('ln1', 'yl1'))
    srd(k, 16, P_WS, OFF_XN1, SZ_ACT); srd(k, 20, P_WS, OFF_X1, SZ_ACT); srd(k, 24, P_WS, OFF_YF, SZ_ACT)
    g1_wprefetch(k, P0A, P0B)
    k(vm.wait(('ln1', 'yl1')))
    k('ds_write_b128 v13, v[24:27]')
    k('v_cmp_gt_u32 vcc, 192, v0')
    k('s_and_saveexec_b64 s[40:41], vcc')
    k('ds_write_b128 v13, v[28:31] offset:4608')
    k('s_mov_b64 exec, s[40:41]')
    k('s_waitcnt lgkmcnt(0)')
    k('s_barrier')
    mark(k, 'ln1:y in lds')
    for j in range(8): k(f'ds_read_u16 v{YF+j}, v14 offset:{16*j}')
    for j in range(8): k(f'ds_read_u16 v{YF+8+j}, v14 offset:{8*144 + 16*j}')
    k('s_waitcnt lgkmcnt(0)')
    for i in range(8): k(f'v_lshl_or_b32 v{Y_+i}, v{YF+2*i+1}, 16, v{YF+2*i}')
    for j in range(16): k(f'v_lshlrev_b32 v{YF+j}, 16, v{YF+j}')
    for j in range(8, 16): k(f'v_cndmask_b32 v{YF+j}, 0, v{YF+j}, s[38:39]')
    emit_vm(k, f'buffer_store_dwordx4 v[{Y_}:{Y_+3}], v6, s[24:27], 0 offen sc1', ('ln1', 'y0'))
    emit_vm(k, f'buffer_store_dwordx4 v[{Y_+4}:{Y_+7}], v7, s[24:27], 0 offen sc1', ('ln1', 'y1'))
    return ln_tail(k, 20, 16, (P0B, PB), 'ln1')

def ph_ln2_pre(k):
    ln_addr(k)
    srd(k, 24, P_WS, OFF_YF, SZ_ACT)
    k(f'buffer_load_dwordx4 v[{Y_}:{Y_+3}], v6, s[24:27], 0 offen sc1')
    k(f'buffer_load_dwordx4 v[{Y_+4}:{Y_+7}], v7, s[24:27], 0 offen sc1')
    srd(k, 16, P_WS, OFF_XN2, SZ_ACT); srd(k, 20, P_WS, OFF_X3, SZ_ACT); srd(k, 28, P_WS, OFF_X2, SZ_ACT)

def ph_ln2(k):
    emit_vm(k, f'buffer_load_dwordx4 v[{X_}:{X_+3}], v6, s[28:31], 0 offen sc1', ('ln2', 'xl0'))
    emit_vm(k, f'buffer_load_dwordx4 v[{X_+4}:{X_+7}], v7, s[28:31], 0 offen sc1', ('ln2', 'xl1'))
    g1_wprefetch(k, P1A, P1B)
    k(vm.wait(('ln2', 'xl1')))
    mark(k, 'ln2:loaded')
    ln_unpack(k, YF, Y_, 8)
    ln_unpack(k, XF, X_, 8)
    ln_stats(k, 0)
    k('s_waitcnt lgkmcnt(0)')
    ln_finish(k)
    for j in range(16): k(f'v_fma_f32 v{T_+j}, v{XF+j}, v85, -v86')
    return ln_tail(k, 20, 16, (P1B, PB), 'ln2')

WD_LOC = [('a', 224 + 4*i) for i in range(8)] + [('v', 168 + 4*i) for i in range(20)] + \
         [('v', 112 + 4*i) for i in range(14)] + [('a', 4*i) for i in range(14)]
def rr(loc, n=4): return f'{loc[0]}[{loc[1]}:{loc[1]+n-1}]'

def wd_load(n):
    ks, ct = n >> 1, n & 1
    pre = ['s_add_u32 s20, s20, 4096'] if (ct == 0 and ks % 4 == 0 and ks > 0) else []
    sr = SR_WD if ct == 0 else 28
    return pre + [f'buffer_load_dwordx4 {rr(WD_LOC[n])}, v{V_L16}, s[{sr}:{sr+3}], s20 offen offset:{(ks%4)*1024} sc1']

def hloc(t, ks):
    if t == 0: return 56 + 4 * ks
    return (168 + 4 * ks) if ks < 14 else (56 + 4 * (ks - 14))

def hload_ins(t, ks):
    cur = 22 if t == 0 else 23
    pre = [f's_add_u32 s{cur}, s{cur}, 4096'] if (ks % 4 == 0 and ks > 0) else []
    r = hloc(t, ks)
    return pre + [f'buffer_load_dwordx4 a[{r}:{r+3}], v{V_L16}, s[24:27], s{cur} offen offset:{(ks%4)*1024} sc1']

TOK_PD = 4
def ph_g1(k):
    layer = 'L'
    k(f's_mul_i32 s12, s{S_LAYER}, {OFF_XN2 - OFF_XN1:#x}')
    srd_soff(k, 16, P_WS, OFF_XN1, 12, SZ_ACT)
    k(f's_lshl_b32 s32, s{S_RB}, 2')
    k('s_mul_i32 s34, s32, 28672')
    k(f's_mul_i32 s36, s{S_WAVE}, 7168')
    k('s_add_u32 s34, s34, s36')
    ST = 112; ACC = 16; TF = 80; TM = 100
    NR = TOK_PD + 1
    lg = LG()
    def lds(ins, tag): k(ins); lg.add(tag)
    def tok_load(tt):
        for j in range(7):
            r = ST + 28 * (tt % 2) + 4 * j
            if j % 4 == 0: k(f's_add_u32 s37, s34, {tt*28672 + (j//4)*4096}')
            emit_vm(k, f'buffer_load_dwordx4 v[{r}:{r+3}], v{V_L16}, s[16:19], s37 offen offset:{(j%4)*1024} sc1', ('T', layer, tt, j))
    tok_load(0); tok_load(1)
    g1_wprefetch(k, PC, PD_)
    k(f's_mul_i32 s12, s{S_LAYER}, {OFF_H2 - OFF_H1:#x}')
    srd_soff(k, 24, P_WS, OFF_H1, 12, SZ_H)
    k(f'v_add_u32 v4, s36, v{V_L16}')
    k('v_add_u32 v5, 57344, v4')
    k(f'v_add_u32 v6, 57344, v{V_L16}')
    k(f's_lshl_b32 s31, s{S_FS}, 2')
    k(f's_add_u32 s31, s31, s{S_WAVE}')
    k('s_lshl_b32 s40, s31, 11')
    k(f's_mul_i32 s15, s{S_LAYER}, {L_DELTA}')
    k(f's_add_u32 s33, s32, s15')
    k(f's_add_u32 s21, s33, {L_XN0 + 2}')
    k(f's_add_u32 s33, s33, {L_H0}')
    k(f's_lshr_b32 s12, s{S_RT}, 1')
    k(f's_and_b32 s13, s{S_RT}, 1')
    k('s_lshl_b32 s14, s12, 2')
    k('s_add_u32 s42, s14, s13')
    k('s_sub_u32 s43, 3, s13')
    k('s_add_u32 s43, s43, s14')
    k('s_add_u32 s56, s42, s15'); k(f's_add_u32 s56, s56, {L_H0}')
    k('s_add_u32 s57, s43, s15'); k(f's_add_u32 s57, s57, {L_H0}')
    k(f's_mul_i32 s12, s{S_WAVE}, 28*1024')
    k('s_mul_i32 s22, s42, 112*1024'); k('s_add_u32 s22, s22, s12')
    k('s_mul_i32 s23, s43, 112*1024'); k('s_add_u32 s23, s23, s12')
    srd(k, 28, P_WS, OFF_WD + 112 * 1024, SZ_WD - 112 * 1024)
    k(f's_mov_b32 s20, s{S_DOFF}')
    def tok_write_one(tt, j):
        base = 'v4' if tt < 2 else 'v5'
        r = ST + 28 * (tt % 2) + 4 * j
        lds(f'ds_write_b128 {base}, v[{r}:{r+3}] offset:{(tt%2)*28672 + j*1024}', ('w', tt, j))
    def tok_read(step):
        tt, ks = divmod(step, 28)
        r = TF + 4 * (step % NR)
        base = f'v{V_L16}' if tt < 2 else 'v6'
        lds(f'ds_read_b128 v[{r}:{r+3}], {base} offset:{(tt%2)*28672 + ks*1024}', ('r', step))
    def epilogue(tt):
        g = ACC + 32 * (tt % 2); u = g + 16
        T = TM
        out = [f's_add_u32 s41, s32, {tt}', 's_mul_i32 s41, s41, 112*1024', 's_add_u32 s41, s41, s40']
        for s in range(2):
            b = 8 * s
            for i in range(8): out.append(f'v_mul_f32 v{T+i}, 0xbfb8aa3b, v{g+b+i}')
            for i in range(8): out.append(f'v_exp_f32 v{T+i}, v{T+i}')
            for i in range(8): out.append(f'v_mul_f32 v{u+b+i}, v{g+b+i}, v{u+b+i}')
            for i in range(8): out.append(f'v_add_f32 v{T+i}, 1.0, v{T+i}')
            for i in range(8): out.append(f'v_rcp_f32 v{T+i}, v{T+i}')
            for i in range(8): out.append(f'v_mul_f32 v{u+b+i}, v{u+b+i}, v{T+i}')
            o = g + b
            for q in range(4): out.append(f'v_cvt_pk_bf16_f32 v{o+q}, v{u+b+2*q}, v{u+b+2*q+1}')
            out.append(f'buffer_store_dwordx4 v[{o}:{o+3}], v{V_L16}, s[24:27], s41 offen offset:{1024*s} sc1')
        return out
    k(vm.wait(('T', layer, 0, 6)))
    for j in range(7): tok_write_one(0, j)
    k(lg.wait(('w', 0, 6)))
    k('s_barrier')
    lmark(k, 'g1:tok0')
    sched = {0: [(n, 6) for n in range(0, 11)], 1: [(n, 0) for n in range(11, 28)],
             2: [(n, 0) for n in range(28, 35)] + [(n, 17) for n in range(35, 40)],
             3: [(n, 0) for n in range(40, 42)] + [(n, (n - 42) // 2 + 1) for n in range(42, 56)]}
    PD = TOK_PD
    for st in range(PD): tok_read(st)
    for tt in range(4):
        g = ACC + 32 * (tt % 2); u = g + 16
        fill = epilogue(tt - 1) if tt > 0 else []
        nf = len(fill); fi = 0
        wq = list(sched[tt])
        for ks in range(28):
            step = 28 * tt + ks
            if tt == 0 and ks >= PB:
                k(vm.wait(('W', ks)))
            w = lg.wait(('r', step))
            if w: k(w)
            b = TF + 4 * (step % NR)
            cg = f'v[{g}:{g+15}]' if ks else '0'
            cu = f'v[{u}:{u+15}]' if ks else '0'
            k(f'v_mfma_f32_32x32x16_bf16 v[{g}:{g+15}], a[{8*ks}:{8*ks+3}], v[{b}:{b+3}], {cg}')
            if step + PD < 112: tok_read(step + PD)
            tgt = (nf * (2 * ks) + 49) // 50 if ks >= 1 else 0
            while fi < min(tgt, nf):
                emit_vm(k, fill[fi], ('H', layer, tt - 1)); fi += 1
            k(f'v_mfma_f32_32x32x16_bf16 v[{u}:{u+15}], a[{8*ks+4}:{8*ks+7}], v[{b}:{b+3}], {cu}')
            tgt = (nf * (2 * ks + 1) + 49) // 50 if ks >= 1 else 0
            while fi < min(tgt, nf):
                emit_vm(k, fill[fi], ('H', layer, tt - 1)); fi += 1
            if tt == 0 and ks < 28 - PD_:
                g1_wprefetch(k, PD_ + ks, PD_ + ks + 1)
            if tt < 3 and 8 <= ks < 15:
                if ks == 8: k(vm.wait(('T', layer, tt + 1, 6)))
                tok_write_one(tt + 1, ks - 8)
            if ks == 16:
                if tt < 3:
                    w = lg.wait(('w', tt + 1, 6))
                    if w: k(w)
                if tt >= 2: k(vm.wait(('H', layer, tt - 2)))
                k('s_barrier')
                if tt >= 2:
                    k(f's_add_u32 s62, s33, {tt-2}')
                    signal(k, line_sreg=62)
            if tt == 0 and ks == 22:
                wait(k, 4, line_sreg=21, nlines=2)
                tok_load(2); tok_load(3)
            if tt == 3 and ks == 25:
                wait(k, 14, line_sreg=56, barrier=False)
            if wq and wq[0][1] <= ks and (ks % 2 == 0 or len(wq) > (28 - ks) // 2):
                n, _ = wq.pop(0)
                for ins in wd_load(n): emit_vm(k, ins, ('D', layer, n))
        while fi < nf:
            emit_vm(k, fill[fi], ('H', layer, tt - 1)); fi += 1
        while wq:
            n, _ = wq.pop(0)
            for ins in wd_load(n): emit_vm(k, ins, ('D', layer, n))
        lmark(k, f'g1:pass{tt}')
    k('s_barrier')
    pf = [(hload_ins(0, ks), ('HL', layer, 0, ks)) for ks in range(14)]
    lines = [(x, ('H', layer, 3)) if x.startswith('buffer_') else x for x in epilogue(3)]
    sprinkle(k, lines, pf, None, skip_head=4)
    lmark(k, 'g1:epi3')

G2_SCR = 0
def ph_g2(k):
    layer = 'L'
    ACC = 16
    def hload(t, ks):
        for ins in hload_ins(t, ks): emit_vm(k, ins, ('HL', layer, t, ks))
    def mm(t, ks):
        r = hloc(t, ks)
        out = []
        for ct in range(2):
            acc = ACC + 32 * t + 16 * ct
            c = f'v[{acc}:{acc+15}]' if ks else '0'
            out.append(f'v_mfma_f32_32x32x16_bf16 v[{acc}:{acc+15}], {rr(WD_LOC[2*ks+ct])}, a[{r}:{r+3}], {c}')
        return out
    k(vm.wait(('H', layer, 3)))
    k('s_barrier')
    k('s_add_u32 s59, s33, 2')
    signal(k, line_sreg=59, n=2)
    lmark(k, 'g1 arrived')
    k(f's_mul_i32 s12, s{S_LAYER}, {OFF_X3 - OFF_X1:#x}')
    srd_soff(k, 16, P_WS, OFF_X1, 12, SZ_ACT)
    k(f'v_and_b32 v4, 31, v{V_LANE}')
    k(f'v_lshrrev_b32 v5, 5, v{V_LANE}')
    k(f's_and_b32 s13, s{S_WAVE}, 1')
    k(f's_lshr_b32 s12, s{S_WAVE}, 1')
    k(f's_lshl_b32 s14, s{S_CTP}, 12')
    k('s_lshl_b32 s15, s13, 11'); k('s_add_u32 s14, s14, s15')
    k('s_lshl_b32 s15, s12, 10'); k('s_add_u32 s14, s14, s15')
    k('v_lshlrev_b32 v7, 9, v5')
    k('v_lshl_add_u32 v7, v4, 4, v7')
    k('v_add_u32 v7, s14, v7')
    k('s_mul_i32 s34, s42, 28672'); k('s_mul_i32 s35, s43, 28672')
    k(f's_lshl_b32 s14, s{S_WAVE}, 11')
    k(f'v_add_u32 v8, s14, v{V_L16}')
    k(f's_lshl_b32 s14, s{S_WAVE}, 13')
    k(f'v_add_u32 v9, s14, v{V_L16}')
    for j in range(14):
        hload(0, 14 + j)
        k(vm.wait(('HL', layer, 0, j)))
        for x in mm(0, j): k(x)
    wait(k, 14, line_sreg=57)
    lmark(k, 'g2:B ready')
    emit_vm(k, 'buffer_load_dwordx4 v[80:83], v7, s[16:19], s34 offen sc1', ('R', layer, 0))
    emit_vm(k, 'buffer_load_dwordx4 v[84:87], v7, s[16:19], s35 offen sc1', ('R', layer, 1))
    for j in range(14):
        hload(1, j)
        k(vm.wait(('HL', layer, 0, 14 + j)))
        for x in mm(0, 14 + j): k(x)
    def xch_write(t):
        out = []
        for o in range(4):
            acc = ACC + 32 * t + 16 * (o & 1) + 8 * (o >> 1)
            for r in range(2):
                out.append(f'ds_write_b128 v8, v[{acc+4*r}:{acc+4*r+3}] offset:{G2_SCR + 32768*t + o*8192 + r*1024}')
        return out
    def xch_finish(t, R):
        out = []
        for sidx in range(4):
            for r in range(2):
                d = R + 8 * sidx + 4 * r
                out.append(f'ds_read_b128 v[{d}:{d+3}], v9 offset:{G2_SCR + 32768*t + sidx*2048 + r*1024}')
        out.append('s_waitcnt lgkmcnt(4)')
        for i in range(8): out.append(f'v_add_f32 v{R+i}, v{R+i}, v{R+8+i}')
        out.append('s_waitcnt lgkmcnt(0)')
        for i in range(8): out.append(f'v_add_f32 v{R+16+i}, v{R+16+i}, v{R+24+i}')
        for i in range(8): out.append(f'v_add_f32 v{R+i}, v{R+i}, v{R+16+i}')
        for j in range(4): out.append(f'v_permlane32_swap_b32 v{R+j}, v{R+4+j}')
        rs = 80 + 4 * t
        for i in range(4):
            out.append(f'v_lshlrev_b32 v{R+8}, 16, v{rs+i}')
            out.append(f'v_and_b32 v{R+9}, 0xffff0000, v{rs+i}')
            out.append(f'v_add_f32 v{R+2*i}, v{R+2*i}, v{R+8}')
            out.append(f'v_add_f32 v{R+2*i+1}, v{R+2*i+1}, v{R+9}')
        for i in range(4): out.append(f'v_cvt_pk_bf16_f32 v{R+12+i}, v{R+2*i}, v{R+2*i+1}')
        return out
    return (layer, hload, mm, xch_write, xch_finish)

def g2_out_setup(k, final):
    if not final:
        srd(k, 36, P_WS, OFF_X2, SZ_ACT)
        k('v_mov_b32 v10, v7'); k('s_mov_b32 s40, s34'); k('s_mov_b32 s41, s35')
    else:
        srd(k, 36, P_OUT, 0, SZ_ACT)
        k(f's_lshl_b32 s14, s{S_CTP}, 7')
        k(f's_and_b32 s13, s{S_WAVE}, 1'); k('s_lshl_b32 s13, s13, 6'); k('s_add_u32 s14, s14, s13')
        k(f's_lshr_b32 s13, s{S_WAVE}, 1'); k('s_lshl_b32 s13, s13, 5'); k('s_add_u32 s14, s14, s13')
        k('v_mul_u32_u24 v10, 896, v4')
        k('v_lshl_add_u32 v10, v5, 4, v10')
        k('v_add_u32 v10, s14, v10')
        k('s_mul_i32 s40, s42, 32*896'); k('s_mul_i32 s41, s43, 32*896')

def ph_g2_tail(k, fns):
    layer, hload, mm, xch_write, xch_finish = fns
    Lf = label('of'); Lj = label('oj')
    k(f's_cmp_lg_u32 s{S_LAYER}, 0')
    k(f's_cbranch_scc1 {Lf}')
    g2_out_setup(k, False)
    k(f's_branch {Lj}')
    k(f'{Lf}:')
    g2_out_setup(k, True)
    k(f'{Lj}:')
    wr = xch_write(0)
    fin = xch_finish(0, 16)
    nf = len(fin); fi = 0
    for j in range(14):
        hload(1, 14 + j)
        k(vm.wait(('HL', layer, 1, j)))
        m = mm(1, j)
        k(m[0])
        if 1 <= j <= 4: k(wr[2 * (j - 1)])
        if j >= 6:
            tgt = min(nf, (nf * (2 * (j - 6) + 1) + 15) // 16)
            while fi < tgt: k(fin[fi]); fi += 1
        k(m[1])
        if 1 <= j <= 4: k(wr[2 * (j - 1) + 1])
        if j >= 6:
            tgt = min(nf, (nf * (2 * (j - 6) + 2) + 15) // 16)
            while fi < tgt: k(fin[fi]); fi += 1
        if j == 5:
            k('s_waitcnt lgkmcnt(0)')
            k('s_barrier')
    while fi < nf: k(fin[fi]); fi += 1
    emit_vm(k, 'buffer_store_dwordx4 v[28:31], v10, s[36:39], s40 offen sc1', ('O', layer, 0))
    for j in range(14, 28):
        k(vm.wait(('HL', layer, 1, j)))
        for x in mm(1, j): k(x)
    lmark(k, 'g2:main')
    for x in xch_write(1): k(x)
    k(vm.wait(('O', layer, 0)))
    k('s_waitcnt lgkmcnt(0)')
    k('s_barrier')
    La = label('na')
    k(f's_cmp_lg_u32 s{S_LAYER}, 0')
    k(f's_cbranch_scc1 {La}')
    k(f's_add_u32 s59, s42, {L_X2}')
    signal(k, line_sreg=59)
    k(f'{La}:')
    for x in xch_finish(1, 48): k(x)
    emit_vm(k, 'buffer_store_dwordx4 v[60:63], v10, s[36:39], s41 offen sc1', ('O', layer, 1))

def build():
    MARKS.clear(); LOOPMARKS.clear(); vm.l.clear(); _lab[0] = 0
    k = Kern(KNAME, vgprs=256, agprs=256, sgprs=102)
    ph_init(k)
    ph_p0(k)
    Lc = label('noconv')
    Lw = label('s0skip')
    k('s_cmp_ge_u32 s2, 224')
    k(f's_cbranch_scc1 {Lw}')
    k('s_waitcnt vmcnt(0)')
    init_check(k)
    k('s_barrier')
    signal(k, line_sreg=62)
    ticket_issue(k)
    mark(k, 'S0 arrived')
    ph_p0_wdma(k)
    ph_conv_prep(k)
    mark(k, 'conv prep done')
    wait(k, 32, line_sreg=62)
    mark(k, 'S0 passed')
    ph_conv(k)
    k(f's_branch {Lc}')
    k(f'{Lw}:')
    ph_p0_wdma(k)
    ph_p0_wfinish(k)
    wait_init(k)
    k(f's_add_u32 s59, s{S_XCD}, {L_W}')
    arrive(k, line_sreg=59)
    ticket_issue(k)
    k(f'{Lc}:')
    mark(k, 'conv done')
    k(f's_add_u32 s59, s{S_XCD}, {L_S1}')
    k('s_waitcnt vmcnt(0)')
    ticket_resolve(k)
    arrive(k, line_sreg=59)
    role_compute(k)
    mark(k, 'S1 arrived')
    ph_ln1_pre(k)
    wait(k, 32, line=L_W, nlines=8)
    g1_wprefetch(k, 0, P0A)
    mark(k, 'ln1 pre done')
    wait(k, 32, line=L_S1, nlines=8)
    mark(k, 'S1 passed')
    w = ph_ln1(k)
    k('s_lshr_b32 s59, s2, 2')
    k(f's_add_u32 s59, s59, {L_XN0}')
    arrive(k, line_sreg=59, vmwait=w)
    mark(k, 'ln1 arrived')
    k(f's_mov_b32 s{S_LAYER}, 0')
    Lloop = label('layer'); Lskip = label('gskip'); Lend2 = label('fin')
    k(f'{Lloop}:')
    k(f's_cmp_ge_u32 s{S_I}, 28')
    k(f's_cbranch_scc1 {Lskip}')
    g1_wprefetch(k, PB, PC)
    k(f's_mul_i32 s59, s{S_LAYER}, {L_DELTA}')
    k(f's_lshl_b32 s12, s{S_RB}, 2')
    k('s_add_u32 s59, s59, s12')
    k(f's_add_u32 s59, s59, {L_XN0}')
    wait(k, 4, line_sreg=59, nlines=2)
    lmark(k, 'S(ln->g1) passed')
    ph_g1(k)
    fns = ph_g2(k)
    ph_g2_tail(k, fns)
    k(f's_cmp_lg_u32 s{S_LAYER}, 0')
    k(f's_cbranch_scc1 {Lend2}')
    g1_wprefetch(k, 0, P1A)
    k(f's_add_u32 s59, s43, {L_X2}')
    arrive(k, line_sreg=59, vmwait=vm.wait(('O', 'L', 1)))
    mark(k, 'S4 arrived')
    k(f'{Lskip}:')
    k(f's_cmp_lg_u32 s{S_LAYER}, 0')
    k(f's_cbranch_scc1 {Lend2}')
    ph_ln2_pre(k)
    k('s_lshr_b32 s59, s2, 2')
    k(f's_add_u32 s59, s59, {L_X2}')
    wait(k, 7, line_sreg=59)
    mark(k, 'S4 passed')
    w = ph_ln2(k)
    k('s_lshr_b32 s59, s2, 2')
    k(f's_add_u32 s59, s59, {L_XN1}')
    arrive(k, line_sreg=59, vmwait=w)
    mark(k, 'ln2 arrived')
    k(f's_mov_b32 s{S_LAYER}, 1')
    k(f's_branch {Lloop}')
    k(f'{Lend2}:')
    if PROF:
        k('s_waitcnt vmcnt(0)')
        mark(k, 'end')
        k('s_memrealtime s[96:97]')
        k('s_waitcnt lgkmcnt(0)')
        k(f'v_writelane_b32 v{VPROF}, s96, 63')
        srd(k, 56, P_WS, OFF_PROF, 0x100000)
        k('s_lshl_b32 s60, s2, 2')
        k(f's_add_u32 s60, s60, s{S_WAVE}')
        k('s_lshl_b32 s60, s60, 8')
        k(f'v_lshlrev_b32 v4, 2, v{V_LANE}')
        k(f'buffer_store_dword v{VPROF}, v4, s[56:59], s60 offen')
    k('L_end:')
    k('s_endpgm')
    hdr = open('interleave_layers__ssm_conv_h3__swiglu_ffn__prompt.s.ref').read().split('; Override launch')[0]
    out = [hdr.rstrip('\n')]
    out.append(f'; @launch grid=({NWG},1,1) block=(256,1,1) lds={LDS_BYTES}')
    out.append('.amdgcn_target "amdgcn-amd-amdhsa--gfx950"')
    out.append('.text')
    out.append(k.emit())
    out.append('.section .rodata,"a"')
    out.append('.p2align 6')
    out.append(k.desc())
    return '\n'.join(out) + '\n'

if __name__ == '__main__':
    if '--prof' in sys.argv: PROF = True
    txt = build()
    dst = sys.argv[1]
    open(dst, 'w').write(txt)
    if PROF:
        import json
        assert len(MARKS) <= 24
        names = MARKS + [''] * (24 - len(MARKS)) + [f'L0 {n}' for n in LOOPMARKS] + [''] * (16 - len(LOOPMARKS)) + [f'L1 {n}' for n in LOOPMARKS]
        json.dump(names, open(dst + '.marks', 'w'))
    print('wrote', dst, len(txt), 'bytes', len(MARKS), 'marks')
```

```python
import sys
from asmlib import *

S = 2048; D = 448; F = 1792
SZ_ACT = 2048 * 448 * 2
OFF_XR = 0x0;       SZ_XR = 448 * 4096
OFF_YT = 0x200000
OFF_YF = 0x400000
OFF_X1 = 0x600000
OFF_XN1 = 0x800000
OFF_X2 = 0xA00000
OFF_X3 = 0xC00000
OFF_XN2 = 0xE00000
OFF_WGU = 0x1000000; SZ_WGU = 56 * 28 * 2 * 1024
OFF_WD = 0x1400000;  SZ_WD = 14 * 112 * 1024
OFF_H1 = 0x1600000;  SZ_H = 64 * 112 * 1024
OFF_H2 = 0x1E00000
OFF_SYNC = 0x2600000; SZ_SYNC = 512 * 128
OFF_PROF = 0x2800000
KNAME = 'interleave_layers__ssm_conv_h3__swiglu_ffn__prompt_kernel'
NWG = 256
LDS_BYTES = 160 * 1024
PROF = False
YB16 = True
SPIN_MAX = 400000
L_S0, L_W, L_S1 = 0, 8, 16
L_TK, L_OV = 24, 7
L_XN0, L_H0, L_X2, L_XN1, L_H1 = 32, 96, 160, 224, 288
L_DELTA = L_XN1 - L_XN0
assert L_H1 - L_H0 == L_DELTA

P_Q, P_K, P_V, P_SH, P_SSK, P_SSD, P_BX, P_WG = 64, 66, 68, 70, 72, 74, 76, 78
P_WU, P_WD, P_OUT, P_DBG, P_WS = 80, 82, 84, 86, 88
SR_SYNC = 92
S_WAVE = 3
S_XCD, S_I = 90, 91
S_XD = 98
ROLE_LDS = 163832
S_CH, S_PAR, S_CHB = 50, 51, 52
S_RB, S_FS, S_RT, S_CTP, S_LNRB = 53, 54, 55, 49, 63
SR_WGU = 4
SR_WD = 8
S_WOFF = 47
S_DOFF = 46
S_LAYER = 58
S_R1_UNUSED = 0
VPROF = 255
V_LANE = 2
V_L16 = 3

import os
PF_A = int(os.environ.get('PF_A', 10)); PF_B = int(os.environ.get('PF_B', 18)); PF_A2 = int(os.environ.get('PF_A2', 10))
PF_A1 = PF_A
P0A = int(os.environ.get('P0A', 5)); P0B = int(os.environ.get('P0B', 8)); P1A = int(os.environ.get('P1A', 5)); P1B = int(os.environ.get('P1B', 8))
PB = int(os.environ.get('PB', 13)); PC = int(os.environ.get('PC', 19)); PD_ = int(os.environ.get('PD_', 23))
PF_XX = 0,0

class VM:
    def __init__(self): self.l = []
    def add(self, tag): self.l.append(tag)
    def wait(self, tag):
        idx = len(self.l) - 1 - self.l[::-1].index(tag)
        return f's_waitcnt vmcnt({min(len(self.l) - 1 - idx, 63)})'
vm = VM()

class LG:
    def __init__(self): self.l = []
    def add(self, tag): self.l.append(tag)
    def wait(self, tag):
        if tag not in self.l: return None
        idx = len(self.l) - 1 - self.l[::-1].index(tag)
        n = min(len(self.l) - 1 - idx, 15)
        self.l = self.l[len(self.l) - n:] if n else []
        return f's_waitcnt lgkmcnt({n})'

def srd(k, d, p, off, size):
    if off:
        k(f's_add_u32 s{d}, s{p}, {off:#x}')
        k(f's_addc_u32 s{d+1}, s{p+1}, 0')
    else:
        k(f's_mov_b32 s{d}, s{p}')
        k(f's_mov_b32 s{d+1}, s{p+1}')
    k(f's_mov_b32 s{d+2}, {size:#x}')
    k(f's_mov_b32 s{d+3}, 0x20000')

def srd_soff(k, d, p, off, soff, size):
    k(f's_add_u32 s{d}, s{p}, {off:#x}')
    k(f's_addc_u32 s{d+1}, s{p+1}, 0')
    k(f's_add_u32 s{d}, s{d}, s{soff}')
    k(f's_addc_u32 s{d+1}, s{d+1}, 0')
    k(f's_mov_b32 s{d+2}, {size:#x}')
    k(f's_mov_b32 s{d+3}, 0x20000')

def udiv(k, dst, src, d):
    m = (2**32 + d - 1) // d
    k(f's_mul_hi_u32 s{dst}, s{src}, {m:#x}')

MARKS = []
def mark(k, name):
    if not PROF: return
    i = len(MARKS); MARKS.append(name)
    k('s_memrealtime s[96:97]')
    k('s_waitcnt lgkmcnt(0)')
    k(f'v_writelane_b32 v{VPROF}, s96, {i}')

LOOPMARKS = []
def lmark(k, name):
    if not PROF: return
    i = len(LOOPMARKS); LOOPMARKS.append(name)
    assert i < 16
    k('s_memrealtime s[96:97]')
    k(f's_lshl_b32 s97, s{S_LAYER}, 4') if False else None
    k('s_waitcnt lgkmcnt(0)')
    k(f's_lshl_b32 s97, s{S_LAYER}, 4')
    k(f's_add_u32 m0, s97, {24 + i}')
    k('s_nop 0')
    k(f'v_writelane_b32 v{VPROF}, s96, m0')

_lab = [0]
def label(p):
    _lab[0] += 1
    return f'L_{p}_{_lab[0]}'

def signal(k, line_sreg=None, line=None, n=1):
    L = label('sig')
    k(f's_cmp_lg_u32 s{S_WAVE}, 0')
    k(f's_cbranch_scc1 {L}')
    k(f'v_lshlrev_b32 v250, 7, v{V_LANE}')
    if line_sreg is not None:
        k(f's_lshl_b32 s60, s{line_sreg}, 7')
        k('v_add_u32 v250, s60, v250')
    else:
        k(f'v_add_u32 v250, {line*128}, v250')
    k('v_mov_b32 v251, 1')
    k(f's_mov_b64 exec, {(1 << n) - 1}')
    k(f'buffer_atomic_add v251, v250, s[{SR_SYNC}:{SR_SYNC+3}], 0 offen sc1')
    k('s_mov_b64 exec, -1')
    k(f'{L}:')

def arrive(k, line_sreg=None, line=None, vmwait='s_waitcnt vmcnt(0)', n=1):
    k(vmwait)
    k('s_waitcnt lgkmcnt(0)')
    k('s_barrier')
    signal(k, line_sreg, line, n)

def wait(k, target, line_sreg=None, line=None, nlines=1, barrier=True):
    L = label('wt'); Lp = label('pl'); Ld = label('pd')
    k(f's_cmp_lg_u32 s{S_WAVE}, 0')
    k(f's_cbranch_scc1 {L}')
    k(f'v_lshlrev_b32 v250, 7, v{V_LANE}')
    if line_sreg is not None:
        k(f's_lshl_b32 s60, s{line_sreg}, 7')
        k('v_add_u32 v250, s60, v250')
    else:
        k(f'v_add_u32 v250, {line*128}, v250')
    k(f's_mov_b64 exec, {(1 << nlines) - 1}')
    k('s_mov_b32 s61, 0')
    k(f'{Lp}:')
    k(f'buffer_load_dword v251, v250, s[{SR_SYNC}:{SR_SYNC+3}], 0 offen sc1')
    k('s_add_u32 s61, s61, 1')
    k('s_waitcnt vmcnt(0)')
    k(f'v_cmp_le_u32 vcc, {target}, v251')
    k(f's_cmp_ge_u32 s61, {SPIN_MAX}')
    k(f's_cbranch_scc1 {Ld}')
    k('s_cmp_eq_u64 vcc, exec')
    k(f's_cbranch_scc0 {Lp}')
    k(f'{Ld}:')
    k('s_mov_b64 exec, -1')
    k(f'{L}:')
    if barrier: k('s_barrier')

def init_issue(k):
    L = label('ii')
    k(f's_cmp_lg_u32 s{S_WAVE}, 0')
    k(f's_cbranch_scc1 {L}')
    srd(k, 56, P_DBG, 0, 256)
    k('v_mov_b32 v248, 0')
    k('buffer_load_dword v249, v248, s[56:59], 0 offen sc1')
    k(f'{L}:')

def init_check(k):
    L = label('ic'); Lp = label('icp')
    k(f's_cmp_lg_u32 s{S_WAVE}, 0')
    k(f's_cbranch_scc1 {L}')
    k('v_readfirstlane_b32 s61, v249')
    k('s_cmp_lg_u32 s61, 0')
    k(f's_cbranch_scc1 {L}')
    wait_init(k)
    k(f'{L}:')

def poll_issue(k, line_sreg, nlines=1):
    L = label('pi')
    k(f's_cmp_lg_u32 s{S_WAVE}, 0')
    k(f's_cbranch_scc1 {L}')
    k(f'v_lshlrev_b32 v252, 7, v{V_LANE}')
    k(f's_lshl_b32 s60, s{line_sreg}, 7')
    k('v_add_u32 v252, s60, v252')
    k(f's_mov_b64 exec, {(1 << nlines) - 1}')
    k(f'buffer_load_dword v253, v252, s[{SR_SYNC}:{SR_SYNC+3}], 0 offen sc1')
    k('s_mov_b64 exec, -1')
    k(f'{L}:')
    return len(vm.l)

def poll_check(k, pos, target, line_sreg, nlines=1, barrier=True):
    L = label('pc')
    k(f's_cmp_lg_u32 s{S_WAVE}, 0')
    k(f's_cbranch_scc1 {L}')
    k(f's_waitcnt vmcnt({min(63, len(vm.l) - pos)})')
    k(f's_mov_b64 exec, {(1 << nlines) - 1}')
    k(f'v_cmp_le_u32 vcc, {target}, v253')
    k('s_cmp_eq_u64 vcc, exec')
    k('s_mov_b64 exec, -1')
    k(f's_cbranch_scc1 {L}')
    wait(k, target, line_sreg=line_sreg, nlines=nlines, barrier=False)
    k(f'{L}:')
    if barrier: k('s_barrier')

def wait_init(k):
    L = label('wi'); Lp = label('wip'); Ld = label('wid')
    k(f's_cmp_lg_u32 s{S_WAVE}, 0')
    k(f's_cbranch_scc1 {L}')
    srd(k, 56, P_DBG, 0, 256)
    k('v_mov_b32 v250, 0')
    k('s_mov_b64 exec, 1')
    k('s_mov_b32 s61, 0')
    k(f'{Lp}:')
    k('buffer_load_dword v251, v250, s[56:59], 0 offen sc1')
    k('s_add_u32 s61, s61, 1')
    k('s_waitcnt vmcnt(0)')
    k('v_cmp_ne_u32 vcc, 0, v251')
    k(f's_cmp_ge_u32 s61, {SPIN_MAX}')
    k(f's_cbranch_scc1 {Ld}')
    k('s_cmp_eq_u64 vcc, exec')
    k(f's_cbranch_scc0 {Lp}')
    k(f'{Ld}:')
    k('s_mov_b64 exec, -1')
    k(f'{L}:')

def ph_init(k):
    k(f's_cmp_ge_u32 s2, {NWG}')
    k('s_cbranch_scc1 L_end')
    k('s_load_dwordx16 s[64:79], s[0:1], 0')
    k('s_load_dwordx8 s[80:87], s[0:1], 64')
    k('s_load_dwordx2 s[88:89], s[0:1], 96')
    k('v_lshrrev_b32 v1, 6, v0')
    k(f'v_and_b32 v{V_LANE}, 63, v0')
    k(f'v_readfirstlane_b32 s{S_WAVE}, v1')
    k(f'v_lshlrev_b32 v{V_L16}, 4, v{V_LANE}')
    k(f's_and_b32 s{S_XCD}, s2, 7')
    k(f's_lshr_b32 s{S_LNRB}, s2, 4')
    if PROF: k(f'v_mov_b32 v{VPROF}, 0')
    k('s_waitcnt lgkmcnt(0)')
    srd(k, SR_SYNC, P_WS, OFF_SYNC, SZ_SYNC)
    srd(k, SR_WGU, P_WS, OFF_WGU, SZ_WGU)
    srd(k, SR_WD, P_WS, OFF_WD, SZ_WD)
    mark(k, 'start')
    if PROF:
        k('s_memrealtime s[96:97]')
        k('s_waitcnt lgkmcnt(0)')
        k(f'v_writelane_b32 v{VPROF}, s96, 62')
    Lt = label('tlb')
    k(f's_cmp_lg_u32 s{S_WAVE}, 1')
    k(f's_cbranch_scc1 {Lt}')
    srd(k, 16, P_WS, 0, 0x2800000)
    srd(k, 20, P_OUT, 0, SZ_ACT)
    k(f'v_lshlrev_b32 v4, 21, v{V_LANE}')
    k('v_add_u32 v4, 0x1fff80, v4')
    k('v_mov_b32 v5, 0')
    k('s_mov_b64 exec, 0xfffff')
    k('buffer_load_dword v246, v4, s[16:19], 0 offen sc1')
    k('s_mov_b64 exec, 1')
    k('buffer_load_dword v247, v5, s[20:23], 0 offen sc1')
    k('s_mov_b64 exec, -1')
    k(f'{Lt}:')
    L = label('ini')
    k('s_cmp_lg_u32 s2, 255')
    k(f's_cbranch_scc1 {L}')
    k(f's_cmp_lg_u32 s{S_WAVE}, 3')
    k(f's_cbranch_scc1 {L}')
    for i in range(4): k(f'v_mov_b32 v{8+i}, 0')
    for i in range(4):
        k(f'buffer_store_dwordx4 v[8:11], v{V_L16}, s[{SR_SYNC}:{SR_SYNC+3}], 0 offen offset:{1024*i} sc1')
    srd(k, 56, P_DBG, 0, 256)
    k('s_waitcnt vmcnt(0)')
    k('v_mov_b32 v4, 0')
    k('v_mov_b32 v5, 1')
    k('s_mov_b64 exec, 1')
    k('buffer_store_dword v5, v4, s[56:59], 0 offen sc1')
    k('s_mov_b64 exec, -1')
    k('s_movk_i32 s12, 4096')
    Lz = label('zero')
    k(f'{Lz}:')
    k(f'buffer_store_dwordx4 v[8:11], v{V_L16}, s[{SR_SYNC}:{SR_SYNC+3}], s12 offen sc1')
    k('s_add_u32 s12, s12, 1024')
    k(f's_cmp_lt_u32 s12, {352*128}')
    k(f's_cbranch_scc1 {Lz}')
    k(f'{L}:')

def ticket_issue(k):
    L = label('tk')
    k(f's_cmp_lg_u32 s{S_WAVE}, 3')
    k(f's_cbranch_scc1 {L}')
    k(f's_getreg_b32 s{S_XD}, hwreg(HW_REG_XCC_ID, 0, 4)')
    k(f's_and_b32 s{S_XD}, s{S_XD}, 7')
    k(f's_add_u32 s12, s{S_XD}, {L_TK}')
    k('s_lshl_b32 s12, s12, 7')
    k('v_mov_b32 v244, s12')
    k('v_mov_b32 v245, 1')
    k('s_mov_b64 exec, 1')
    k(f'buffer_atomic_add v245, v244, s[{SR_SYNC}:{SR_SYNC+3}], 0 offen sc0 sc1')
    k('s_mov_b64 exec, -1')
    k(f'{L}:')

def ticket_resolve(k):
    L = label('tr'); Lok = label('trok'); Lp = label('trp'); Lw = label('trw'); Ln = label('trn'); Lt = label('trt')
    k(f's_cmp_lg_u32 s{S_WAVE}, 3')
    k(f's_cbranch_scc1 {L}')
    k('v_readfirstlane_b32 s12, v245')
    k('s_cmp_lt_u32 s12, 32')
    k(f's_cbranch_scc1 {Lok}')
    k(f'v_lshlrev_b32 v244, 7, v{V_LANE}')
    k(f'v_add_u32 v244, {L_TK*128}, v244')
    k('s_mov_b32 s15, 0')
    k(f'{Lp}:')
    k('s_mov_b64 exec, 0xff')
    k(f'buffer_load_dword v243, v244, s[{SR_SYNC}:{SR_SYNC+3}], 0 offen sc1')
    k('s_waitcnt vmcnt(0)')
    k('s_mov_b64 exec, -1')
    k('s_mov_b32 s13, 0')
    for x in range(8):
        k(f'v_readlane_b32 s14, v243, {x}')
        k('s_add_u32 s13, s13, s14')
    k('s_add_u32 s15, s15, 1')
    k(f's_cmp_ge_u32 s15, {SPIN_MAX}')
    k(f's_cbranch_scc1 {Lt}')
    k(f's_cmp_lt_u32 s13, {NWG}')
    k(f's_cbranch_scc1 {Lp}')
    k(f'{Lt}:')
    k(f'v_mov_b32 v244, {L_OV*128}')
    k('v_mov_b32 v245, 1')
    k('s_mov_b64 exec, 1')
    k(f'buffer_atomic_add v245, v244, s[{SR_SYNC}:{SR_SYNC+3}], 0 offen sc0 sc1')
    k('s_waitcnt vmcnt(0)')
    k('s_mov_b64 exec, -1')
    k('v_readfirstlane_b32 s13, v245')
    k(f's_mov_b32 s{S_XD}, 0')
    k('s_mov_b32 s12, 31')
    for x in range(8):
        Lx = label('trx')
        k(f'v_readlane_b32 s14, v243, {x}')
        k('s_min_u32 s14, s14, 32')
        k('s_sub_u32 s15, 32, s14')
        k('s_cmp_lt_u32 s13, s15')
        k(f's_cbranch_scc0 {Lx}')
        k(f's_mov_b32 s{S_XD}, {x}')
        k('s_add_u32 s12, s14, s13')
        k(f's_branch {Lok}')
        k(f'{Lx}:')
        k('s_sub_u32 s13, s13, s15')
    k(f'{Lok}:')
    k(f's_lshl_b32 s13, s{S_XD}, 5')
    k('s_add_u32 s13, s13, s12')
    k('v_mov_b32 v244, s13')
    k(f'v_mov_b32 v243, {ROLE_LDS}')
    k('ds_write_b32 v243, v244')
    k(f'{L}:')

def role_compute(k):
    k(f'v_mov_b32 v243, {ROLE_LDS}')
    k('ds_read_b32 v244, v243')
    k('s_waitcnt lgkmcnt(0)')
    k('v_readfirstlane_b32 s12, v244')
    k(f's_lshr_b32 s{S_XD}, s12, 5')
    k(f's_and_b32 s{S_I}, s12, 31')
    udiv(k, 15, S_I, 7)
    k('s_mul_i32 s28, s15, 7')
    k(f's_sub_u32 s{S_CTP}, s{S_I}, s28')
    k(f's_lshr_b32 s29, s{S_XD}, 1')
    k('s_lshl_b32 s29, s29, 2')
    k(f's_add_u32 s{S_RB}, s29, s15')
    k(f's_and_b32 s30, s{S_XD}, 1')
    k('s_mul_i32 s30, s30, 7')
    k(f's_add_u32 s{S_FS}, s30, s{S_CTP}')
    k(f's_lshl_b32 s29, s{S_XD}, 2')
    k(f's_add_u32 s{S_RT}, s29, s15')
    k(f's_lshl_b32 s31, s{S_FS}, 2')
    k(f's_add_u32 s31, s31, s{S_WAVE}')
    k(f's_mul_i32 s{S_WOFF}, s31, 57344')
    k(f's_mul_i32 s{S_DOFF}, s{S_CTP}, 224*1024')
    k(f's_mul_i32 s31, s{S_WAVE}, 28*1024')
    k(f's_add_u32 s{S_DOFF}, s{S_DOFF}, s31')


CH_STRIDE = 37888
XRL_OFF = 33280
CONV_SCR = 2 * CH_STRIDE
YB_SCR = 92160
WST_OFF = 100352

def p0_weight_dma(k, rnd):
    fl = 34 + rnd; ds = 40 + rnd
    if rnd < 3:
        if rnd: k(f's_add_u32 s12, s48, {1024*rnd}')
        else: k('s_mov_b32 s12, s48')
        kind = 'gu'
    elif rnd == 3:
        k('s_mov_b32 s12, s48'); kind = 'wd'
    Lskip = None
    if rnd == 4:
        Lgu = label('w4g'); Lskip = label('w4s'); Ldone = label('w4d')
        k(f's_mov_b32 s{fl}, 2')
        k('s_cmp_ge_u32 s48, 608')
        k(f's_cbranch_scc1 {Lskip}')
        k('s_cmp_ge_u32 s48, 544')
        k(f's_cbranch_scc1 {Lgu}')
        k('s_add_u32 s12, s48, 1024')
        _w_dma(k, 'wd', rnd, fl, ds)
        k(f's_branch {Ldone}')
        k(f'{Lgu}:')
        k('s_add_u32 s12, s48, 3072-544')
        _w_dma(k, 'gu', rnd, fl, ds)
        k(f's_branch {Ldone}')
        k(f'{Lskip}:')
        k(f's_mul_i32 s13, s{S_WAVE}, 5120')
        k(f's_add_u32 s13, s13, {WST_OFF + 1024*rnd}')
        k('s_mov_b32 m0, s13')
        srd(k, 16, P_WD, 0, 0)
        k('buffer_load_dwordx4 v61, s[16:19], 0 offen lds')
        k(f'{Ldone}:')
    else:
        _w_dma(k, kind, rnd, fl, ds)

def _w_dma(k, kind, rnd, fl, ds):
    k(f's_mul_i32 s13, s{S_WAVE}, 5120')
    k(f's_add_u32 s13, s13, {WST_OFF + 1024*rnd}')
    k('s_mov_b32 m0, s13')
    if kind == 'gu':
        udiv(k, 14, 12, 56)
        k('s_mul_i32 s15, s14, 56')
        k('s_sub_u32 s15, s12, s15')
        k('s_lshr_b32 s28, s15, 1')
        k('s_mul_i32 s28, s28, 16*3584')
        k('s_lshl_b32 s29, s14, 6')
        k('s_add_u32 s28, s28, s29')
        k('s_and_b32 s15, s15, 1')
        k('s_cmp_eq_u32 s15, 0')
        k(f's_cselect_b32 s16, s{P_WG}, s{P_WU}')
        k(f's_cselect_b32 s17, s{P_WG+1}, s{P_WU+1}')
        k(f's_mov_b32 s18, {448*1792*2:#x}')
        k('s_mov_b32 s19, 0x20000')
        k('buffer_load_dwordx4 v60, s[16:19], s28 offen lds')
        k(f's_lshl_b32 s{ds}, s12, 10')
        k(f's_mov_b32 s{fl}, 0')
    else:
        udiv(k, 14, 12, 112)
        k('s_mul_i32 s15, s14, 112')
        k('s_sub_u32 s15, s12, s15')
        k('s_mul_i32 s28, s15, 16*896')
        k('s_lshl_b32 s29, s14, 6')
        k('s_add_u32 s28, s28, s29')
        srd(k, 16, P_WD, 0, 1792 * 448 * 2)
        k('buffer_load_dwordx4 v61, s[16:19], s28 offen lds')
        k(f's_lshl_b32 s{ds}, s12, 10')
        k(f's_mov_b32 s{fl}, 1')

def ph_p0(k):
    k('s_lshl_b32 s48, s2, 2')
    k(f's_add_u32 s48, s48, s{S_WAVE}')
    Lnokv = label('nokv')
    ln_addr(k)
    srd(k, 28, P_Q, 0, SZ_ACT)
    k('s_mul_i32 s15, s2, 8*896')
    k('v_mul_u32_u24 v9, 896, v33')
    k('v_lshl_add_u32 v9, v5, 4, v9')
    k('v_add_u32 v9, s15, v9')
    k('v_add_u32 v10, 128, v9')
    k('v_cndmask_b32 v10, v8, v10, s[38:39]')
    k('s_cmp_ge_u32 s2, 224')
    k(f's_cbranch_scc1 {Lnokv}')
    udiv(k, 12, 2, 7)
    k('s_mul_i32 s13, s12, 7')
    k('s_sub_u32 s13, s2, s13')
    k('s_mov_b32 s62, s13')
    k(f'v_and_b32 v40, 7, v{V_LANE}')
    k(f'v_lshrrev_b32 v1, 3, v{V_LANE}')
    k(f's_lshl_b32 s14, s{S_WAVE}, 5')
    k('s_lshl_b32 s15, s13, 7')
    k('s_add_u32 s14, s14, s15')
    k('v_lshl_add_u32 v41, v1, 2, s14')
    k('s_mul_i32 s15, s12, 64*896')
    k('v_mul_u32_u24 v42, 8*896, v40')
    k('v_add3_u32 v42, v42, v41, s15')
    k('v_add_u32 v43, 5*896, v42')
    k('v_subrev_u32 v44, 3*896, v42')
    k('v_lshlrev_b32 v45, 2, v41')
    srd(k, 16, P_K, 0, SZ_ACT); srd(k, 20, P_V, 0, SZ_ACT); srd(k, 24, P_SH, 0, 448 * 8)
    K0 = 16; V0 = 48
    for j in range(3): k(f'buffer_load_dword v{K0+j}, v44, s[16:19], 0 offen offset:{896*j}')
    for j in range(5): k(f'buffer_load_dword v{K0+3+j}, v42, s[16:19], 0 offen offset:{896*j}')
    for j in range(3): k(f'buffer_load_dword v{K0+8+j}, v43, s[16:19], 0 offen offset:{896*j}')
    for j in range(5): k(f'buffer_load_dword v{V0+j}, v42, s[20:23], 0 offen offset:{896*j}')
    for j in range(3): k(f'buffer_load_dword v{V0+5+j}, v43, s[20:23], 0 offen offset:{896*j}')
    k('buffer_load_dwordx4 v[36:39], v45, s[24:27], 0 offen')
    k('s_lshl_b32 s13, s13, 6')
    k('s_lshl_b32 s14, s12, 1')
    k('s_add_u32 s13, s13, s14')
    k(f's_lshr_b32 s14, s{S_WAVE}, 1')
    k(f's_and_b32 s{S_PAR}, s{S_WAVE}, 1')
    k(f's_add_u32 s{S_CH}, s13, s14')
    k(f's_mul_i32 s{S_CHB}, s14, {CH_STRIDE}')
    k(f's_lshl_b32 s16, s{S_CH}, 12')
    srd_soff(k, 20, P_SSK, 0, 16, 4096)
    k(f's_lshl_b32 s17, s{S_PAR}, 11')
    k(f'v_add_u32 v92, s17, v{V_L16}')
    k('v_subrev_u32 v93, 16, v92')
    for r in range(2):
        k(f'buffer_load_dwordx4 v[{96+8*r}:{99+8*r}], v93, s[20:23], 0 offen offset:{1024*r}')
        k(f'buffer_load_dwordx4 v[{100+8*r}:{103+8*r}], v92, s[20:23], 0 offen offset:{1024*r}')
    k('buffer_load_dwordx4 v[232:235], v9, s[28:31], 0 offen')
    k('buffer_load_dwordx4 v[236:239], v10, s[28:31], 0 offen')
    k('v_lshlrev_b32 v46, 11, v41')
    k('s_lshl_b32 s32, s12, 7')
    k('v_lshlrev_b32 v47, 4, v40')
    k('v_add_u32 v47, s32, v47')
    k('v_sub_u32 v47, 4080, v47')
    k('v_add_u32 v47, v46, v47')
    srd(k, 28, P_WS, OFF_XR, SZ_XR)
    k('s_movk_i32 s33, 4096')
    mark(k, 'p0 issued')
    k('s_waitcnt vmcnt(6)')
    SK = 56
    for c in range(2):
        k(f'v_lshlrev_b32 v{SK+4*c+0}, 16, v{36+2*c}')
        k(f'v_and_b32 v{SK+4*c+1}, 0xffff0000, v{36+2*c}')
        k(f'v_lshlrev_b32 v{SK+4*c+2}, 16, v{37+2*c}')
        k(f'v_and_b32 v{SK+4*c+3}, 0xffff0000, v{37+2*c}')
    KF = 64
    for c in range(2):
        for j in range(11):
            if c == 0: k(f'v_lshlrev_b32 v{KF+j}, 16, v{K0+j}')
            else: k(f'v_and_b32 v{KF+j}, 0xffff0000, v{K0+j}')
        for t in range(8):
            if c == 0: k(f'v_lshlrev_b32 v{112+t}, 16, v{V0+t}')
            else: k(f'v_and_b32 v{112+t}, 0xffff0000, v{V0+t}')
        for t in range(8): k(f'v_mul_f32 v{76+t}, v{SK+4*c+3}, v{KF+t}')
        for t in range(8): k(f'v_fmac_f32 v{76+t}, v{SK+4*c+2}, v{KF+t+1}')
        for t in range(8): k(f'v_fmac_f32 v{76+t}, v{SK+4*c+1}, v{KF+t+2}')
        for t in range(8): k(f'v_fmac_f32 v{76+t}, v{SK+4*c+0}, v{KF+t+3}')
        for t in range(8): k(f'v_mul_f32 v{76+t}, v{76+t}, v{112+t}')
        o = 84 + 4 * c
        for i in range(4):
            k(f'v_cvt_pk_bf16_f32 v{o+i}, v{76+7-2*i}, v{76+6-2*i}')
        if c == 0: k(f'buffer_store_dwordx4 v[{o}:{o+3}], v47, s[28:31], 0 offen sc1')
        else: k(f'buffer_store_dwordx4 v[{o}:{o+3}], v47, s[28:31], s33 offen sc1')
    mark(k, 'kv stored')
    init_issue(k)
    Lj = label('p0j')
    k(f's_branch {Lj}')
    k(f'{Lnokv}:')
    k('buffer_load_dwordx4 v[232:235], v9, s[28:31], 0 offen')
    k('buffer_load_dwordx4 v[236:239], v10, s[28:31], 0 offen')
    k(f'{Lj}:')

def ph_p0_wdma(k):
    k(f'v_lshrrev_b32 v62, 2, v{V_LANE}')
    k(f'v_and_b32 v63, 3, v{V_LANE}')
    k('v_lshlrev_b32 v63, 4, v63')
    k('v_mul_u32_u24 v60, 3584, v62')
    k('v_add_u32 v60, v60, v63')
    k('v_mul_u32_u24 v61, 896, v62')
    k('v_add_u32 v61, v61, v63')
    for rnd in range(5): p0_weight_dma(k, rnd)
    mark(k, 'p0 dma issued')

def ph_p0_wfinish(k):
    k('s_waitcnt vmcnt(0)')
    k(f'v_and_b32 v62, 15, v{V_LANE}')
    k(f'v_lshrrev_b32 v63, 4, v{V_LANE}')
    k('v_lshrrev_b32 v64, 2, v62')
    k('v_and_b32 v65, 3, v62')
    k('v_lshlrev_b32 v65, 3, v65')
    k('v_and_b32 v66, 1, v63')
    k('v_lshl_add_u32 v65, v66, 5, v65')
    k('v_lshl_add_u32 v65, v64, 6, v65')
    k('v_lshrrev_b32 v63, 1, v63')
    k(f's_mul_i32 s13, s{S_WAVE}, 5120')
    k(f's_add_u32 s13, s13, {WST_OFF}')
    k('v_add_u32 v65, s13, v65')
    k('v_lshl_add_u32 v66, v63, 9, v65')
    k('v_lshl_add_u32 v67, v63, 8, v65')
    for rnd in range(5):
        fl = 34 + rnd
        o = 112 + 4 * rnd
        Lwd = label('trw'); Le = label('tre')
        if rnd < 3:
            k(f'ds_read_b64_tr_b16 v[{o}:{o+1}], v66 offset:{1024*rnd}')
            k(f'ds_read_b64_tr_b16 v[{o+2}:{o+3}], v66 offset:{1024*rnd + 256}')
        elif rnd == 3:
            k(f'ds_read_b64_tr_b16 v[{o}:{o+1}], v67 offset:{1024*rnd}')
            k(f'ds_read_b64_tr_b16 v[{o+2}:{o+3}], v67 offset:{1024*rnd + 512}')
        else:
            k(f's_cmp_eq_u32 s{fl}, 1')
            k(f's_cbranch_scc1 {Lwd}')
            k(f'ds_read_b64_tr_b16 v[{o}:{o+1}], v66 offset:{1024*rnd}')
            k(f'ds_read_b64_tr_b16 v[{o+2}:{o+3}], v66 offset:{1024*rnd + 256}')
            k(f's_branch {Le}')
            k(f'{Lwd}:')
            k(f'ds_read_b64_tr_b16 v[{o}:{o+1}], v67 offset:{1024*rnd}')
            k(f'ds_read_b64_tr_b16 v[{o+2}:{o+3}], v67 offset:{1024*rnd + 512}')
            k(f'{Le}:')
    k('s_waitcnt lgkmcnt(0)')
    for rnd in range(4):
        o = 112 + 4 * rnd
        sr = SR_WGU if rnd < 3 else SR_WD
        k(f'buffer_store_dwordx4 v[{o}:{o+3}], v{V_L16}, s[{sr}:{sr+3}], s{40+rnd} offen sc1')
    Lwd = label('stw'); Le = label('ste')
    k('s_cmp_eq_u32 s38, 2')
    k(f's_cbranch_scc1 {Le}')
    k('s_cmp_eq_u32 s38, 1')
    k(f's_cbranch_scc1 {Lwd}')
    k(f'buffer_store_dwordx4 v[128:131], v{V_L16}, s[{SR_WGU}:{SR_WGU+3}], s44 offen sc1')
    k(f's_branch {Le}')
    k(f'{Lwd}:')
    k(f'buffer_store_dwordx4 v[128:131], v{V_L16}, s[{SR_WD}:{SR_WD+3}], s44 offen sc1')
    k(f'{Le}:')
    mark(k, 'w stored')

def ph_conv_prep(k):
    k(f'v_add_u32 v6, s{S_CHB}, v92')
    k('v_add_u32 v6, 16, v6')
    for i in range(4): k(f'v_mov_b32 v{8+i}, 0')
    La = label('cz'); Lb = label('cz')
    k(f's_cmp_eq_u32 s{S_PAR}, 0')
    k(f's_cbranch_scc0 {La}')
    k(f'v_mul_u32_u24 v7, 4160, v{V_LANE}')
    k(f'v_add_u32 v7, s{S_CHB}, v7')
    k(f'v_cmp_gt_u32 vcc, 8, v{V_LANE}')
    k('s_and_saveexec_b64 s[30:31], vcc')
    k('ds_write_b128 v7, v[8:11]')
    k('s_mov_b64 exec, s[30:31]')
    k(f's_branch {Lb}')
    k(f'{La}:')
    k(f'v_add_u32 v7, s{S_CHB}, v{V_L16}')
    k(f'v_add_u32 v7, {XRL_OFF + 4096}, v7')
    k(f'v_cmp_gt_u32 vcc, 30, v{V_LANE}')
    k('s_and_saveexec_b64 s[30:31], vcc')
    k('ds_write_b128 v7, v[8:11]')
    k('s_mov_b64 exec, s[30:31]')
    k(f'{Lb}:')
    for r in range(2):
        W = 96 + 8 * r
        for c in range(8):
            s = c + 1
            T = 16 + 4 * (c % 4) + 16 * r
            if s % 2 == 1:
                kk = (s - 1) // 2
                for i in range(4): k(f'v_alignbit_b32 v{T+i}, v{W+kk+i+1}, v{W+kk+i}, 16')
                src = T
            else:
                kk = s // 2
                if kk % 2 == 0: src = W + kk
                else:
                    for i in range(4): k(f'v_mov_b32 v{T+i}, v{W+kk+i}')
                    src = T
            k(f'ds_write_b128 v6, v[{src}:{src+3}] offset:{c*4160 + 1024*r}')

def g1_wload(k, ks):
    out = []
    if ks % 2 == 0: out.append(f's_add_u32 s45, s{S_WOFF}, {ks*2048}')
    o = (ks % 2) * 2048
    out.append(f'buffer_load_dwordx4 a[{8*ks}:{8*ks+3}], v{V_L16}, s[{SR_WGU}:{SR_WGU+3}], s45 offen offset:{o} sc1')
    out.append(f'buffer_load_dwordx4 a[{8*ks+4}:{8*ks+7}], v{V_L16}, s[{SR_WGU}:{SR_WGU+3}], s45 offen offset:{o+1024} sc1')
    return out

class Cap:
    def __init__(self): self.L = []
    def __call__(self, x): self.L.append(x)

def sprinkle(k, lines, fillers, tagf, skip_head=0, skip_tail=0):
    n = len(lines) - skip_head - skip_tail
    fi = 0; nf = len(fillers)
    masked = False
    for i, ln in enumerate(lines):
        if isinstance(ln, tuple): emit_vm(k, ln[0], ln[1])
        else:
            k(ln)
            if 'saveexec' in ln: masked = True
            if ln.startswith('s_mov_b64 exec'): masked = False
        j = i - skip_head + 1
        if j > 0 and n > 0 and not masked:
            tgt = min(nf, (nf * j + n - 1) // n)
            while fi < tgt:
                for ins in fillers[fi][0]: emit_vm(k, ins, fillers[fi][1])
                fi += 1
    while fi < nf:
        for ins in fillers[fi][0]: emit_vm(k, ins, fillers[fi][1])
        fi += 1

def g1_pf_groups(ks0, ks1):
    out = []
    for ks in range(ks0, ks1):
        base = ks - (ks % 2); o = (ks % 2) * 2048
        pre = [f's_add_u32 s45, s{S_WOFF}, {base*2048}'] if (ks % 2 == 0 or ks == ks0) else []
        out.append((pre + [f'buffer_load_dwordx4 a[{8*ks}:{8*ks+3}], v{V_L16}, s[{SR_WGU}:{SR_WGU+3}], s45 offen offset:{o} sc1'], ('W', ks)))
        out.append(([f'buffer_load_dwordx4 a[{8*ks+4}:{8*ks+7}], v{V_L16}, s[{SR_WGU}:{SR_WGU+3}], s45 offen offset:{o+1024} sc1'], ('W', ks)))
    return out

def emit_vm(k, ins, tag):
    k(ins)
    if ins.startswith('buffer_'): vm.add(tag)

def g1_wprefetch(k, ks0, ks1):
    for grp, tag in g1_pf_groups(ks0, ks1):
        for ins in grp: emit_vm(k, ins, tag)

def l2_warm(k, sr, nbytes_half, whole=False):
    per = nbytes_half // 16
    assert per % 1024 == 0
    n = per // 1024
    k(f's_sub_u32 s12, s{S_I}, 28')
    k('s_lshl_b32 s12, s12, 2')
    k(f's_add_u32 s12, s12, s{S_WAVE}')
    k(f's_mul_i32 s12, s12, {per}')
    if not whole:
        k(f's_and_b32 s13, s{S_XCD}, 1')
        k(f's_mul_i32 s13, s13, {nbytes_half}')
        k('s_add_u32 s12, s12, s13')
    Ll = label('warm')
    k(f's_mov_b32 s13, {n // 4}')
    k(f'{Ll}:')
    for j in range(4):
        k(f'buffer_load_dwordx4 v[{16+4*j}:{19+4*j}], v{V_L16}, s[{sr}:{sr+3}], s12 offen offset:{1024*j} sc1')
    k('s_add_u32 s12, s12, 4096')
    k('s_sub_u32 s13, s13, 1')
    k('s_cmp_lg_u32 s13, 0')
    k('s_waitcnt vmcnt(24)')
    k(f's_cbranch_scc1 {Ll}')
    for j in range(n % 4):
        k(f'buffer_load_dwordx4 v[{16+4*j}:{19+4*j}], v{V_L16}, s[{sr}:{sr+3}], s12 offen offset:{1024*j} sc1')

def ph_conv(k):
    srd(k, 16, P_WS, OFF_XR, SZ_XR)
    srd(k, 24, P_WS, OFF_YT, SZ_ACT)
    k(f's_lshl_b32 s20, s{S_CH}, 12')
    k(f's_lshl_b32 s21, s{S_PAR}, 11')
    k('s_add_u32 s20, s20, s21')
    k(f'buffer_load_dwordx4 v[16:19], v{V_L16}, s[16:19], s20 offen sc1')
    k(f'buffer_load_dwordx4 v[20:23], v{V_L16}, s[16:19], s20 offen offset:1024 sc1')
    k(f's_and_b32 s28, s{S_CH}, 0xfffffffe')
    k('s_lshl_b32 s28, s28, 1')
    k(f's_load_dword s29, s[{P_SSD}:{P_SSD+1}], s28')
    k(f's_add_u32 s21, s21, s{S_CHB}')
    k(f's_add_u32 s21, s21, {XRL_OFF}')
    k(f'v_add_u32 v4, s21, v{V_L16}')
    k(f'v_and_b32 v5, 15, v{V_LANE}')
    k(f'v_lshrrev_b32 v6, 4, v{V_LANE}')
    k('v_lshlrev_b32 v7, 4, v6')
    k('v_lshlrev_b32 v8, 5, v5')
    k('v_sub_u32 v7, v7, v8')
    k(f's_lshl_b32 s22, s{S_PAR}, 6')
    k(f's_add_u32 s22, s22, s{S_CHB}')
    k(f's_add_u32 s22, s22, {XRL_OFF + 544 - 64}')
    k('v_add_u32 v7, s22, v7')
    k('v_and_b32 v12, 7, v5')
    k('v_mul_u32_u24 v12, 4160, v12')
    k('v_lshrrev_b32 v13, 3, v5')
    k('v_add_u32 v13, v6, v13')
    k('v_lshlrev_b32 v13, 4, v13')
    k('v_add_u32 v12, v12, v13')
    k(f's_lshl_b32 s22, s{S_PAR}, 6')
    k(f's_add_u32 s22, s22, s{S_CHB}')
    k('v_add_u32 v12, s22, v12')
    k('s_waitcnt vmcnt(0)')
    k('ds_write_b128 v4, v[16:19]')
    k('ds_write_b128 v4, v[20:23] offset:1024')
    k('s_waitcnt lgkmcnt(0)')
    k('s_barrier')
    mark(k, 'conv:x in lds')
    ph_p0_wfinish(k)
    ACC = 16; FR = 48; AR = 176; NA = 8
    order = list(range(31, -1, -1))
    def frags(jj): return [(at, 4 * at - jj + 3) for at in range(jj // 4, 8)]
    pend = []
    def issue(tag, txt): k(txt); pend.append(tag)
    def wait_for(tags):
        idx = [pend.index(t) for t in tags if t in pend]
        if idx:
            n = min(len(pend) - 1 - max(idx), 15)
            k(f's_waitcnt lgkmcnt({n})')
            pend[:] = pend[len(pend) - n:] if n > 0 else []
    loadedF = set()
    def issueA(idx):
        jj = order[idx]; r = AR + 4 * (idx % NA)
        issue(('A', jj), f'ds_read_b128 v[{r}:{r+3}], v12 offset:{128*jj}')
    def issueF(idx):
        for at, n in frags(order[idx]):
            if n not in loadedF:
                loadedF.add(n)
                issue(('F', n), f'ds_read_b128 v[{FR+4*n}:{FR+4*n+3}], v7 offset:{128*(31-n)}')
    LA = 4
    for idx in range(LA): issueA(idx); issueF(idx)
    first = set()
    nm = 0
    for idx, jj in enumerate(order):
        if idx + LA < 32: issueA(idx + LA); issueF(idx + LA)
        wait_for([('A', jj)] + [('F', n) for _, n in frags(jj)])
        r = AR + 4 * (idx % NA)
        for at, n in frags(jj):
            c = f'v[{ACC+4*at}:{ACC+4*at+3}]' if at in first else '0'
            first.add(at)
            k(f'v_mfma_f32_16x16x32_bf16 v[{ACC+4*at}:{ACC+4*at+3}], v[{r}:{r+3}], v[{FR+4*n}:{FR+4*n+3}], {c}')
    mark(k, 'conv:mfma done')
    k(f's_lshl_b32 s41, s{S_WAVE}, 12')
    k(f's_add_u32 s41, s41, {CONV_SCR}')
    k(f'v_add_u32 v8, s41, v{V_L16}')
    k(f's_xor_b32 s42, s{S_WAVE}, 1')
    k('s_lshl_b32 s42, s42, 12')
    k(f's_add_u32 s42, s42, {CONV_SCR}')
    k(f'v_add_u32 v9, s42, v{V_L16}')
    k('v_lshlrev_b32 v10, 5, v5')
    k('v_lshl_add_u32 v10, v6, 3, v10')
    k(f's_lshl_b32 s43, s{S_PAR}, 11')
    k(f's_sub_u32 s43, s{S_CHB}, s43')
    k(f's_add_u32 s43, s43, {XRL_OFF + 4088 - 512*3}')
    k('v_sub_u32 v11, s43, v10')
    k('v_and_b32 v13, 1, v6')
    k('v_lshlrev_b32 v13, 4, v13')
    k('v_add_u32 v13, v13, v5')
    k(f's_lshl_b32 s44, s{S_PAR}, 6')
    k('v_add_u32 v13, s44, v13')
    k('v_lshlrev_b32 v13, 6, v13')
    k('v_lshrrev_b32 v14, 1, v6')
    k('v_lshl_add_u32 v13, v14, 4, v13')
    k(f's_lshr_b32 s44, s{S_WAVE}, 1')
    k('s_lshl_b32 s44, s44, 5')
    k(f's_add_u32 s44, s44, {YB_SCR}')
    k('v_add_u32 v13, s44, v13')
    k(f's_lshl_b32 s44, s{S_WAVE}, 11')
    k(f's_add_u32 s44, s44, {YB_SCR}')
    k(f'v_add_u32 v14, s44, v{V_L16}')
    k(f'v_lshrrev_b32 v10, 2, v{V_LANE}')
    k('v_mul_u32_u24 v10, 14336, v10')
    k(f'v_and_b32 v15, 3, v{V_LANE}')
    k('v_lshl_add_u32 v10, v15, 4, v10')
    k(f's_and_b32 s44, s{S_CH}, 0xfffffffe')
    k('s_lshl_b32 s44, s44, 5')
    k(f's_mul_i32 s45, s{S_WAVE}, 32*14336')
    k('s_add_u32 s44, s44, s45')
    k('v_add_u32 v10, s44, v10')
    La = label('cp'); Lb = label('cp')
    k(f's_cmp_eq_u32 s{S_PAR}, 0')
    k(f's_cbranch_scc0 {La}')
    for i in range(4): k(f'ds_write_b128 v8, v[{ACC+16+4*i}:{ACC+16+4*i+3}] offset:{1024*i}')
    k(f's_branch {Lb}')
    k(f'{La}:')
    k('s_nop 7')
    for i in range(4): k(f'ds_write_b128 v8, v[{ACC+4*i}:{ACC+4*i+3}] offset:{1024*i}')
    for i in range(16): k(f'v_mov_b32 v{ACC+i}, v{ACC+16+i}')
    k(f'{Lb}:')
    k('s_waitcnt lgkmcnt(0)')
    k('s_lshl_b32 s36, s29, 16')
    k('s_and_b32 s37, s29, 0xffff0000')
    k(f's_and_b32 s34, s{S_CH}, 1')
    k('s_cmp_eq_u32 s34, 0')
    k('s_cselect_b32 s36, s36, s37')
    k('s_waitcnt vmcnt(0)')
    k('s_barrier')
    k(f's_add_u32 s59, s{S_XCD}, {L_W}')
    signal(k, line_sreg=59)
    for i in range(4): k(f'ds_read_b128 v[{48+4*i}:{51+4*i}], v9 offset:{1024*i}')
    for i in range(4): k(f'ds_read_b64 v[{64+2*i}:{65+2*i}], v11 offset:{512*(3-i)}')
    k('s_waitcnt lgkmcnt(0)')
    for i in range(4):
        a = ACC + 4 * i
        for r in range(4): k(f'v_add_f32 v{a+r}, v{a+r}, v{48+4*i+r}')
        x0, x1 = 64 + 2 * i, 65 + 2 * i
        k(f'v_and_b32 v72, 0xffff0000, v{x1}')
        k(f'v_lshlrev_b32 v73, 16, v{x1}')
        k(f'v_and_b32 v74, 0xffff0000, v{x0}')
        k(f'v_lshlrev_b32 v75, 16, v{x0}')
        for r in range(4): k(f'v_fmac_f32 v{a+r}, s36, v{72+r}')
        k(f'v_cvt_pk_bf16_f32 v{76+2*i}, v{a}, v{a+1}')
        k(f'v_cvt_pk_bf16_f32 v{77+2*i}, v{a+2}, v{a+3}')
    for p in range(2):
        o = 76 + 4 * p
        k(f'v_permlane16_swap_b32 v{o}, v{o+2}')
        k(f'v_permlane16_swap_b32 v{o+1}, v{o+3}')
        k(f'ds_write_b128 v13, v[{o}:{o+3}] offset:{2048*p}')
    k('s_waitcnt lgkmcnt(0)')
    k('s_barrier')
    k('ds_read_b128 v[84:87], v14')
    k('ds_read_b128 v[88:91], v14 offset:1024')
    k('s_waitcnt lgkmcnt(1)')
    emit_vm(k, 'buffer_store_dwordx4 v[84:87], v10, s[24:27], 0 offen sc1', ('YT', 0))
    k('s_mov_b32 s45, 16*14336')
    k('s_waitcnt lgkmcnt(0)')
    emit_vm(k, 'buffer_store_dwordx4 v[88:91], v10, s[24:27], s45 offen sc1', ('YT', 1))

def wave_reduce8(k, regs, tmp):
    for r in regs: k(f'v_add_f32_dpp v{r}, v{r}, v{r} row_ror:8 row_mask:0xf bank_mask:0xf')
    for r, t in zip(regs, tmp): k(f'v_mov_b32 v{t}, v{r}')
    for r, t in zip(regs, tmp): k(f'v_permlane16_swap_b32 v{r}, v{t}')
    for r, t in zip(regs, tmp): k(f'v_add_f32 v{r}, v{r}, v{t}')
    for r, t in zip(regs, tmp): k(f'v_mov_b32 v{t}, v{r}')
    for r, t in zip(regs, tmp): k(f'v_permlane32_swap_b32 v{r}, v{t}')
    for r, t in zip(regs, tmp): k(f'v_add_f32 v{r}, v{r}, v{t}')

LN_BASE = 0
LN_PART = LN_BASE + 56 * 144
X_ = 16; Y_ = 24; XF = 36; YF = 52; T_ = 68

def ln_unpack(k, dst, src, n):
    for i in range(n):
        k(f'v_lshlrev_b32 v{dst+2*i}, 16, v{src+i}')
        k(f'v_and_b32 v{dst+2*i+1}, 0xffff0000, v{src+i}')

def ln_stats(k, buf):
    k(f'v_add_f32 v84, v{XF}, v{XF+1}')
    k(f'v_mul_f32 v85, v{XF}, v{XF}')
    k(f'v_add_f32 v86, v{XF+2}, v{XF+3}')
    k(f'v_mul_f32 v87, v{XF+1}, v{XF+1}')
    k(f'v_fmac_f32 v85, v{XF+2}, v{XF+2}')
    k(f'v_fmac_f32 v87, v{XF+3}, v{XF+3}')
    for i in range(4, 16, 2):
        k(f'v_add_f32 v84, v84, v{XF+i}')
        k(f'v_add_f32 v86, v86, v{XF+i+1}')
        k(f'v_fmac_f32 v85, v{XF+i}, v{XF+i}')
        k(f'v_fmac_f32 v87, v{XF+i+1}, v{XF+i+1}')
    k('v_add_f32 v84, v84, v86')
    k('v_add_f32 v85, v85, v87')
    wave_reduce8(k, [84, 85], [86, 87])
    k(f'v_cmp_gt_u32 vcc, 8, v{V_LANE}')
    k('s_and_saveexec_b64 s[40:41], vcc')
    k(f'ds_write_b64 v32, v[84:85] offset:{256*buf}')
    k('s_mov_b64 exec, s[40:41]')
    k('s_waitcnt lgkmcnt(0)')
    k('s_barrier')
    for w in range(4): k(f'ds_read_b64 v[{88+2*w}:{89+2*w}], v15 offset:{256*buf + 64*w}')

def ln_finish(k):
    k('v_add_f32 v88, v88, v90'); k('v_add_f32 v89, v89, v91')
    k('v_add_f32 v92, v92, v94'); k('v_add_f32 v93, v93, v95')
    k('v_add_f32 v88, v88, v92'); k('v_add_f32 v89, v89, v93')
    k('v_mul_f32 v84, 0x3b124925, v88')
    k('v_mul_f32 v85, 0x3b124925, v89')
    k('v_fma_f32 v85, -v84, v84, v85')
    k('v_max_f32 v85, 0, v85')
    k('v_add_f32 v85, 0x3727c5ac, v85')
    k('v_rsq_f32 v85, v85')
    k('v_mul_f32 v86, v84, v85')

def ln_addr(k):
    k(f'v_and_b32 v33, 7, v{V_LANE}')
    k(f'v_lshrrev_b32 v4, 3, v{V_LANE}')
    k(f's_mul_i32 s12, s{S_WAVE}, 14')
    k('v_add_u32 v5, s12, v4')
    k('s_lshr_b32 s13, s2, 2')
    k('s_mul_i32 s13, s13, 28672')
    k('s_and_b32 s14, s2, 3')
    k('s_lshl_b32 s14, s14, 7')
    k('s_add_u32 s13, s13, s14')
    k('v_lshlrev_b32 v6, 9, v5')
    k('v_lshl_add_u32 v6, v33, 4, v6')
    k('v_add_u32 v6, s13, v6')
    k('v_add_u32 v7, 4096, v6')
    k('v_mov_b32 v8, 0x80000000')
    k('v_cmp_gt_u32 vcc, 6, v4')
    k('v_cmp_gt_u32 s[38:39], 6, v4')
    k('v_cndmask_b32 v7, v8, v7, vcc')
    k('v_lshlrev_b32 v15, 3, v33')
    k(f'v_add_u32 v15, {LN_PART}, v15')
    k(f's_lshl_b32 s37, s{S_WAVE}, 6')
    k('v_add_u32 v32, s37, v15')

def ph_ln1_pre(k):
    ln_addr(k)
    k('v_lshlrev_b32 v11, 5, v0')
    k('v_add_u32 v12, 8192, v11')
    k('v_cmp_gt_u32 vcc, 192, v0')
    k('v_cndmask_b32 v12, v8, v12, vcc')
    k('v_lshrrev_b32 v13, 3, v0')
    k('v_add_u32 v13, v13, v0')
    k('v_lshlrev_b32 v13, 4, v13')
    k(f'v_add_u32 v13, {LN_BASE}, v13')
    k('v_mul_u32_u24 v14, 144, v5')
    k('v_lshl_add_u32 v14, v33, 1, v14')
    k(f'v_add_u32 v14, {LN_BASE}, v14')
    ln_unpack(k, XF, 232, 8)
    ln_stats(k, 0)
    k('s_waitcnt lgkmcnt(0)')
    ln_finish(k)
    for j in range(16): k(f'v_fma_f32 v{T_+j}, v{XF+j}, v85, -v86')

def ln_tail(k, sr_x, sr_xn, pf_range, tagp):
    for j in range(16): k(f'v_fmac_f32 v{XF+j}, v{T_+j}, v{YF+j}')
    for i in range(8): k(f'v_cvt_pk_bf16_f32 v{X_+i}, v{XF+2*i}, v{XF+2*i+1}')
    ln_unpack(k, XF, X_, 8)
    emit_vm(k, f'buffer_store_dwordx4 v[{X_}:{X_+3}], v6, s[{sr_x}:{sr_x+3}], 0 offen sc1', (tagp, 'x0'))
    emit_vm(k, f'buffer_store_dwordx4 v[{X_+4}:{X_+7}], v7, s[{sr_x}:{sr_x+3}], 0 offen sc1', (tagp, 'x1'))
    ln_stats(k, 1)
    k('s_waitcnt lgkmcnt(0)')
    ln_finish(k)
    for j in range(16): k(f'v_fma_f32 v{T_+j}, v{XF+j}, v85, -v86')
    for i in range(8): k(f'v_cvt_pk_bf16_f32 v{YF+i}, v{T_+2*i}, v{T_+2*i+1}')
    emit_vm(k, f'buffer_store_dwordx4 v[{YF}:{YF+3}], v6, s[{sr_xn}:{sr_xn+3}], 0 offen sc1', (tagp, 'n0'))
    emit_vm(k, f'buffer_store_dwordx4 v[{YF+4}:{YF+7}], v7, s[{sr_xn}:{sr_xn+3}], 0 offen sc1', (tagp, 'n1'))
    g1_wprefetch(k, *pf_range)
    return vm.wait((tagp, 'n1'))

def ph_ln1(k):
    srd(k, 32, P_WS, OFF_YT, SZ_ACT)
    k('s_lshr_b32 s36, s2, 1')
    k('s_mul_i32 s36, s36, 14336')
    k('s_and_b32 s37, s2, 1')
    k('s_lshl_b32 s37, s37, 4')
    k('s_add_u32 s36, s36, s37')
    emit_vm(k, 'buffer_load_dwordx4 v[24:27], v11, s[32:35], s36 offen sc1', ('ln1', 'yl0'))
    emit_vm(k, 'buffer_load_dwordx4 v[28:31], v12, s[32:35], s36 offen sc1', ('ln1', 'yl1'))
    srd(k, 16, P_WS, OFF_XN1, SZ_ACT); srd(k, 20, P_WS, OFF_X1, SZ_ACT); srd(k, 24, P_WS, OFF_YF, SZ_ACT)
    g1_wprefetch(k, P0A, P0B)
    k(vm.wait(('ln1', 'yl1')))
    k('ds_write_b128 v13, v[24:27]')
    k('v_cmp_gt_u32 vcc, 192, v0')
    k('s_and_saveexec_b64 s[40:41], vcc')
    k('ds_write_b128 v13, v[28:31] offset:4608')
    k('s_mov_b64 exec, s[40:41]')
    k('s_waitcnt lgkmcnt(0)')
    k('s_barrier')
    mark(k, 'ln1:y in lds')
    for j in range(8): k(f'ds_read_u16 v{YF+j}, v14 offset:{16*j}')
    for j in range(8): k(f'ds_read_u16 v{YF+8+j}, v14 offset:{8*144 + 16*j}')
    k('s_waitcnt lgkmcnt(0)')
    for i in range(8): k(f'v_lshl_or_b32 v{Y_+i}, v{YF+2*i+1}, 16, v{YF+2*i}')
    for j in range(16): k(f'v_lshlrev_b32 v{YF+j}, 16, v{YF+j}')
    for j in range(8, 16): k(f'v_cndmask_b32 v{YF+j}, 0, v{YF+j}, s[38:39]')
    emit_vm(k, f'buffer_store_dwordx4 v[{Y_}:{Y_+3}], v6, s[24:27], 0 offen sc1', ('ln1', 'y0'))
    emit_vm(k, f'buffer_store_dwordx4 v[{Y_+4}:{Y_+7}], v7, s[24:27], 0 offen sc1', ('ln1', 'y1'))
    return ln_tail(k, 20, 16, (P0B, PB), 'ln1')

def ph_ln2_pre(k):
    ln_addr(k)
    srd(k, 24, P_WS, OFF_YF, SZ_ACT)
    k(f'buffer_load_dwordx4 v[{Y_}:{Y_+3}], v6, s[24:27], 0 offen sc1')
    k(f'buffer_load_dwordx4 v[{Y_+4}:{Y_+7}], v7, s[24:27], 0 offen sc1')
    srd(k, 16, P_WS, OFF_XN2, SZ_ACT); srd(k, 20, P_WS, OFF_X3, SZ_ACT); srd(k, 28, P_WS, OFF_X2, SZ_ACT)

def ph_ln2(k):
    emit_vm(k, f'buffer_load_dwordx4 v[{X_}:{X_+3}], v6, s[28:31], 0 offen sc1', ('ln2', 'xl0'))
    emit_vm(k, f'buffer_load_dwordx4 v[{X_+4}:{X_+7}], v7, s[28:31], 0 offen sc1', ('ln2', 'xl1'))
    k(vm.wait(('ln2', 'xl1')))
    mark(k, 'ln2:loaded')
    ln_unpack(k, YF, Y_, 8)
    ln_unpack(k, XF, X_, 8)
    ln_stats(k, 0)
    k('s_waitcnt lgkmcnt(0)')
    ln_finish(k)
    for j in range(16): k(f'v_fma_f32 v{T_+j}, v{XF+j}, v85, -v86')
    return ln_tail(k, 20, 16, (0, 0), 'ln2')

WDL_BASE = 57344
def rr(loc, n=4): return f'{loc[0]}[{loc[1]}:{loc[1]+n-1}]'
def wdr_loc(ks, ct):
    if ct == 0: return ('a', 224 + 4 * ks) if ks < 8 else ('v', 168 + 4 * (ks - 8))
    assert ks >= 26
    return ('v', 104 + 4 * (ks - 26))
def wd_gload(ks, ct, dst):
    sr = SR_WD if ct == 0 else 28
    return [f's_add_u32 s20, s{S_DOFF}, {(ks//4)*4096}',
            f'buffer_load_dwordx4 {rr(dst)}, v{V_L16}, s[{sr}:{sr+3}], s20 offen offset:{(ks%4)*1024} sc1']

def hreg(t, ks): return 112 + 4 * ((28 * t + ks) % 14)
def hload_ins(t, ks):
    cur = 22 if t == 0 else 23
    pre = [f's_add_u32 s{cur}, s{cur}, 4096'] if (ks % 4 == 0 and ks > 0) else []
    r = hreg(t, ks)
    return pre + [f'buffer_load_dwordx4 v[{r}:{r+3}], v{V_L16}, s[24:27], s{cur} offen offset:{(ks%4)*1024} sc1']

def lmark(k, name, layer=None):
    mark(k, f'L{layer} {name}')

def ph_g1(k, layer):
    srd(k, 16, P_WS, OFF_XN1 if layer == 0 else OFF_XN2, SZ_ACT)
    k(f's_lshl_b32 s32, s{S_RB}, 2')
    k('s_mul_i32 s34, s32, 28672')
    k(f's_mul_i32 s36, s{S_WAVE}, 7168')
    k('s_add_u32 s34, s34, s36')
    ST = 112; ACC = 16; TF = 80; TM = 96; NR = 4; PD = 3
    lg = LG()
    def lds(ins, tag): k(ins); lg.add(tag)
    def tok_load_one(tt, j):
        r = ST + 28 * (tt % 2) + 4 * j
        if j % 4 == 0: k(f's_add_u32 s37, s34, {tt*28672 + (j//4)*4096}')
        emit_vm(k, f'buffer_load_dwordx4 v[{r}:{r+3}], v{V_L16}, s[16:19], s37 offen offset:{(j%4)*1024} sc1', ('T', layer, tt, j))
    for j in range(7): tok_load_one(0, j)
    srd(k, 24, P_WS, OFF_H1 if layer == 0 else OFF_H2, SZ_H)
    k(f'v_add_u32 v4, s36, v{V_L16}')
    k(f's_lshl_b32 s31, s{S_FS}, 2')
    k(f's_add_u32 s31, s31, s{S_WAVE}')
    k('s_lshl_b32 s40, s31, 11')
    dl = L_DELTA * layer
    k(f's_add_u32 s21, s32, {L_XN0 + dl + 2}')
    k(f's_add_u32 s33, s32, {L_H0 + dl}')
    k(f's_lshr_b32 s12, s{S_RT}, 1')
    k(f's_and_b32 s13, s{S_RT}, 1')
    k('s_lshl_b32 s14, s12, 2')
    k('s_add_u32 s42, s14, s13')
    k('s_sub_u32 s43, 3, s13')
    k('s_add_u32 s43, s43, s14')
    k(f's_add_u32 s56, s42, {L_H0 + dl}')
    k(f's_add_u32 s57, s43, {L_H0 + dl}')
    k(f's_mul_i32 s12, s{S_WAVE}, 28*1024')
    k('s_mul_i32 s22, s42, 112*1024'); k('s_add_u32 s22, s22, s12')
    k('s_mul_i32 s23, s43, 112*1024'); k('s_add_u32 s23, s23, s12')
    k(f's_mul_i32 s12, s{S_WAVE}, 26624')
    k(f's_add_u32 s12, s12, {WDL_BASE}')
    k(f'v_add_u32 v6, s12, v{V_L16}')
    if layer == 0: srd(k, 28, P_WS, OFF_WD + 112 * 1024, SZ_WD - 112 * 1024)
    def tok_write_one(tt, j):
        r = ST + 28 * (tt % 2) + 4 * j
        lds(f'ds_write_b128 v4, v[{r}:{r+3}] offset:{(tt%2)*28672 + j*1024}', ('w', tt, j))
    def tok_read(step):
        tt, ks = divmod(step, 28)
        r = TF + 4 * (step % NR)
        lds(f'ds_read_b128 v[{r}:{r+3}], v{V_L16} offset:{(tt%2)*28672 + ks*1024}', ('r', step))
    def epilogue(tt):
        g = ACC + 32 * (tt % 2); u = g + 16; T = TM
        out = [f's_add_u32 s41, s32, {tt}', 's_mul_i32 s41, s41, 112*1024', 's_add_u32 s41, s41, s40']
        for s in range(2):
            b = 8 * s
            for i in range(8): out.append(f'v_mul_f32 v{T+i}, 0xbfb8aa3b, v{g+b+i}')
            for i in range(8): out.append(f'v_exp_f32 v{T+i}, v{T+i}')
            for i in range(8): out.append(f'v_mul_f32 v{u+b+i}, v{g+b+i}, v{u+b+i}')
            for i in range(8): out.append(f'v_add_f32 v{T+i}, 1.0, v{T+i}')
            for i in range(8): out.append(f'v_rcp_f32 v{T+i}, v{T+i}')
            for i in range(8): out.append(f'v_mul_f32 v{u+b+i}, v{u+b+i}, v{T+i}')
            o = g + b
            for q in range(4): out.append(f'v_cvt_pk_bf16_f32 v{o+q}, v{u+b+2*q}, v{u+b+2*q+1}')
            out.append(f'buffer_store_dwordx4 v[{o}:{o+3}], v{V_L16}, s[24:27], s41 offen offset:{1024*s} sc1')
        return out
    k(vm.wait(('T', layer, 0, 6)))
    for j in range(7): tok_write_one(0, j)
    k(lg.wait(('w', 0, 6)))
    k('s_barrier')
    lmark(k, 'g1:tok0', layer)
    act = {st: [] for st in range(112)}
    pos = {}
    for j in range(7):
        act[j].append(lambda j=j: tok_load_one(1, j))
        act[21 + j].append(lambda j=j: tok_load_one(2, j))
        act[28 + j].append(lambda j=j: tok_load_one(3, j))
    def twrite(tt, j):
        if j == 0: k(vm.wait(('T', layer, tt, 6)))
        tok_write_one(tt, j)
    def lbar(tt):
        w = lg.wait(('w', tt, 6))
        if w: k(w)
        k('s_barrier')
    for j in range(7):
        act[11 + j].append(lambda j=j: twrite(1, j))
        act[36 + j].append(lambda j=j: twrite(2, j))
        act[64 + j].append(lambda j=j: twrite(3, j))
    act[19].append(lambda: lbar(1))
    act[35].append(lambda: k('s_barrier'))
    act[44].append(lambda: lbar(2))
    act[63].append(lambda: k('s_barrier'))
    def sig(tt, tl=None):
        if tl is not None:
            w = lg.wait(('w', tl, 6))
            if w: k(w)
        k(vm.wait(('H', layer, tt)))
        k('s_barrier')
        k(f's_add_u32 s62, s33, {tt}')
        signal(k, line_sreg=62)
    act[72].append(lambda: sig(0, 3))
    act[100].append(lambda: sig(1))
    act[12].append(lambda: pos.__setitem__('p0', poll_issue(k, 21, 2)))
    act[20].append(lambda: poll_check(k, pos['p0'], 4, 21, 2))
    act[103].append(lambda: pos.__setitem__('p3', poll_issue(k, 56)))
    act[111].append(lambda: poll_check(k, pos['p3'], 14, 56, barrier=False))
    if layer == 0:
        grp = g1_pf_groups(PD_, 28)
        for i, (ins, tag) in enumerate(grp):
            act[7 + i].append(lambda ins=ins, tag=tag: [emit_vm(k, x, tag) for x in ins])
        rsteps = [17, 18, 19, 20] + list(range(35, 44)) + list(range(51, 63)) + [70, 71, 79, 80, 81]
        rl = [(ks, 0) for ks in range(28)] + [(26, 1), (27, 1)]
        for st, (ks, ct) in zip(rsteps, rl):
            act[st].append(lambda ks=ks, ct=ct: [emit_vm(k, x, ('D', ks, ct)) for x in wd_gload(ks, ct, wdr_loc(ks, ct))])
        groups = [(range(0, 7), 112, 44, 56), (range(7, 14), 112, 63, 78), (range(14, 21), 140, 72, 86), (range(21, 26), 112, 85, 98)]
        for (rng, reg0, ld0, wr0) in groups:
            for j, ks in enumerate(rng):
                r = reg0 + 4 * j
                act[ld0 + j].append(lambda ks=ks, r=r: [emit_vm(k, x, ('DL', ks)) for x in wd_gload(ks, 1, ('v', r))])
                def wrl(ks=ks, r=r):
                    k(vm.wait(('DL', ks)))
                    lds(f'ds_write_b128 v6, v[{r}:{r+3}] offset:{ks*1024}', ('wl', ks))
                act[wr0 + j].append(wrl)
    for st in range(PD): tok_read(st)
    for tt in range(4):
        g = ACC + 32 * (tt % 2); u = g + 16
        fill = epilogue(tt - 1) if tt > 0 else []
        nf = len(fill); fi = 0
        for ks in range(28):
            step = 28 * tt + ks
            if layer == 0 and tt == 0 and ks >= PB:
                k(vm.wait(('W', ks)))
            w = lg.wait(('r', step))
            if w: k(w)
            b = TF + 4 * (step % NR)
            cg = f'v[{g}:{g+15}]' if ks else '0'
            cu = f'v[{u}:{u+15}]' if ks else '0'
            k(f'v_mfma_f32_32x32x16_bf16 v[{g}:{g+15}], a[{8*ks}:{8*ks+3}], v[{b}:{b+3}], {cg}')
            if step + PD < 112: tok_read(step + PD)
            tgt = (nf * (2 * ks) + 49) // 50 if ks >= 1 else 0
            while fi < min(tgt, nf):
                emit_vm(k, fill[fi], ('H', layer, tt - 1)); fi += 1
            k(f'v_mfma_f32_32x32x16_bf16 v[{u}:{u+15}], a[{8*ks+4}:{8*ks+7}], v[{b}:{b+3}], {cu}')
            tgt = (nf * (2 * ks + 1) + 49) // 50 if ks >= 1 else 0
            while fi < min(tgt, nf):
                emit_vm(k, fill[fi], ('H', layer, tt - 1)); fi += 1
            for f in act[step]: f()
        while fi < nf:
            emit_vm(k, fill[fi], ('H', layer, tt - 1)); fi += 1
        lmark(k, f'g1:pass{tt}', layer)
    k('s_waitcnt lgkmcnt(0)')
    k('s_barrier')
    pf = [(hload_ins(0, ks), ('HL', layer, 0, ks)) for ks in range(14)]
    lines = [(x, ('H', layer, 3)) if x.startswith('buffer_') else x for x in epilogue(3)]
    sprinkle(k, lines, pf, None, skip_head=4)
    lmark(k, 'g1:epi3', layer)

G2_SCR = 0
def ph_g2(k, layer):
    final = layer == 1
    ACC = 16; WR = 88; NWR = 4; WPD = 3
    lg = LG()
    def lds(ins, tag): k(ins); lg.add(tag)
    def hload(t, ks):
        for ins in hload_ins(t, ks): emit_vm(k, ins, ('HL', layer, t, ks))
    def wl_read(step):
        t, ks = divmod(step, 28)
        if step < 56 and ks < 26:
            r = WR + 4 * (step % NWR)
            lds(f'ds_read_b128 v[{r}:{r+3}], v6 offset:{ks*1024}', ('wr', step))
    def mm(t, ks):
        step = 28 * t + ks
        r = hreg(t, ks)
        a0 = ACC + 32 * t; a1 = a0 + 16
        c0 = f'v[{a0}:{a0+15}]' if ks else '0'
        c1 = f'v[{a1}:{a1+15}]' if ks else '0'
        w1 = rr(wdr_loc(ks, 1)) if ks >= 26 else f'v[{WR + 4*(step % NWR)}:{WR + 4*(step % NWR) + 3}]'
        m0 = f'v_mfma_f32_32x32x16_bf16 v[{a0}:{a0+15}], {rr(wdr_loc(ks, 0))}, v[{r}:{r+3}], {c0}'
        m1 = f'v_mfma_f32_32x32x16_bf16 v[{a1}:{a1+15}], {w1}, v[{r}:{r+3}], {c1}'
        return m0, m1
    def step_mm(t, ks, mid=None, post=None):
        step = 28 * t + ks
        k(vm.wait(('HL', layer, t, ks)))
        m0, m1 = mm(t, ks)
        k(m0)
        if mid: mid()
        w = lg.wait(('wr', step))
        if w: k(w)
        k(m1)
        wl_read(step + WPD)
        if post: post()
    k(vm.wait(('H', layer, 3)))
    k('s_barrier')
    k('s_add_u32 s59, s33, 2')
    signal(k, line_sreg=59, n=2)
    lmark(k, 'g1 arrived', layer)
    for st in range(WPD): wl_read(st)
    srd(k, 16, P_WS, OFF_X1 if layer == 0 else OFF_X3, SZ_ACT)
    k(f'v_and_b32 v4, 31, v{V_LANE}')
    k(f'v_lshrrev_b32 v5, 5, v{V_LANE}')
    k(f's_and_b32 s13, s{S_WAVE}, 1')
    k(f's_lshr_b32 s12, s{S_WAVE}, 1')
    k(f's_lshl_b32 s14, s{S_CTP}, 12')
    k('s_lshl_b32 s15, s13, 11'); k('s_add_u32 s14, s14, s15')
    k('s_lshl_b32 s15, s12, 10'); k('s_add_u32 s14, s14, s15')
    k('v_lshlrev_b32 v7, 9, v5')
    k('v_lshl_add_u32 v7, v4, 4, v7')
    k('v_add_u32 v7, s14, v7')
    k('s_mul_i32 s34, s42, 28672'); k('s_mul_i32 s35, s43, 28672')
    k(f's_lshl_b32 s14, s{S_WAVE}, 11')
    k(f'v_add_u32 v8, s14, v{V_L16}')
    k(f's_lshl_b32 s14, s{S_WAVE}, 13')
    k(f'v_add_u32 v9, s14, v{V_L16}')
    if not final:
        srd(k, 36, P_WS, OFF_X2, SZ_ACT)
        k('v_mov_b32 v10, v7'); k('s_mov_b32 s40, s34'); k('s_mov_b32 s41, s35')
    else:
        srd(k, 36, P_OUT, 0, SZ_ACT)
        k(f's_lshl_b32 s14, s{S_CTP}, 7')
        k('s_lshl_b32 s13, s13, 6'); k('s_add_u32 s14, s14, s13')
        k('s_lshl_b32 s12, s12, 5'); k('s_add_u32 s14, s14, s12')
        k('v_mul_u32_u24 v10, 896, v4')
        k('v_lshl_add_u32 v10, v5, 4, v10')
        k('v_add_u32 v10, s14, v10')
        k('s_mul_i32 s40, s42, 32*896'); k('s_mul_i32 s41, s43, 32*896')
    for j in range(14):
        step_mm(0, j, post=lambda j=j: hload(0, 14 + j))
    wait(k, 14, line_sreg=57)
    lmark(k, 'g2:B ready', layer)
    emit_vm(k, 'buffer_load_dwordx4 v[80:83], v7, s[16:19], s34 offen sc1', ('R', layer, 0))
    emit_vm(k, 'buffer_load_dwordx4 v[84:87], v7, s[16:19], s35 offen sc1', ('R', layer, 1))
    for j in range(14):
        step_mm(0, 14 + j, post=lambda j=j: hload(1, j))
    def xch_write(t):
        out = []
        for o in range(4):
            acc = ACC + 32 * t + 16 * (o & 1) + 8 * (o >> 1)
            for r in range(2):
                out.append(f'ds_write_b128 v8, v[{acc+4*r}:{acc+4*r+3}] offset:{G2_SCR + o*8192 + r*1024}')
        return out
    def xch_finish(t, R):
        out = []
        for sidx in range(4):
            for r in range(2):
                d = R + 8 * sidx + 4 * r
                out.append((f'ds_read_b128 v[{d}:{d+3}], v9 offset:{G2_SCR + sidx*2048 + r*1024}', ('xr', t, sidx, r)))
        out.append(('WAIT', ('xr', t, 1, 1)))
        for i in range(8): out.append(f'v_add_f32 v{R+i}, v{R+i}, v{R+8+i}')
        out.append(('WAIT', ('xr', t, 3, 1)))
        for i in range(8): out.append(f'v_add_f32 v{R+16+i}, v{R+16+i}, v{R+24+i}')
        for i in range(8): out.append(f'v_add_f32 v{R+i}, v{R+i}, v{R+16+i}')
        for j in range(4): out.append(f'v_permlane32_swap_b32 v{R+j}, v{R+4+j}')
        rs = 80 + 4 * t
        for i in range(4):
            out.append(f'v_lshlrev_b32 v{R+8}, 16, v{rs+i}')
            out.append(f'v_and_b32 v{R+9}, 0xffff0000, v{rs+i}')
            out.append(f'v_add_f32 v{R+2*i}, v{R+2*i}, v{R+8}')
            out.append(f'v_add_f32 v{R+2*i+1}, v{R+2*i+1}, v{R+9}')
        for i in range(4): out.append(f'v_cvt_pk_bf16_f32 v{R+12+i}, v{R+2*i}, v{R+2*i+1}')
        return out
    def emit_x(x):
        if isinstance(x, tuple):
            if x[0] == 'WAIT':
                w = lg.wait(x[1])
                if w: k(w)
            else: lds(x[0], x[1])
        else: k(x)
    wr = xch_write(0)
    fin = xch_finish(0, 16)
    nf = len(fin); st = {'fi': 0}
    def emit_fin(tgt):
        while st['fi'] < min(tgt, nf):
            emit_x(fin[st['fi']]); st['fi'] += 1
    for j in range(14):
        def mid(j=j):
            if 1 <= j <= 4: lds(wr[2 * (j - 1)], ('xw', 0, 2 * (j - 1)))
            if j >= 6: emit_fin((nf * (2 * (j - 6) + 1) + 15) // 16)
        def post(j=j):
            if 1 <= j <= 4: lds(wr[2 * (j - 1) + 1], ('xw', 0, 2 * (j - 1) + 1))
            if j >= 6: emit_fin((nf * (2 * (j - 6) + 2) + 15) // 16)
            if j == 5:
                w = lg.wait(('xw', 0, 7))
                if w: k(w)
                k('s_barrier')
            hload(1, 14 + j)
        step_mm(1, j, mid=mid, post=post)
    emit_fin(nf)
    emit_vm(k, 'buffer_store_dwordx4 v[28:31], v10, s[36:39], s40 offen sc1', ('O', layer, 0))
    for j in range(14, 28):
        step_mm(1, j, post=(lambda: k('s_barrier')) if j == 20 else None)
    lmark(k, 'g2:main', layer)
    for i, x in enumerate(xch_write(1)): lds(x, ('xw', 1, i))
    if not final: k(vm.wait(('O', layer, 0)))
    k('s_waitcnt lgkmcnt(0)'); lg.l = []
    k('s_barrier')
    if not final:
        k(f's_add_u32 s59, s42, {L_X2}')
        signal(k, line_sreg=59)
    for x in xch_finish(1, 48): emit_x(x)
    emit_vm(k, 'buffer_store_dwordx4 v[60:63], v10, s[36:39], s41 offen sc1', ('O', layer, 1))

def build():
    MARKS.clear(); LOOPMARKS.clear(); vm.l.clear(); _lab[0] = 0
    k = Kern(KNAME, vgprs=256, agprs=256, sgprs=102)
    ph_init(k)
    ph_p0(k)
    Lc = label('noconv')
    Lw = label('s0skip')
    k('s_cmp_ge_u32 s2, 224')
    k(f's_cbranch_scc1 {Lw}')
    k('s_waitcnt vmcnt(0)')
    init_check(k)
    k('s_barrier')
    signal(k, line_sreg=62)
    ticket_issue(k)
    mark(k, 'S0 arrived')
    ph_p0_wdma(k)
    ph_conv_prep(k)
    mark(k, 'conv prep done')
    wait(k, 32, line_sreg=62)
    mark(k, 'S0 passed')
    ph_conv(k)
    k(f's_branch {Lc}')
    k(f'{Lw}:')
    ph_p0_wdma(k)
    ph_p0_wfinish(k)
    wait_init(k)
    k(f's_add_u32 s59, s{S_XCD}, {L_W}')
    arrive(k, line_sreg=59)
    ticket_issue(k)
    k(f'{Lc}:')
    mark(k, 'conv done')
    k(f's_add_u32 s59, s{S_XCD}, {L_S1}')
    k('s_waitcnt vmcnt(0)')
    ticket_resolve(k)
    arrive(k, line_sreg=59)
    role_compute(k)
    mark(k, 'S1 arrived')
    ph_ln1_pre(k)
    wait(k, 32, line=L_W, nlines=8)
    g1_wprefetch(k, 0, P0A)
    mark(k, 'ln1 pre done')
    wait(k, 32, line=L_S1, nlines=8)
    mark(k, 'S1 passed')
    w = ph_ln1(k)
    k('s_lshr_b32 s59, s2, 2')
    k(f's_add_u32 s59, s59, {L_XN0}')
    arrive(k, line_sreg=59, vmwait=w)
    mark(k, 'ln1 arrived')
    Lend2 = label('fin')
    for layer in range(2):
        Lskip = label('gskip')
        k(f's_cmp_ge_u32 s{S_I}, 28')
        k(f's_cbranch_scc1 {Lskip}')
        if layer == 0: g1_wprefetch(k, PB, PD_)
        k(f's_lshl_b32 s59, s{S_RB}, 2')
        k(f's_add_u32 s59, s59, {L_XN0 + L_DELTA * layer}')
        wait(k, 4, line_sreg=59, nlines=2)
        lmark(k, 'S(ln->g1) passed', layer)
        ph_g1(k, layer)
        ph_g2(k, layer)
        if layer == 0:
            k(f's_add_u32 s59, s43, {L_X2}')
            arrive(k, line_sreg=59, vmwait=vm.wait(('O', layer, 1)))
            mark(k, 'S4 arrived')
        k(f'{Lskip}:')
        if layer == 0:
            ph_ln2_pre(k)
            k('s_lshr_b32 s59, s2, 2')
            k(f's_add_u32 s59, s59, {L_X2}')
            wait(k, 7, line_sreg=59)
            mark(k, 'S4 passed')
            w = ph_ln2(k)
            k('s_lshr_b32 s59, s2, 2')
            k(f's_add_u32 s59, s59, {L_XN1}')
            arrive(k, line_sreg=59, vmwait=w)
            mark(k, 'ln2 arrived')
    if PROF:
        k('s_waitcnt vmcnt(0)')
        mark(k, 'end')
        k('s_memrealtime s[96:97]')
        k('s_waitcnt lgkmcnt(0)')
        k(f'v_writelane_b32 v{VPROF}, s96, 63')
        srd(k, 56, P_WS, OFF_PROF, 0x100000)
        k('s_lshl_b32 s60, s2, 2')
        k(f's_add_u32 s60, s60, s{S_WAVE}')
        k('s_lshl_b32 s60, s60, 8')
        k(f'v_lshlrev_b32 v4, 2, v{V_LANE}')
        k(f'buffer_store_dword v{VPROF}, v4, s[56:59], s60 offen')
    k('L_end:')
    k('s_endpgm')
    hdr = open('interleave_layers__ssm_conv_h3__swiglu_ffn__prompt.s.ref').read().split('; Override launch')[0]
    out = [hdr.rstrip('\n')]
    out.append(f'; @launch grid=({NWG},1,1) block=(256,1,1) lds={LDS_BYTES}')
    out.append('.amdgcn_target "amdgcn-amd-amdhsa--gfx950"')
    out.append('.text')
    out.append(k.emit())
    out.append('.section .rodata,"a"')
    out.append('.p2align 6')
    out.append(k.desc())
    return '\n'.join(out) + '\n'

if __name__ == '__main__':
    if '--prof' in sys.argv: PROF = True
    txt = build()
    dst = sys.argv[1]
    open(dst, 'w').write(txt)
    if PROF:
        import json
        assert len(MARKS) <= 62
        json.dump(MARKS, open(dst + '.marks', 'w'))
    print('wrote', dst, len(txt), 'bytes', len(MARKS), 'marks')
```

```python
import sys
from asmlib import *

S = 2048; D = 448; F = 1792
SZ_ACT = 2048 * 448 * 2
OFF_XR = 0x0;       SZ_XR = 448 * 4096
OFF_YT = 0x200000
OFF_YF = 0x400000
OFF_X1 = 0x600000
OFF_XN1 = 0x800000
OFF_X2 = 0xA00000
OFF_X3 = 0xC00000
OFF_XN2 = 0xE00000
OFF_WGU = 0x1000000; SZ_WGU = 56 * 28 * 2 * 1024
OFF_WD = 0x1400000;  SZ_WD = 14 * 112 * 1024
OFF_H1 = 0x1600000;  SZ_H = 64 * 112 * 1024
OFF_H2 = 0x1E00000
OFF_SYNC = 0x2600000; SZ_SYNC = 512 * 128
OFF_PROF = 0x2800000
KNAME = 'interleave_layers__ssm_conv_h3__swiglu_ffn__prompt_kernel'
NWG = 256
LDS_BYTES = 160 * 1024
PROF = False
YB16 = True
SPIN_MAX = 400000
L_S0 = 0
L_W, L_S1 = 352, 416
N_LINES = 480
L_TK, L_OV = 24, 7
L_XN0, L_H0, L_X2, L_XN1, L_H1 = 32, 96, 160, 224, 288
L_DELTA = L_XN1 - L_XN0
assert L_H1 - L_H0 == L_DELTA

P_Q, P_K, P_V, P_SH, P_SSK, P_SSD, P_BX, P_WG = 64, 66, 68, 70, 72, 74, 76, 78
P_WU, P_WD, P_OUT, P_DBG, P_WS = 80, 82, 84, 86, 88
SR_SYNC = 92
S_WAVE = 3
S_XCD, S_I = 90, 91
S_XD = 98
ROLE_LDS = 163832
S_CH, S_PAR, S_CHB = 50, 51, 52
S_RB, S_FS, S_RT, S_CTP, S_LNRB = 53, 54, 55, 49, 63
SR_WGU = 4
SR_WD = 8
S_WOFF = 47
S_DOFF = 46
S_LAYER = 58
S_R1_UNUSED = 0
VPROF = 255
V_LANE = 2
V_L16 = 3

import os
PF_A = int(os.environ.get('PF_A', 10)); PF_B = int(os.environ.get('PF_B', 18)); PF_A2 = int(os.environ.get('PF_A2', 10))
PF_A1 = PF_A
P0A = int(os.environ.get('P0A', 8)); P0B = int(os.environ.get('P0B', 11)); P1A = int(os.environ.get('P1A', 5)); P1B = int(os.environ.get('P1B', 8))
PB = int(os.environ.get('PB', 16)); PC = int(os.environ.get('PC', 19)); PD_ = int(os.environ.get('PD_', 24))
PF_XX = 0,0

class VM:
    def __init__(self): self.l = []
    def add(self, tag): self.l.append(tag)
    def wait(self, tag):
        idx = len(self.l) - 1 - self.l[::-1].index(tag)
        return f's_waitcnt vmcnt({min(len(self.l) - 1 - idx, 63)})'
vm = VM()

class LG:
    def __init__(self): self.l = []
    def add(self, tag): self.l.append(tag)
    def wait(self, tag):
        if tag not in self.l: return None
        idx = len(self.l) - 1 - self.l[::-1].index(tag)
        n = min(len(self.l) - 1 - idx, 15)
        self.l = self.l[len(self.l) - n:] if n else []
        return f's_waitcnt lgkmcnt({n})'

def srd(k, d, p, off, size):
    if off:
        k(f's_add_u32 s{d}, s{p}, {off:#x}')
        k(f's_addc_u32 s{d+1}, s{p+1}, 0')
    else:
        k(f's_mov_b32 s{d}, s{p}')
        k(f's_mov_b32 s{d+1}, s{p+1}')
    k(f's_mov_b32 s{d+2}, {size:#x}')
    k(f's_mov_b32 s{d+3}, 0x20000')

def srd_soff(k, d, p, off, soff, size):
    k(f's_add_u32 s{d}, s{p}, {off:#x}')
    k(f's_addc_u32 s{d+1}, s{p+1}, 0')
    k(f's_add_u32 s{d}, s{d}, s{soff}')
    k(f's_addc_u32 s{d+1}, s{d+1}, 0')
    k(f's_mov_b32 s{d+2}, {size:#x}')
    k(f's_mov_b32 s{d+3}, 0x20000')

def udiv(k, dst, src, d):
    m = (2**32 + d - 1) // d
    k(f's_mul_hi_u32 s{dst}, s{src}, {m:#x}')

MARKS = []
def mark(k, name):
    if not PROF: return
    i = len(MARKS); MARKS.append(name)
    k('s_memrealtime s[96:97]')
    k('s_waitcnt lgkmcnt(0)')
    k(f'v_writelane_b32 v{VPROF}, s96, {i}')

LOOPMARKS = []
def lmark(k, name):
    if not PROF: return
    i = len(LOOPMARKS); LOOPMARKS.append(name)
    assert i < 16
    k('s_memrealtime s[96:97]')
    k(f's_lshl_b32 s97, s{S_LAYER}, 4') if False else None
    k('s_waitcnt lgkmcnt(0)')
    k(f's_lshl_b32 s97, s{S_LAYER}, 4')
    k(f's_add_u32 m0, s97, {24 + i}')
    k('s_nop 0')
    k(f'v_writelane_b32 v{VPROF}, s96, m0')

_lab = [0]
def label(p):
    _lab[0] += 1
    return f'L_{p}_{_lab[0]}'

def signal(k, line_sreg=None, line=None, n=1):
    L = label('sig')
    k(f's_cmp_lg_u32 s{S_WAVE}, 0')
    k(f's_cbranch_scc1 {L}')
    k(f'v_lshlrev_b32 v250, 7, v{V_LANE}')
    if line_sreg is not None:
        k(f's_lshl_b32 s60, s{line_sreg}, 7')
        k('v_add_u32 v250, s60, v250')
    else:
        k(f'v_add_u32 v250, {line*128}, v250')
    k('v_mov_b32 v251, 1')
    k(f's_mov_b64 exec, {(1 << n) - 1}')
    k(f'buffer_atomic_add v251, v250, s[{SR_SYNC}:{SR_SYNC+3}], 0 offen sc1')
    k('s_mov_b64 exec, -1')
    k(f'{L}:')

def arrive(k, line_sreg=None, line=None, vmwait='s_waitcnt vmcnt(0)', n=1):
    k(vmwait)
    k('s_waitcnt lgkmcnt(0)')
    k('s_barrier')
    signal(k, line_sreg, line, n)

def wait(k, target, line_sreg=None, line=None, nlines=1, barrier=True):
    L = label('wt'); Lp = label('pl'); Ld = label('pd')
    k(f's_cmp_lg_u32 s{S_WAVE}, 0')
    k(f's_cbranch_scc1 {L}')
    k(f'v_lshlrev_b32 v250, 7, v{V_LANE}')
    if line_sreg is not None:
        k(f's_lshl_b32 s60, s{line_sreg}, 7')
        k('v_add_u32 v250, s60, v250')
    else:
        k(f'v_add_u32 v250, {line*128}, v250')
    k(f's_mov_b64 exec, {(1 << nlines) - 1}')
    k('s_mov_b32 s61, 0')
    k(f'{Lp}:')
    SL = int(os.environ.get('SLEEP', 6))
    k(f'buffer_load_dword v251, v250, s[{SR_SYNC}:{SR_SYNC+3}], 0 offen sc1')
    k('s_add_u32 s61, s61, 1')
    k('s_waitcnt vmcnt(0)')
    k(f'v_cmp_le_u32 vcc, {target}, v251')
    k('s_cmp_eq_u64 vcc, exec')
    k(f's_cbranch_scc1 {Ld}')
    if SL: k(f's_sleep {SL}')
    k(f's_cmp_lt_u32 s61, {SPIN_MAX}')
    k(f's_cbranch_scc1 {Lp}')
    k(f'{Ld}:')
    k('s_mov_b64 exec, -1')
    k(f'{L}:')
    if barrier: k('s_barrier')

def init_issue(k):
    L = label('ii')
    k(f's_cmp_lg_u32 s{S_WAVE}, 0')
    k(f's_cbranch_scc1 {L}')
    srd(k, 56, P_DBG, 0, 256)
    k('v_mov_b32 v248, 0')
    k('buffer_load_dword v249, v248, s[56:59], 0 offen sc1')
    k(f'{L}:')

def init_check(k):
    L = label('ic'); Lp = label('icp')
    k(f's_cmp_lg_u32 s{S_WAVE}, 0')
    k(f's_cbranch_scc1 {L}')
    k('v_readfirstlane_b32 s61, v249')
    k('s_cmp_lg_u32 s61, 0')
    k(f's_cbranch_scc1 {L}')
    wait_init(k)
    k(f'{L}:')

def gsignal(k, base):
    L = label('gs')
    k(f's_cmp_lg_u32 s{S_WAVE}, 0')
    k(f's_cbranch_scc1 {L}')
    k(f'v_lshlrev_b32 v250, 10, v{V_LANE}')
    k(f's_add_u32 s60, s{S_XCD}, {base}')
    k('s_lshl_b32 s60, s60, 7')
    k('v_add_u32 v250, s60, v250')
    k('v_mov_b32 v251, 1')
    k('s_mov_b64 exec, 0xff')
    k(f'buffer_atomic_add v251, v250, s[{SR_SYNC}:{SR_SYNC+3}], 0 offen sc1')
    k('s_mov_b64 exec, -1')
    k(f'{L}:')

def gwait(k, base):
    k(f's_lshl_b32 s59, s{S_XCD}, 3')
    k(f's_add_u32 s59, s59, {base}')
    wait(k, 32, line_sreg=59, nlines=8)

def poll_issue(k, line_sreg, nlines=1):
    L = label('pi')
    k(f's_cmp_lg_u32 s{S_WAVE}, 0')
    k(f's_cbranch_scc1 {L}')
    k(f'v_lshlrev_b32 v252, 7, v{V_LANE}')
    k(f's_lshl_b32 s60, s{line_sreg}, 7')
    k('v_add_u32 v252, s60, v252')
    k(f's_mov_b64 exec, {(1 << nlines) - 1}')
    k(f'buffer_load_dword v253, v252, s[{SR_SYNC}:{SR_SYNC+3}], 0 offen sc1')
    k('s_mov_b64 exec, -1')
    k(f'{L}:')
    return len(vm.l)

def poll_check(k, pos, target, line_sreg, nlines=1, barrier=True):
    L = label('pc')
    k(f's_cmp_lg_u32 s{S_WAVE}, 0')
    k(f's_cbranch_scc1 {L}')
    k(f's_waitcnt vmcnt({min(63, len(vm.l) - pos)})')
    k(f's_mov_b64 exec, {(1 << nlines) - 1}')
    k(f'v_cmp_le_u32 vcc, {target}, v253')
    k('s_cmp_eq_u64 vcc, exec')
    k('s_mov_b64 exec, -1')
    k(f's_cbranch_scc1 {L}')
    wait(k, target, line_sreg=line_sreg, nlines=nlines, barrier=False)
    k(f'{L}:')
    if barrier: k('s_barrier')

def wait_init(k):
    L = label('wi'); Lp = label('wip'); Ld = label('wid')
    k(f's_cmp_lg_u32 s{S_WAVE}, 0')
    k(f's_cbranch_scc1 {L}')
    srd(k, 56, P_DBG, 0, 256)
    k('v_mov_b32 v250, 0')
    k('s_mov_b64 exec, 1')
    k('s_mov_b32 s61, 0')
    k(f'{Lp}:')
    k('buffer_load_dword v251, v250, s[56:59], 0 offen sc1')
    k('s_add_u32 s61, s61, 1')
    k('s_waitcnt vmcnt(0)')
    k('v_cmp_ne_u32 vcc, 0, v251')
    k(f's_cmp_ge_u32 s61, {SPIN_MAX}')
    k(f's_cbranch_scc1 {Ld}')
    k('s_cmp_eq_u64 vcc, exec')
    k(f's_cbranch_scc0 {Lp}')
    k(f'{Ld}:')
    k('s_mov_b64 exec, -1')
    k(f'{L}:')

def ph_init(k):
    k(f's_cmp_ge_u32 s2, {NWG}')
    k('s_cbranch_scc1 L_end')
    k('s_load_dwordx16 s[64:79], s[0:1], 0')
    k('s_load_dwordx8 s[80:87], s[0:1], 64')
    k('s_load_dwordx2 s[88:89], s[0:1], 96')
    k('v_lshrrev_b32 v1, 6, v0')
    k(f'v_and_b32 v{V_LANE}, 63, v0')
    k(f'v_readfirstlane_b32 s{S_WAVE}, v1')
    k(f'v_lshlrev_b32 v{V_L16}, 4, v{V_LANE}')
    k(f's_and_b32 s{S_XCD}, s2, 7')
    k(f's_lshr_b32 s{S_LNRB}, s2, 4')
    if PROF: k(f'v_mov_b32 v{VPROF}, 0')
    k('s_waitcnt lgkmcnt(0)')
    srd(k, SR_SYNC, P_WS, OFF_SYNC, SZ_SYNC)
    srd(k, SR_WGU, P_WS, OFF_WGU, SZ_WGU)
    srd(k, SR_WD, P_WS, OFF_WD, SZ_WD)
    mark(k, 'start')
    if PROF:
        k('s_memrealtime s[96:97]')
        k('s_waitcnt lgkmcnt(0)')
        k(f'v_writelane_b32 v{VPROF}, s96, 62')
    Lt = label('tlb')
    k(f's_cmp_lg_u32 s{S_WAVE}, 1')
    k(f's_cbranch_scc1 {Lt}')
    srd(k, 16, P_WS, 0, 0x2800000)
    srd(k, 20, P_OUT, 0, SZ_ACT)
    k(f'v_lshlrev_b32 v4, 21, v{V_LANE}')
    k('v_add_u32 v4, 0x1fff80, v4')
    k('v_mov_b32 v5, 0')
    k('s_mov_b64 exec, 0xfffff')
    k('buffer_load_dword v246, v4, s[16:19], 0 offen sc1')
    k('s_mov_b64 exec, 1')
    k('buffer_load_dword v247, v5, s[20:23], 0 offen sc1')
    k('s_mov_b64 exec, -1')
    k(f'{Lt}:')
    L = label('ini')
    k('s_cmp_lg_u32 s2, 255')
    k(f's_cbranch_scc1 {L}')
    for i in range(4): k(f'v_mov_b32 v{8+i}, 0')
    k(f's_mul_i32 s12, s{S_WAVE}, {N_LINES * 128 // 4}')
    for i in range(N_LINES * 128 // 4 // 1024):
        k(f'buffer_store_dwordx4 v[8:11], v{V_L16}, s[{SR_SYNC}:{SR_SYNC+3}], s12 offen sc1')
        k('s_add_u32 s12, s12, 1024')
    srd(k, 56, P_DBG, 0, 256)
    k('s_waitcnt vmcnt(0)')
    k('s_barrier')
    k(f's_cmp_lg_u32 s{S_WAVE}, 3')
    k(f's_cbranch_scc1 {L}')
    k('v_mov_b32 v4, 0')
    k('v_mov_b32 v5, 1')
    k('s_mov_b64 exec, 1')
    k('buffer_store_dword v5, v4, s[56:59], 0 offen sc1')
    k('s_mov_b64 exec, -1')
    k(f'{L}:')

def ticket_issue(k):
    L = label('tk')
    k(f's_cmp_lg_u32 s{S_WAVE}, 3')
    k(f's_cbranch_scc1 {L}')
    k(f's_getreg_b32 s{S_XD}, hwreg(HW_REG_XCC_ID, 0, 4)')
    k(f's_and_b32 s{S_XD}, s{S_XD}, 7')
    k(f's_add_u32 s12, s{S_XD}, {L_TK}')
    k('s_lshl_b32 s12, s12, 7')
    k('v_mov_b32 v244, s12')
    k('v_mov_b32 v245, 1')
    k('s_mov_b64 exec, 1')
    k(f'buffer_atomic_add v245, v244, s[{SR_SYNC}:{SR_SYNC+3}], 0 offen sc0 sc1')
    k('s_mov_b64 exec, -1')
    k(f'{L}:')

def ticket_resolve(k):
    L = label('tr'); Lok = label('trok'); Lp = label('trp'); Lw = label('trw'); Ln = label('trn'); Lt = label('trt')
    k(f's_cmp_lg_u32 s{S_WAVE}, 3')
    k(f's_cbranch_scc1 {L}')
    k('v_readfirstlane_b32 s12, v245')
    k('s_cmp_lt_u32 s12, 32')
    k(f's_cbranch_scc1 {Lok}')
    k(f'v_lshlrev_b32 v244, 7, v{V_LANE}')
    k(f'v_add_u32 v244, {L_TK*128}, v244')
    k('s_mov_b32 s15, 0')
    k(f'{Lp}:')
    k('s_mov_b64 exec, 0xff')
    k(f'buffer_load_dword v243, v244, s[{SR_SYNC}:{SR_SYNC+3}], 0 offen sc1')
    k('s_waitcnt vmcnt(0)')
    k('s_mov_b64 exec, -1')
    k('s_mov_b32 s13, 0')
    for x in range(8):
        k(f'v_readlane_b32 s14, v243, {x}')
        k('s_add_u32 s13, s13, s14')
    k('s_add_u32 s15, s15, 1')
    k(f's_cmp_ge_u32 s15, {SPIN_MAX}')
    k(f's_cbranch_scc1 {Lt}')
    k(f's_cmp_lt_u32 s13, {NWG}')
    k(f's_cbranch_scc1 {Lp}')
    k(f'{Lt}:')
    k(f'v_mov_b32 v244, {L_OV*128}')
    k('v_mov_b32 v245, 1')
    k('s_mov_b64 exec, 1')
    k(f'buffer_atomic_add v245, v244, s[{SR_SYNC}:{SR_SYNC+3}], 0 offen sc0 sc1')
    k('s_waitcnt vmcnt(0)')
    k('s_mov_b64 exec, -1')
    k('v_readfirstlane_b32 s13, v245')
    k(f's_mov_b32 s{S_XD}, 0')
    k('s_mov_b32 s12, 31')
    for x in range(8):
        Lx = label('trx')
        k(f'v_readlane_b32 s14, v243, {x}')
        k('s_min_u32 s14, s14, 32')
        k('s_sub_u32 s15, 32, s14')
        k('s_cmp_lt_u32 s13, s15')
        k(f's_cbranch_scc0 {Lx}')
        k(f's_mov_b32 s{S_XD}, {x}')
        k('s_add_u32 s12, s14, s13')
        k(f's_branch {Lok}')
        k(f'{Lx}:')
        k('s_sub_u32 s13, s13, s15')
    k(f'{Lok}:')
    k(f's_lshl_b32 s13, s{S_XD}, 5')
    k('s_add_u32 s13, s13, s12')
    k('v_mov_b32 v244, s13')
    k(f'v_mov_b32 v243, {ROLE_LDS}')
    k('ds_write_b32 v243, v244')
    k(f'{L}:')

def role_compute(k):
    k(f'v_mov_b32 v243, {ROLE_LDS}')
    k('ds_read_b32 v244, v243')
    k('s_waitcnt lgkmcnt(0)')
    k('v_readfirstlane_b32 s12, v244')
    k(f's_lshr_b32 s{S_XD}, s12, 5')
    k(f's_and_b32 s{S_I}, s12, 31')
    udiv(k, 15, S_I, 7)
    k('s_mul_i32 s28, s15, 7')
    k(f's_sub_u32 s{S_CTP}, s{S_I}, s28')
    k(f's_lshr_b32 s29, s{S_XD}, 1')
    k('s_lshl_b32 s29, s29, 2')
    k(f's_add_u32 s{S_RB}, s29, s15')
    k(f's_and_b32 s30, s{S_XD}, 1')
    k('s_mul_i32 s30, s30, 7')
    k(f's_add_u32 s{S_FS}, s30, s{S_CTP}')
    k(f's_lshl_b32 s29, s{S_XD}, 2')
    k(f's_add_u32 s{S_RT}, s29, s15')
    k(f's_lshl_b32 s31, s{S_FS}, 2')
    k(f's_add_u32 s31, s31, s{S_WAVE}')
    k(f's_mul_i32 s{S_WOFF}, s31, 57344')
    k(f's_mul_i32 s{S_DOFF}, s{S_CTP}, 224*1024')
    k(f's_mul_i32 s31, s{S_WAVE}, 28*1024')
    k(f's_add_u32 s{S_DOFF}, s{S_DOFF}, s31')


CH_STRIDE = 37888
XRL_OFF = 33280
CONV_SCR = 2 * CH_STRIDE
YB_SCR = 92160
WST_OFF = 100352

def p0_weight_dma(k, rnd):
    fl = 34 + rnd; ds = 40 + rnd
    if rnd < 3:
        if rnd: k(f's_add_u32 s12, s48, {1024*rnd}')
        else: k('s_mov_b32 s12, s48')
        kind = 'gu'
    elif rnd == 3:
        k('s_mov_b32 s12, s48'); kind = 'wd'
    Lskip = None
    if rnd == 4:
        Lgu = label('w4g'); Lskip = label('w4s'); Ldone = label('w4d')
        k(f's_mov_b32 s{fl}, 2')
        k('s_cmp_ge_u32 s48, 608')
        k(f's_cbranch_scc1 {Lskip}')
        k('s_cmp_ge_u32 s48, 544')
        k(f's_cbranch_scc1 {Lgu}')
        k('s_add_u32 s12, s48, 1024')
        _w_dma(k, 'wd', rnd, fl, ds)
        k(f's_branch {Ldone}')
        k(f'{Lgu}:')
        k('s_add_u32 s12, s48, 3072-544')
        _w_dma(k, 'gu', rnd, fl, ds)
        k(f's_branch {Ldone}')
        k(f'{Lskip}:')
        k(f's_mul_i32 s13, s{S_WAVE}, 5120')
        k(f's_add_u32 s13, s13, {WST_OFF + 1024*rnd}')
        k('s_mov_b32 m0, s13')
        srd(k, 16, P_WD, 0, 0)
        k('buffer_load_dwordx4 v61, s[16:19], 0 offen lds')
        k(f's_mov_b32 s{ds}, 0x7ff00000')
        k(f'{Ldone}:')
    else:
        _w_dma(k, kind, rnd, fl, ds)

def _w_dma(k, kind, rnd, fl, ds):
    k(f's_mul_i32 s13, s{S_WAVE}, 5120')
    k(f's_add_u32 s13, s13, {WST_OFF + 1024*rnd}')
    k('s_mov_b32 m0, s13')
    if kind == 'gu':
        udiv(k, 14, 12, 56)
        k('s_mul_i32 s15, s14, 56')
        k('s_sub_u32 s15, s12, s15')
        k('s_lshr_b32 s28, s15, 1')
        k('s_mul_i32 s28, s28, 16*3584')
        k('s_lshl_b32 s29, s14, 6')
        k('s_add_u32 s28, s28, s29')
        k('s_and_b32 s15, s15, 1')
        k('s_cmp_eq_u32 s15, 0')
        k(f's_cselect_b32 s16, s{P_WG}, s{P_WU}')
        k(f's_cselect_b32 s17, s{P_WG+1}, s{P_WU+1}')
        k(f's_mov_b32 s18, {448*1792*2:#x}')
        k('s_mov_b32 s19, 0x20000')
        k('buffer_load_dwordx4 v60, s[16:19], s28 offen lds')
        k(f's_lshl_b32 s{ds}, s12, 10')
        k(f's_mov_b32 s{fl}, 0')
    else:
        udiv(k, 14, 12, 112)
        k('s_mul_i32 s15, s14, 112')
        k('s_sub_u32 s15, s12, s15')
        k('s_mul_i32 s28, s15, 16*896')
        k('s_lshl_b32 s29, s14, 6')
        k('s_add_u32 s28, s28, s29')
        srd(k, 16, P_WD, 0, 1792 * 448 * 2)
        k('buffer_load_dwordx4 v61, s[16:19], s28 offen lds')
        k(f's_lshl_b32 s{ds}, s12, 10')
        k(f's_mov_b32 s{fl}, 1')

def ph_p0(k):
    k('s_lshl_b32 s48, s2, 2')
    k(f's_add_u32 s48, s48, s{S_WAVE}')
    Lnokv = label('nokv')
    ln_addr(k)
    srd(k, 28, P_Q, 0, SZ_ACT)
    k('s_mul_i32 s15, s2, 8*896')
    k('v_mul_u32_u24 v9, 896, v33')
    k('v_lshl_add_u32 v9, v5, 4, v9')
    k('v_add_u32 v9, s15, v9')
    k('v_add_u32 v10, 128, v9')
    k('v_cndmask_b32 v10, v8, v10, s[38:39]')
    k('s_cmp_ge_u32 s2, 224')
    k(f's_cbranch_scc1 {Lnokv}')
    udiv(k, 12, 2, 7)
    k('s_mul_i32 s13, s12, 7')
    k('s_sub_u32 s13, s2, s13')
    k('s_mov_b32 s62, s13')
    k(f'v_and_b32 v40, 7, v{V_LANE}')
    k(f'v_lshrrev_b32 v1, 3, v{V_LANE}')
    k(f's_lshl_b32 s14, s{S_WAVE}, 5')
    k('s_lshl_b32 s15, s13, 7')
    k('s_add_u32 s14, s14, s15')
    k('v_lshl_add_u32 v41, v1, 2, s14')
    k('s_mul_i32 s15, s12, 64*896')
    k('v_mul_u32_u24 v42, 8*896, v40')
    k('v_add3_u32 v42, v42, v41, s15')
    k('v_add_u32 v43, 5*896, v42')
    k('v_subrev_u32 v44, 3*896, v42')
    k('v_lshlrev_b32 v45, 2, v41')
    srd(k, 16, P_K, 0, SZ_ACT); srd(k, 20, P_V, 0, SZ_ACT); srd(k, 24, P_SH, 0, 448 * 8)
    K0 = 16; V0 = 48
    for j in range(3): k(f'buffer_load_dword v{K0+j}, v44, s[16:19], 0 offen offset:{896*j}')
    for j in range(5): k(f'buffer_load_dword v{K0+3+j}, v42, s[16:19], 0 offen offset:{896*j}')
    for j in range(3): k(f'buffer_load_dword v{K0+8+j}, v43, s[16:19], 0 offen offset:{896*j}')
    for j in range(5): k(f'buffer_load_dword v{V0+j}, v42, s[20:23], 0 offen offset:{896*j}')
    for j in range(3): k(f'buffer_load_dword v{V0+5+j}, v43, s[20:23], 0 offen offset:{896*j}')
    k('buffer_load_dwordx4 v[36:39], v45, s[24:27], 0 offen')
    k('s_lshl_b32 s13, s13, 6')
    k('s_lshl_b32 s14, s12, 1')
    k('s_add_u32 s13, s13, s14')
    k(f's_lshr_b32 s14, s{S_WAVE}, 1')
    k(f's_and_b32 s{S_PAR}, s{S_WAVE}, 1')
    k(f's_add_u32 s{S_CH}, s13, s14')
    k(f's_mul_i32 s{S_CHB}, s14, {CH_STRIDE}')
    k(f's_lshl_b32 s16, s{S_CH}, 12')
    srd_soff(k, 20, P_SSK, 0, 16, 4096)
    k(f's_lshl_b32 s17, s{S_PAR}, 11')
    k(f'v_add_u32 v92, s17, v{V_L16}')
    k('v_subrev_u32 v93, 16, v92')
    for r in range(2):
        k(f'buffer_load_dwordx4 v[{96+8*r}:{99+8*r}], v93, s[20:23], 0 offen offset:{1024*r}')
        k(f'buffer_load_dwordx4 v[{100+8*r}:{103+8*r}], v92, s[20:23], 0 offen offset:{1024*r}')
    k('buffer_load_dwordx4 v[232:235], v9, s[28:31], 0 offen')
    k('buffer_load_dwordx4 v[236:239], v10, s[28:31], 0 offen')
    k('v_lshlrev_b32 v46, 11, v41')
    k('s_lshl_b32 s32, s12, 7')
    k('v_lshlrev_b32 v47, 4, v40')
    k('v_add_u32 v47, s32, v47')
    k('v_sub_u32 v47, 4080, v47')
    k('v_add_u32 v47, v46, v47')
    srd(k, 28, P_WS, OFF_XR, SZ_XR)
    k('s_movk_i32 s33, 4096')
    mark(k, 'p0 issued')
    k('s_waitcnt vmcnt(6)')
    SK = 56
    for c in range(2):
        k(f'v_lshlrev_b32 v{SK+4*c+0}, 16, v{36+2*c}')
        k(f'v_and_b32 v{SK+4*c+1}, 0xffff0000, v{36+2*c}')
        k(f'v_lshlrev_b32 v{SK+4*c+2}, 16, v{37+2*c}')
        k(f'v_and_b32 v{SK+4*c+3}, 0xffff0000, v{37+2*c}')
    KF = 64
    for c in range(2):
        for j in range(11):
            if c == 0: k(f'v_lshlrev_b32 v{KF+j}, 16, v{K0+j}')
            else: k(f'v_and_b32 v{KF+j}, 0xffff0000, v{K0+j}')
        for t in range(8):
            if c == 0: k(f'v_lshlrev_b32 v{112+t}, 16, v{V0+t}')
            else: k(f'v_and_b32 v{112+t}, 0xffff0000, v{V0+t}')
        for t in range(8): k(f'v_mul_f32 v{76+t}, v{SK+4*c+3}, v{KF+t}')
        for t in range(8): k(f'v_fmac_f32 v{76+t}, v{SK+4*c+2}, v{KF+t+1}')
        for t in range(8): k(f'v_fmac_f32 v{76+t}, v{SK+4*c+1}, v{KF+t+2}')
        for t in range(8): k(f'v_fmac_f32 v{76+t}, v{SK+4*c+0}, v{KF+t+3}')
        for t in range(8): k(f'v_mul_f32 v{76+t}, v{76+t}, v{112+t}')
        o = 84 + 4 * c
        for i in range(4):
            k(f'v_cvt_pk_bf16_f32 v{o+i}, v{76+7-2*i}, v{76+6-2*i}')
        if c == 0: k(f'buffer_store_dwordx4 v[{o}:{o+3}], v47, s[28:31], 0 offen sc1')
        else: k(f'buffer_store_dwordx4 v[{o}:{o+3}], v47, s[28:31], s33 offen sc1')
    mark(k, 'kv stored')
    init_issue(k)
    Lj = label('p0j')
    k(f's_branch {Lj}')
    k(f'{Lnokv}:')
    k('buffer_load_dwordx4 v[232:235], v9, s[28:31], 0 offen')
    k('buffer_load_dwordx4 v[236:239], v10, s[28:31], 0 offen')
    k(f'{Lj}:')

def ph_p0_wdma(k):
    k(f'v_lshrrev_b32 v62, 2, v{V_LANE}')
    k(f'v_and_b32 v63, 3, v{V_LANE}')
    k('v_lshlrev_b32 v63, 4, v63')
    k('v_mul_u32_u24 v60, 3584, v62')
    k('v_add_u32 v60, v60, v63')
    k('v_mul_u32_u24 v61, 896, v62')
    k('v_add_u32 v61, v61, v63')
    for rnd in range(5): p0_weight_dma(k, rnd)
    mark(k, 'p0 dma issued')

def ph_p0_wfinish(k, younger=0):
    k(f's_waitcnt vmcnt({younger})')
    k(f'v_and_b32 v62, 15, v{V_LANE}')
    k(f'v_lshrrev_b32 v63, 4, v{V_LANE}')
    k('v_lshrrev_b32 v64, 2, v62')
    k('v_and_b32 v65, 3, v62')
    k('v_lshlrev_b32 v65, 3, v65')
    k('v_and_b32 v66, 1, v63')
    k('v_lshl_add_u32 v65, v66, 5, v65')
    k('v_lshl_add_u32 v65, v64, 6, v65')
    k('v_lshrrev_b32 v63, 1, v63')
    k(f's_mul_i32 s13, s{S_WAVE}, 5120')
    k(f's_add_u32 s13, s13, {WST_OFF}')
    k('v_add_u32 v65, s13, v65')
    k('v_lshl_add_u32 v66, v63, 9, v65')
    k('v_lshl_add_u32 v67, v63, 8, v65')
    for rnd in range(5):
        fl = 34 + rnd
        o = 112 + 4 * rnd
        Lwd = label('trw'); Le = label('tre')
        if rnd < 3:
            k(f'ds_read_b64_tr_b16 v[{o}:{o+1}], v66 offset:{1024*rnd}')
            k(f'ds_read_b64_tr_b16 v[{o+2}:{o+3}], v66 offset:{1024*rnd + 256}')
        elif rnd == 3:
            k(f'ds_read_b64_tr_b16 v[{o}:{o+1}], v67 offset:{1024*rnd}')
            k(f'ds_read_b64_tr_b16 v[{o+2}:{o+3}], v67 offset:{1024*rnd + 512}')
        else:
            k(f's_cmp_eq_u32 s{fl}, 1')
            k(f's_cbranch_scc1 {Lwd}')
            k(f'ds_read_b64_tr_b16 v[{o}:{o+1}], v66 offset:{1024*rnd}')
            k(f'ds_read_b64_tr_b16 v[{o+2}:{o+3}], v66 offset:{1024*rnd + 256}')
            k(f's_branch {Le}')
            k(f'{Lwd}:')
            k(f'ds_read_b64_tr_b16 v[{o}:{o+1}], v67 offset:{1024*rnd}')
            k(f'ds_read_b64_tr_b16 v[{o+2}:{o+3}], v67 offset:{1024*rnd + 512}')
            k(f'{Le}:')
    k('s_waitcnt lgkmcnt(0)')
    for rnd in range(4):
        o = 112 + 4 * rnd
        sr = SR_WGU if rnd < 3 else SR_WD
        k(f'buffer_store_dwordx4 v[{o}:{o+3}], v{V_L16}, s[{sr}:{sr+3}], s{40+rnd} offen sc1')
    Lwd = label('stw'); Le = label('ste')
    k('s_cmp_eq_u32 s38, 1')
    k(f's_cbranch_scc1 {Lwd}')
    k(f'buffer_store_dwordx4 v[128:131], v{V_L16}, s[{SR_WGU}:{SR_WGU+3}], s44 offen sc1')
    k(f's_branch {Le}')
    k(f'{Lwd}:')
    k(f'buffer_store_dwordx4 v[128:131], v{V_L16}, s[{SR_WD}:{SR_WD+3}], s44 offen sc1')
    k(f'{Le}:')
    mark(k, 'w stored')

def ph_conv_prep(k):
    k(f'v_add_u32 v6, s{S_CHB}, v92')
    k('v_add_u32 v6, 16, v6')
    for i in range(4): k(f'v_mov_b32 v{8+i}, 0')
    La = label('cz'); Lb = label('cz')
    k(f's_cmp_eq_u32 s{S_PAR}, 0')
    k(f's_cbranch_scc0 {La}')
    k(f'v_mul_u32_u24 v7, 4160, v{V_LANE}')
    k(f'v_add_u32 v7, s{S_CHB}, v7')
    k(f'v_cmp_gt_u32 vcc, 8, v{V_LANE}')
    k('s_and_saveexec_b64 s[30:31], vcc')
    k('ds_write_b128 v7, v[8:11]')
    k('s_mov_b64 exec, s[30:31]')
    k(f's_branch {Lb}')
    k(f'{La}:')
    k(f'v_add_u32 v7, s{S_CHB}, v{V_L16}')
    k(f'v_add_u32 v7, {XRL_OFF + 4096}, v7')
    k(f'v_cmp_gt_u32 vcc, 30, v{V_LANE}')
    k('s_and_saveexec_b64 s[30:31], vcc')
    k('ds_write_b128 v7, v[8:11]')
    k('s_mov_b64 exec, s[30:31]')
    k(f'{Lb}:')
    for r in range(2):
        W = 96 + 8 * r
        for c in range(8):
            s = c + 1
            T = 16 + 4 * (c % 4) + 16 * r
            if s % 2 == 1:
                kk = (s - 1) // 2
                for i in range(4): k(f'v_alignbit_b32 v{T+i}, v{W+kk+i+1}, v{W+kk+i}, 16')
                src = T
            else:
                kk = s // 2
                if kk % 2 == 0: src = W + kk
                else:
                    for i in range(4): k(f'v_mov_b32 v{T+i}, v{W+kk+i}')
                    src = T
            k(f'ds_write_b128 v6, v[{src}:{src+3}] offset:{c*4160 + 1024*r}')

def g1_wload(k, ks):
    out = []
    if ks % 2 == 0: out.append(f's_add_u32 s45, s{S_WOFF}, {ks*2048}')
    o = (ks % 2) * 2048
    out.append(f'buffer_load_dwordx4 a[{8*ks}:{8*ks+3}], v{V_L16}, s[{SR_WGU}:{SR_WGU+3}], s45 offen offset:{o} sc1')
    out.append(f'buffer_load_dwordx4 a[{8*ks+4}:{8*ks+7}], v{V_L16}, s[{SR_WGU}:{SR_WGU+3}], s45 offen offset:{o+1024} sc1')
    return out

class Cap:
    def __init__(self): self.L = []
    def __call__(self, x): self.L.append(x)

def sprinkle(k, lines, fillers, tagf, skip_head=0, skip_tail=0):
    n = len(lines) - skip_head - skip_tail
    fi = 0; nf = len(fillers)
    masked = False
    for i, ln in enumerate(lines):
        if isinstance(ln, tuple): emit_vm(k, ln[0], ln[1])
        else:
            k(ln)
            if 'saveexec' in ln: masked = True
            if ln.startswith('s_mov_b64 exec'): masked = False
        j = i - skip_head + 1
        if j > 0 and n > 0 and not masked:
            tgt = min(nf, (nf * j + n - 1) // n)
            while fi < tgt:
                for ins in fillers[fi][0]: emit_vm(k, ins, fillers[fi][1])
                fi += 1
    while fi < nf:
        for ins in fillers[fi][0]: emit_vm(k, ins, fillers[fi][1])
        fi += 1

def g1_pf_groups(ks0, ks1):
    out = []
    for ks in range(ks0, ks1):
        base = ks - (ks % 2); o = (ks % 2) * 2048
        pre = [f's_add_u32 s45, s{S_WOFF}, {base*2048}'] if (ks % 2 == 0 or ks == ks0) else []
        out.append((pre + [f'buffer_load_dwordx4 a[{8*ks}:{8*ks+3}], v{V_L16}, s[{SR_WGU}:{SR_WGU+3}], s45 offen offset:{o} sc1'], ('W', ks)))
        out.append(([f'buffer_load_dwordx4 a[{8*ks+4}:{8*ks+7}], v{V_L16}, s[{SR_WGU}:{SR_WGU+3}], s45 offen offset:{o+1024} sc1'], ('W', ks)))
    return out

def emit_vm(k, ins, tag):
    k(ins)
    if ins.startswith('buffer_'): vm.add(tag)

def g1_wprefetch(k, ks0, ks1):
    for grp, tag in g1_pf_groups(ks0, ks1):
        for ins in grp: emit_vm(k, ins, tag)

def l2_warm(k, sr, nbytes_half, whole=False):
    per = nbytes_half // 16
    assert per % 1024 == 0
    n = per // 1024
    k(f's_sub_u32 s12, s{S_I}, 28')
    k('s_lshl_b32 s12, s12, 2')
    k(f's_add_u32 s12, s12, s{S_WAVE}')
    k(f's_mul_i32 s12, s12, {per}')
    if not whole:
        k(f's_and_b32 s13, s{S_XCD}, 1')
        k(f's_mul_i32 s13, s13, {nbytes_half}')
        k('s_add_u32 s12, s12, s13')
    Ll = label('warm')
    k(f's_mov_b32 s13, {n // 4}')
    k(f'{Ll}:')
    for j in range(4):
        k(f'buffer_load_dwordx4 v[{16+4*j}:{19+4*j}], v{V_L16}, s[{sr}:{sr+3}], s12 offen offset:{1024*j} sc1')
    k('s_add_u32 s12, s12, 4096')
    k('s_sub_u32 s13, s13, 1')
    k('s_cmp_lg_u32 s13, 0')
    k('s_waitcnt vmcnt(24)')
    k(f's_cbranch_scc1 {Ll}')
    for j in range(n % 4):
        k(f'buffer_load_dwordx4 v[{16+4*j}:{19+4*j}], v{V_L16}, s[{sr}:{sr+3}], s12 offen offset:{1024*j} sc1')

def ph_conv(k):
    srd(k, 16, P_WS, OFF_XR, SZ_XR)
    srd(k, 24, P_WS, OFF_YT, SZ_ACT)
    k(f's_lshl_b32 s20, s{S_CH}, 12')
    k(f's_lshl_b32 s21, s{S_PAR}, 11')
    k('s_add_u32 s20, s20, s21')
    k(f'buffer_load_dwordx4 v[16:19], v{V_L16}, s[16:19], s20 offen sc1')
    k(f'buffer_load_dwordx4 v[20:23], v{V_L16}, s[16:19], s20 offen offset:1024 sc1')
    k(f's_and_b32 s28, s{S_CH}, 0xfffffffe')
    k('s_lshl_b32 s28, s28, 1')
    k(f's_load_dword s29, s[{P_SSD}:{P_SSD+1}], s28')
    k(f's_add_u32 s21, s21, s{S_CHB}')
    k(f's_add_u32 s21, s21, {XRL_OFF}')
    k(f'v_add_u32 v4, s21, v{V_L16}')
    k(f'v_and_b32 v5, 15, v{V_LANE}')
    k(f'v_lshrrev_b32 v6, 4, v{V_LANE}')
    k('v_lshlrev_b32 v7, 4, v6')
    k('v_lshlrev_b32 v8, 5, v5')
    k('v_sub_u32 v7, v7, v8')
    k(f's_lshl_b32 s22, s{S_PAR}, 6')
    k(f's_add_u32 s22, s22, s{S_CHB}')
    k(f's_add_u32 s22, s22, {XRL_OFF + 544 - 64}')
    k('v_add_u32 v7, s22, v7')
    k('v_and_b32 v12, 7, v5')
    k('v_mul_u32_u24 v12, 4160, v12')
    k('v_lshrrev_b32 v13, 3, v5')
    k('v_add_u32 v13, v6, v13')
    k('v_lshlrev_b32 v13, 4, v13')
    k('v_add_u32 v12, v12, v13')
    k(f's_lshl_b32 s22, s{S_PAR}, 6')
    k(f's_add_u32 s22, s22, s{S_CHB}')
    k('v_add_u32 v12, s22, v12')
    ph_p0_wfinish(k, younger=2)
    k('s_waitcnt vmcnt(5)')
    k('ds_write_b128 v4, v[16:19]')
    k('ds_write_b128 v4, v[20:23] offset:1024')
    k('s_waitcnt lgkmcnt(0)')
    k('s_barrier')
    mark(k, 'conv:x in lds')
    ACC = 16; FR = 48; AR = 176; NA = 8
    order = list(range(31, -1, -1))
    def frags(jj): return [(at, 4 * at - jj + 3) for at in range(jj // 4, 8)]
    pend = []
    def issue(tag, txt): k(txt); pend.append(tag)
    def wait_for(tags):
        idx = [pend.index(t) for t in tags if t in pend]
        if idx:
            n = min(len(pend) - 1 - max(idx), 15)
            k(f's_waitcnt lgkmcnt({n})')
            pend[:] = pend[len(pend) - n:] if n > 0 else []
    loadedF = set()
    def issueA(idx):
        jj = order[idx]; r = AR + 4 * (idx % NA)
        issue(('A', jj), f'ds_read_b128 v[{r}:{r+3}], v12 offset:{128*jj}')
    def issueF(idx):
        for at, n in frags(order[idx]):
            if n not in loadedF:
                loadedF.add(n)
                issue(('F', n), f'ds_read_b128 v[{FR+4*n}:{FR+4*n+3}], v7 offset:{128*(31-n)}')
    LA = 4
    for idx in range(LA): issueA(idx); issueF(idx)
    first = set()
    nm = 0
    for idx, jj in enumerate(order):
        if idx + LA < 32: issueA(idx + LA); issueF(idx + LA)
        wait_for([('A', jj)] + [('F', n) for _, n in frags(jj)])
        r = AR + 4 * (idx % NA)
        for at, n in frags(jj):
            c = f'v[{ACC+4*at}:{ACC+4*at+3}]' if at in first else '0'
            first.add(at)
            k(f'v_mfma_f32_16x16x32_bf16 v[{ACC+4*at}:{ACC+4*at+3}], v[{r}:{r+3}], v[{FR+4*n}:{FR+4*n+3}], {c}')
    mark(k, 'conv:mfma done')
    k(f's_lshl_b32 s41, s{S_WAVE}, 12')
    k(f's_add_u32 s41, s41, {CONV_SCR}')
    k(f'v_add_u32 v8, s41, v{V_L16}')
    k(f's_xor_b32 s42, s{S_WAVE}, 1')
    k('s_lshl_b32 s42, s42, 12')
    k(f's_add_u32 s42, s42, {CONV_SCR}')
    k(f'v_add_u32 v9, s42, v{V_L16}')
    k('v_lshlrev_b32 v10, 5, v5')
    k('v_lshl_add_u32 v10, v6, 3, v10')
    k(f's_lshl_b32 s43, s{S_PAR}, 11')
    k(f's_sub_u32 s43, s{S_CHB}, s43')
    k(f's_add_u32 s43, s43, {XRL_OFF + 4088 - 512*3}')
    k('v_sub_u32 v11, s43, v10')
    k('v_and_b32 v13, 1, v6')
    k('v_lshlrev_b32 v13, 4, v13')
    k('v_add_u32 v13, v13, v5')
    k(f's_lshl_b32 s44, s{S_PAR}, 6')
    k('v_add_u32 v13, s44, v13')
    k('v_lshlrev_b32 v13, 6, v13')
    k('v_lshrrev_b32 v14, 1, v6')
    k('v_lshl_add_u32 v13, v14, 4, v13')
    k(f's_lshr_b32 s44, s{S_WAVE}, 1')
    k('s_lshl_b32 s44, s44, 5')
    k(f's_add_u32 s44, s44, {YB_SCR}')
    k('v_add_u32 v13, s44, v13')
    k(f's_lshl_b32 s44, s{S_WAVE}, 11')
    k(f's_add_u32 s44, s44, {YB_SCR}')
    k(f'v_add_u32 v14, s44, v{V_L16}')
    k(f'v_lshrrev_b32 v10, 2, v{V_LANE}')
    k('v_mul_u32_u24 v10, 14336, v10')
    k(f'v_and_b32 v15, 3, v{V_LANE}')
    k('v_lshl_add_u32 v10, v15, 4, v10')
    k(f's_and_b32 s44, s{S_CH}, 0xfffffffe')
    k('s_lshl_b32 s44, s44, 5')
    k(f's_mul_i32 s45, s{S_WAVE}, 32*14336')
    k('s_add_u32 s44, s44, s45')
    k('v_add_u32 v10, s44, v10')
    La = label('cp'); Lb = label('cp')
    k(f's_cmp_eq_u32 s{S_PAR}, 0')
    k(f's_cbranch_scc0 {La}')
    for i in range(4): k(f'ds_write_b128 v8, v[{ACC+16+4*i}:{ACC+16+4*i+3}] offset:{1024*i}')
    k(f's_branch {Lb}')
    k(f'{La}:')
    k('s_nop 7')
    for i in range(4): k(f'ds_write_b128 v8, v[{ACC+4*i}:{ACC+4*i+3}] offset:{1024*i}')
    for i in range(16): k(f'v_mov_b32 v{ACC+i}, v{ACC+16+i}')
    k(f'{Lb}:')
    k('s_waitcnt lgkmcnt(0)')
    k('s_lshl_b32 s36, s29, 16')
    k('s_and_b32 s37, s29, 0xffff0000')
    k(f's_and_b32 s34, s{S_CH}, 1')
    k('s_cmp_eq_u32 s34, 0')
    k('s_cselect_b32 s36, s36, s37')
    k('s_waitcnt vmcnt(0)')
    k('s_barrier')
    gsignal(k, L_W)
    for i in range(4): k(f'ds_read_b128 v[{48+4*i}:{51+4*i}], v9 offset:{1024*i}')
    for i in range(4): k(f'ds_read_b64 v[{64+2*i}:{65+2*i}], v11 offset:{512*(3-i)}')
    k('s_waitcnt lgkmcnt(0)')
    for i in range(4):
        a = ACC + 4 * i
        for r in range(4): k(f'v_add_f32 v{a+r}, v{a+r}, v{48+4*i+r}')
        x0, x1 = 64 + 2 * i, 65 + 2 * i
        k(f'v_and_b32 v72, 0xffff0000, v{x1}')
        k(f'v_lshlrev_b32 v73, 16, v{x1}')
        k(f'v_and_b32 v74, 0xffff0000, v{x0}')
        k(f'v_lshlrev_b32 v75, 16, v{x0}')
        for r in range(4): k(f'v_fmac_f32 v{a+r}, s36, v{72+r}')
        k(f'v_cvt_pk_bf16_f32 v{76+2*i}, v{a}, v{a+1}')
        k(f'v_cvt_pk_bf16_f32 v{77+2*i}, v{a+2}, v{a+3}')
    for p in range(2):
        o = 76 + 4 * p
        k(f'v_permlane16_swap_b32 v{o}, v{o+2}')
        k(f'v_permlane16_swap_b32 v{o+1}, v{o+3}')
        k(f'ds_write_b128 v13, v[{o}:{o+3}] offset:{2048*p}')
    k('s_waitcnt lgkmcnt(0)')
    k('s_barrier')
    k('ds_read_b128 v[84:87], v14')
    k('ds_read_b128 v[88:91], v14 offset:1024')
    k('s_waitcnt lgkmcnt(1)')
    emit_vm(k, 'buffer_store_dwordx4 v[84:87], v10, s[24:27], 0 offen sc1', ('YT', 0))
    k('s_mov_b32 s45, 16*14336')
    k('s_waitcnt lgkmcnt(0)')
    emit_vm(k, 'buffer_store_dwordx4 v[88:91], v10, s[24:27], s45 offen sc1', ('YT', 1))

def wave_reduce8(k, regs, tmp):
    for r in regs: k(f'v_add_f32_dpp v{r}, v{r}, v{r} row_ror:8 row_mask:0xf bank_mask:0xf')
    for r, t in zip(regs, tmp): k(f'v_mov_b32 v{t}, v{r}')
    for r, t in zip(regs, tmp): k(f'v_permlane16_swap_b32 v{r}, v{t}')
    for r, t in zip(regs, tmp): k(f'v_add_f32 v{r}, v{r}, v{t}')
    for r, t in zip(regs, tmp): k(f'v_mov_b32 v{t}, v{r}')
    for r, t in zip(regs, tmp): k(f'v_permlane32_swap_b32 v{r}, v{t}')
    for r, t in zip(regs, tmp): k(f'v_add_f32 v{r}, v{r}, v{t}')

LN_BASE = 0
LN_PART = LN_BASE + 56 * 144
X_ = 16; Y_ = 24; XF = 36; YF = 52; T_ = 68

def ln_unpack(k, dst, src, n):
    for i in range(n):
        k(f'v_lshlrev_b32 v{dst+2*i}, 16, v{src+i}')
        k(f'v_and_b32 v{dst+2*i+1}, 0xffff0000, v{src+i}')

def ln_stats(k, buf):
    k(f'v_add_f32 v84, v{XF}, v{XF+1}')
    k(f'v_mul_f32 v85, v{XF}, v{XF}')
    k(f'v_add_f32 v86, v{XF+2}, v{XF+3}')
    k(f'v_mul_f32 v87, v{XF+1}, v{XF+1}')
    k(f'v_fmac_f32 v85, v{XF+2}, v{XF+2}')
    k(f'v_fmac_f32 v87, v{XF+3}, v{XF+3}')
    for i in range(4, 16, 2):
        k(f'v_add_f32 v84, v84, v{XF+i}')
        k(f'v_add_f32 v86, v86, v{XF+i+1}')
        k(f'v_fmac_f32 v85, v{XF+i}, v{XF+i}')
        k(f'v_fmac_f32 v87, v{XF+i+1}, v{XF+i+1}')
    k('v_add_f32 v84, v84, v86')
    k('v_add_f32 v85, v85, v87')
    wave_reduce8(k, [84, 85], [86, 87])
    k(f'v_cmp_gt_u32 vcc, 8, v{V_LANE}')
    k('s_and_saveexec_b64 s[40:41], vcc')
    k(f'ds_write_b64 v32, v[84:85] offset:{256*buf}')
    k('s_mov_b64 exec, s[40:41]')
    k('s_waitcnt lgkmcnt(0)')
    k('s_barrier')
    for w in range(4): k(f'ds_read_b64 v[{88+2*w}:{89+2*w}], v15 offset:{256*buf + 64*w}')

def ln_finish(k):
    k('v_add_f32 v88, v88, v90'); k('v_add_f32 v89, v89, v91')
    k('v_add_f32 v92, v92, v94'); k('v_add_f32 v93, v93, v95')
    k('v_add_f32 v88, v88, v92'); k('v_add_f32 v89, v89, v93')
    k('v_mul_f32 v84, 0x3b124925, v88')
    k('v_mul_f32 v85, 0x3b124925, v89')
    k('v_fma_f32 v85, -v84, v84, v85')
    k('v_max_f32 v85, 0, v85')
    k('v_add_f32 v85, 0x3727c5ac, v85')
    k('v_rsq_f32 v85, v85')
    k('v_mul_f32 v86, v84, v85')

def ln_addr(k):
    k(f'v_and_b32 v33, 7, v{V_LANE}')
    k(f'v_lshrrev_b32 v4, 3, v{V_LANE}')
    k(f's_mul_i32 s12, s{S_WAVE}, 14')
    k('v_add_u32 v5, s12, v4')
    k('s_lshr_b32 s13, s2, 2')
    k('s_mul_i32 s13, s13, 28672')
    k('s_and_b32 s14, s2, 3')
    k('s_lshl_b32 s14, s14, 7')
    k('s_add_u32 s13, s13, s14')
    k('v_lshlrev_b32 v6, 9, v5')
    k('v_lshl_add_u32 v6, v33, 4, v6')
    k('v_add_u32 v6, s13, v6')
    k('v_add_u32 v7, 4096, v6')
    k('v_mov_b32 v8, 0x80000000')
    k('v_cmp_gt_u32 vcc, 6, v4')
    k('v_cmp_gt_u32 s[38:39], 6, v4')
    k('v_cndmask_b32 v7, v8, v7, vcc')
    k('v_lshlrev_b32 v15, 3, v33')
    k(f'v_add_u32 v15, {LN_PART}, v15')
    k(f's_lshl_b32 s37, s{S_WAVE}, 6')
    k('v_add_u32 v32, s37, v15')

def ph_ln1_pre(k):
    ln_addr(k)
    k('v_lshlrev_b32 v11, 5, v0')
    k('v_add_u32 v12, 8192, v11')
    k('v_cmp_gt_u32 vcc, 192, v0')
    k('v_cndmask_b32 v12, v8, v12, vcc')
    k('v_lshrrev_b32 v13, 3, v0')
    k('v_add_u32 v13, v13, v0')
    k('v_lshlrev_b32 v13, 4, v13')
    k(f'v_add_u32 v13, {LN_BASE}, v13')
    k('v_mul_u32_u24 v14, 144, v5')
    k('v_lshl_add_u32 v14, v33, 1, v14')
    k(f'v_add_u32 v14, {LN_BASE}, v14')
    ln_unpack(k, XF, 232, 8)
    ln_stats(k, 0)
    k('s_waitcnt lgkmcnt(0)')
    ln_finish(k)
    for j in range(16): k(f'v_fma_f32 v{T_+j}, v{XF+j}, v85, -v86')

def ln_tail(k, sr_x, sr_xn, pf_range, tagp):
    for j in range(16): k(f'v_fmac_f32 v{XF+j}, v{T_+j}, v{YF+j}')
    for i in range(8): k(f'v_cvt_pk_bf16_f32 v{X_+i}, v{XF+2*i}, v{XF+2*i+1}')
    ln_unpack(k, XF, X_, 8)
    emit_vm(k, f'buffer_store_dwordx4 v[{X_}:{X_+3}], v6, s[{sr_x}:{sr_x+3}], 0 offen sc1', (tagp, 'x0'))
    emit_vm(k, f'buffer_store_dwordx4 v[{X_+4}:{X_+7}], v7, s[{sr_x}:{sr_x+3}], 0 offen sc1', (tagp, 'x1'))
    ln_stats(k, 1)
    k('s_waitcnt lgkmcnt(0)')
    ln_finish(k)
    for j in range(16): k(f'v_fma_f32 v{T_+j}, v{XF+j}, v85, -v86')
    for i in range(8): k(f'v_cvt_pk_bf16_f32 v{YF+i}, v{T_+2*i}, v{T_+2*i+1}')
    emit_vm(k, f'buffer_store_dwordx4 v[{YF}:{YF+3}], v6, s[{sr_xn}:{sr_xn+3}], 0 offen sc1', (tagp, 'n0'))
    emit_vm(k, f'buffer_store_dwordx4 v[{YF+4}:{YF+7}], v7, s[{sr_xn}:{sr_xn+3}], 0 offen sc1', (tagp, 'n1'))
    g1_wprefetch(k, *pf_range)
    return vm.wait((tagp, 'n1'))

def ph_ln1(k):
    srd(k, 32, P_WS, OFF_YT, SZ_ACT)
    k('s_lshr_b32 s36, s2, 1')
    k('s_mul_i32 s36, s36, 14336')
    k('s_and_b32 s37, s2, 1')
    k('s_lshl_b32 s37, s37, 4')
    k('s_add_u32 s36, s36, s37')
    emit_vm(k, 'buffer_load_dwordx4 v[24:27], v11, s[32:35], s36 offen sc1', ('ln1', 'yl0'))
    emit_vm(k, 'buffer_load_dwordx4 v[28:31], v12, s[32:35], s36 offen sc1', ('ln1', 'yl1'))
    srd(k, 16, P_WS, OFF_XN1, SZ_ACT); srd(k, 20, P_WS, OFF_X1, SZ_ACT); srd(k, 24, P_WS, OFF_YF, SZ_ACT)
    g1_wprefetch(k, P0A, P0B)
    k(vm.wait(('ln1', 'yl1')))
    k('ds_write_b128 v13, v[24:27]')
    k('v_cmp_gt_u32 vcc, 192, v0')
    k('s_and_saveexec_b64 s[40:41], vcc')
    k('ds_write_b128 v13, v[28:31] offset:4608')
    k('s_mov_b64 exec, s[40:41]')
    k('s_waitcnt lgkmcnt(0)')
    k('s_barrier')
    mark(k, 'ln1:y in lds')
    for j in range(8): k(f'ds_read_u16 v{YF+j}, v14 offset:{16*j}')
    for j in range(8): k(f'ds_read_u16 v{YF+8+j}, v14 offset:{8*144 + 16*j}')
    k('s_waitcnt lgkmcnt(0)')
    for i in range(8): k(f'v_lshl_or_b32 v{Y_+i}, v{YF+2*i+1}, 16, v{YF+2*i}')
    for j in range(16): k(f'v_lshlrev_b32 v{YF+j}, 16, v{YF+j}')
    for j in range(8, 16): k(f'v_cndmask_b32 v{YF+j}, 0, v{YF+j}, s[38:39]')
    emit_vm(k, f'buffer_store_dwordx4 v[{Y_}:{Y_+3}], v6, s[24:27], 0 offen sc1', ('ln1', 'y0'))
    emit_vm(k, f'buffer_store_dwordx4 v[{Y_+4}:{Y_+7}], v7, s[24:27], 0 offen sc1', ('ln1', 'y1'))
    return ln_tail(k, 20, 16, (P0B, PB), 'ln1')

def ph_ln2_pre(k):
    ln_addr(k)
    srd(k, 24, P_WS, OFF_YF, SZ_ACT)
    k(f'buffer_load_dwordx4 v[{Y_}:{Y_+3}], v6, s[24:27], 0 offen sc1')
    k(f'buffer_load_dwordx4 v[{Y_+4}:{Y_+7}], v7, s[24:27], 0 offen sc1')
    srd(k, 16, P_WS, OFF_XN2, SZ_ACT); srd(k, 20, P_WS, OFF_X3, SZ_ACT); srd(k, 28, P_WS, OFF_X2, SZ_ACT)

def ph_ln2(k):
    emit_vm(k, f'buffer_load_dwordx4 v[{X_}:{X_+3}], v6, s[28:31], 0 offen sc1', ('ln2', 'xl0'))
    emit_vm(k, f'buffer_load_dwordx4 v[{X_+4}:{X_+7}], v7, s[28:31], 0 offen sc1', ('ln2', 'xl1'))
    k(vm.wait(('ln2', 'xl1')))
    mark(k, 'ln2:loaded')
    ln_unpack(k, YF, Y_, 8)
    ln_unpack(k, XF, X_, 8)
    ln_stats(k, 0)
    k('s_waitcnt lgkmcnt(0)')
    ln_finish(k)
    for j in range(16): k(f'v_fma_f32 v{T_+j}, v{XF+j}, v85, -v86')
    return ln_tail(k, 20, 16, (0, 0), 'ln2')

WDL_BASE = 57344
def rr(loc, n=4): return f'{loc[0]}[{loc[1]}:{loc[1]+n-1}]'
def wdr_loc(ks, ct):
    if ct == 0: return ('a', 224 + 4 * ks) if ks < 8 else ('v', 168 + 4 * (ks - 8))
    assert ks >= 26
    return ('v', 104 + 4 * (ks - 26))
def wd_gload(ks, ct, dst):
    sr = SR_WD if ct == 0 else 28
    return [f's_add_u32 s20, s{S_DOFF}, {(ks//4)*4096}',
            f'buffer_load_dwordx4 {rr(dst)}, v{V_L16}, s[{sr}:{sr+3}], s20 offen offset:{(ks%4)*1024} sc1']

def hreg(t, ks): return 112 + 4 * ((28 * t + ks) % 14)
def hload_ins(t, ks):
    cur = 22 if t == 0 else 23
    pre = [f's_add_u32 s{cur}, s{cur}, 4096'] if (ks % 4 == 0 and ks > 0) else []
    r = hreg(t, ks)
    return pre + [f'buffer_load_dwordx4 v[{r}:{r+3}], v{V_L16}, s[24:27], s{cur} offen offset:{(ks%4)*1024} sc1']

def lmark(k, name, layer=None):
    mark(k, f'L{layer} {name}')

def ph_g1(k, layer):
    srd(k, 16, P_WS, OFF_XN1 if layer == 0 else OFF_XN2, SZ_ACT)
    k(f's_lshl_b32 s32, s{S_RB}, 2')
    k('s_mul_i32 s34, s32, 28672')
    k(f's_mul_i32 s36, s{S_WAVE}, 7168')
    k('s_add_u32 s34, s34, s36')
    ST = 112; ACC = 16; TF = 80; TM = 96; NR = 4; PD = 3
    lg = LG()
    def lds(ins, tag): k(ins); lg.add(tag)
    def tok_load_one(tt, j):
        r = ST + 28 * (tt % 2) + 4 * j
        if j % 4 == 0: k(f's_add_u32 s37, s34, {tt*28672 + (j//4)*4096}')
        emit_vm(k, f'buffer_load_dwordx4 v[{r}:{r+3}], v{V_L16}, s[16:19], s37 offen offset:{(j%4)*1024} sc1', ('T', layer, tt, j))
    for j in range(7): tok_load_one(0, j)
    srd(k, 24, P_WS, OFF_H1 if layer == 0 else OFF_H2, SZ_H)
    k(f'v_add_u32 v4, s36, v{V_L16}')
    k(f's_lshl_b32 s31, s{S_FS}, 2')
    k(f's_add_u32 s31, s31, s{S_WAVE}')
    k('s_lshl_b32 s40, s31, 11')
    dl = L_DELTA * layer
    k(f's_add_u32 s21, s32, {L_XN0 + dl + 2}')
    k(f's_add_u32 s33, s32, {L_H0 + dl}')
    k(f's_lshr_b32 s12, s{S_RT}, 1')
    k(f's_and_b32 s13, s{S_RT}, 1')
    k('s_lshl_b32 s14, s12, 2')
    k('s_add_u32 s42, s14, s13')
    k('s_sub_u32 s43, 3, s13')
    k('s_add_u32 s43, s43, s14')
    k(f's_add_u32 s56, s42, {L_H0 + dl}')
    k(f's_add_u32 s57, s43, {L_H0 + dl}')
    k(f's_mul_i32 s12, s{S_WAVE}, 28*1024')
    k('s_mul_i32 s22, s42, 112*1024'); k('s_add_u32 s22, s22, s12')
    k('s_mul_i32 s23, s43, 112*1024'); k('s_add_u32 s23, s23, s12')
    k(f's_mul_i32 s12, s{S_WAVE}, 26624')
    k(f's_add_u32 s12, s12, {WDL_BASE}')
    k(f'v_add_u32 v6, s12, v{V_L16}')
    if layer == 0: srd(k, 28, P_WS, OFF_WD + 112 * 1024, SZ_WD - 112 * 1024)
    def tok_write_one(tt, j):
        r = ST + 28 * (tt % 2) + 4 * j
        lds(f'ds_write_b128 v4, v[{r}:{r+3}] offset:{(tt%2)*28672 + j*1024}', ('w', tt, j))
    def tok_read(step):
        tt, ks = divmod(step, 28)
        r = TF + 4 * (step % NR)
        lds(f'ds_read_b128 v[{r}:{r+3}], v{V_L16} offset:{(tt%2)*28672 + ks*1024}', ('r', step))
    def epilogue(tt):
        g = ACC + 32 * (tt % 2); u = g + 16; T = TM
        out = [f's_add_u32 s41, s32, {tt}', 's_mul_i32 s41, s41, 112*1024', 's_add_u32 s41, s41, s40']
        for s in range(2):
            b = 8 * s
            for i in range(8): out.append(f'v_mul_f32 v{T+i}, 0xbfb8aa3b, v{g+b+i}')
            for i in range(8): out.append(f'v_exp_f32 v{T+i}, v{T+i}')
            for i in range(8): out.append(f'v_mul_f32 v{u+b+i}, v{g+b+i}, v{u+b+i}')
            for i in range(8): out.append(f'v_add_f32 v{T+i}, 1.0, v{T+i}')
            for i in range(8): out.append(f'v_rcp_f32 v{T+i}, v{T+i}')
            for i in range(8): out.append(f'v_mul_f32 v{u+b+i}, v{u+b+i}, v{T+i}')
            o = g + b
            for q in range(4): out.append(f'v_cvt_pk_bf16_f32 v{o+q}, v{u+b+2*q}, v{u+b+2*q+1}')
            out.append(f'buffer_store_dwordx4 v[{o}:{o+3}], v{V_L16}, s[24:27], s41 offen offset:{1024*s} sc1')
        return out
    k(vm.wait(('T', layer, 0, 6)))
    for j in range(7): tok_write_one(0, j)
    k(lg.wait(('w', 0, 6)))
    k('s_barrier')
    lmark(k, 'g1:tok0', layer)
    act = {st: [] for st in range(112)}
    pos = {}
    for j in range(7):
        act[j].append(lambda j=j: tok_load_one(1, j))
        act[21 + j].append(lambda j=j: tok_load_one(2, j))
        act[28 + j].append(lambda j=j: tok_load_one(3, j))
    def twrite(tt, j):
        if j == 0: k(vm.wait(('T', layer, tt, 6)))
        tok_write_one(tt, j)
    def lbar(tt):
        w = lg.wait(('w', tt, 6))
        if w: k(w)
        k('s_barrier')
    for j in range(7):
        act[11 + j].append(lambda j=j: twrite(1, j))
        act[36 + j].append(lambda j=j: twrite(2, j))
        act[64 + j].append(lambda j=j: twrite(3, j))
    act[19].append(lambda: lbar(1))
    act[35].append(lambda: k('s_barrier'))
    act[44].append(lambda: lbar(2))
    act[63].append(lambda: k('s_barrier'))
    def sig(tt, tl=None):
        if tl is not None:
            w = lg.wait(('w', tl, 6))
            if w: k(w)
        k(vm.wait(('H', layer, tt)))
        k('s_barrier')
        k(f's_add_u32 s62, s33, {tt}')
        signal(k, line_sreg=62)
    act[72].append(lambda: sig(0, 3))
    act[100].append(lambda: sig(1))
    act[12].append(lambda: pos.__setitem__('p0', poll_issue(k, 21, 2)))
    act[20].append(lambda: poll_check(k, pos['p0'], 4, 21, 2))
    act[103].append(lambda: pos.__setitem__('p3', poll_issue(k, 56)))
    act[111].append(lambda: poll_check(k, pos['p3'], 14, 56, barrier=False))
    if layer == 0:
        grp = g1_pf_groups(PD_, 28)
        for i, (ins, tag) in enumerate(grp):
            act[7 + i].append(lambda ins=ins, tag=tag: [emit_vm(k, x, tag) for x in ins])
        rsteps = [17, 18, 19, 20] + list(range(35, 44)) + list(range(51, 63)) + [70, 71, 79, 80, 81]
        if os.environ.get('REBAL'): rsteps = [17, 18, 19, 20] + list(range(35, 44)) + [51, 52, 53, 54, 55] + [90, 91, 92, 93, 94, 95, 96, 97, 104, 105, 106, 107]
        rl = [(ks, 0) for ks in range(28)] + [(26, 1), (27, 1)]
        for st, (ks, ct) in zip(rsteps, rl):
            act[st].append(lambda ks=ks, ct=ct: [emit_vm(k, x, ('D', ks, ct)) for x in wd_gload(ks, ct, wdr_loc(ks, ct))])
        groups = [(range(0, 7), 112, 44, 56), (range(7, 14), 112, 63, 78), (range(14, 21), 140, 72, 86), (range(21, 26), 112, 85, 98)]
        for (rng, reg0, ld0, wr0) in groups:
            for j, ks in enumerate(rng):
                r = reg0 + 4 * j
                act[ld0 + j].append(lambda ks=ks, r=r: [emit_vm(k, x, ('DL', ks)) for x in wd_gload(ks, 1, ('v', r))])
                def wrl(ks=ks, r=r):
                    k(vm.wait(('DL', ks)))
                    lds(f'ds_write_b128 v6, v[{r}:{r+3}] offset:{ks*1024}', ('wl', ks))
                act[wr0 + j].append(wrl)
    for st in range(PD): tok_read(st)
    for tt in range(4):
        g = ACC + 32 * (tt % 2); u = g + 16
        fill = epilogue(tt - 1) if tt > 0 else []
        nf = len(fill); fi = 0
        for ks in range(28):
            step = 28 * tt + ks
            if layer == 0 and tt == 0 and ks >= PB:
                k(vm.wait(('W', ks)))
            w = lg.wait(('r', step))
            if w: k(w)
            b = TF + 4 * (step % NR)
            cg = f'v[{g}:{g+15}]' if ks else '0'
            cu = f'v[{u}:{u+15}]' if ks else '0'
            k(f'v_mfma_f32_32x32x16_bf16 v[{g}:{g+15}], a[{8*ks}:{8*ks+3}], v[{b}:{b+3}], {cg}')
            if step + PD < 112: tok_read(step + PD)
            tgt = (nf * (2 * ks) + 49) // 50 if ks >= 1 else 0
            while fi < min(tgt, nf):
                emit_vm(k, fill[fi], ('H', layer, tt - 1)); fi += 1
            k(f'v_mfma_f32_32x32x16_bf16 v[{u}:{u+15}], a[{8*ks+4}:{8*ks+7}], v[{b}:{b+3}], {cu}')
            tgt = (nf * (2 * ks + 1) + 49) // 50 if ks >= 1 else 0
            while fi < min(tgt, nf):
                emit_vm(k, fill[fi], ('H', layer, tt - 1)); fi += 1
            for f in act[step]: f()
        while fi < nf:
            emit_vm(k, fill[fi], ('H', layer, tt - 1)); fi += 1
        lmark(k, f'g1:pass{tt}', layer)
    k('s_waitcnt lgkmcnt(0)')
    k('s_barrier')
    pf = [(hload_ins(0, ks), ('HL', layer, 0, ks)) for ks in range(14)]
    lines = [(x, ('H', layer, 3)) if x.startswith('buffer_') else x for x in epilogue(3)]
    if os.environ.get('EPI_SPRINKLE'):
        sprinkle(k, lines, pf, None, skip_head=4)
    else:
        sprinkle(k, lines, [], None)
        for grp, tag in pf:
            for ins in grp: emit_vm(k, ins, tag)
    lmark(k, 'g1:epi3', layer)

G2_SCR = 0
def ph_g2(k, layer):
    final = layer == 1
    ACC = 16; WR = 88; NWR = 4; WPD = 3
    lg = LG()
    def lds(ins, tag): k(ins); lg.add(tag)
    def hload(t, ks):
        for ins in hload_ins(t, ks): emit_vm(k, ins, ('HL', layer, t, ks))
    def wl_read(step):
        t, ks = divmod(step, 28)
        if step < 56 and ks < 26:
            r = WR + 4 * (step % NWR)
            lds(f'ds_read_b128 v[{r}:{r+3}], v6 offset:{ks*1024}', ('wr', step))
    def mm(t, ks):
        step = 28 * t + ks
        r = hreg(t, ks)
        a0 = ACC + 32 * t; a1 = a0 + 16
        c0 = f'v[{a0}:{a0+15}]' if ks else '0'
        c1 = f'v[{a1}:{a1+15}]' if ks else '0'
        w1 = rr(wdr_loc(ks, 1)) if ks >= 26 else f'v[{WR + 4*(step % NWR)}:{WR + 4*(step % NWR) + 3}]'
        m0 = f'v_mfma_f32_32x32x16_bf16 v[{a0}:{a0+15}], {rr(wdr_loc(ks, 0))}, v[{r}:{r+3}], {c0}'
        m1 = f'v_mfma_f32_32x32x16_bf16 v[{a1}:{a1+15}], {w1}, v[{r}:{r+3}], {c1}'
        return m0, m1
    def step_mm(t, ks, mid=None, post=None):
        step = 28 * t + ks
        k(vm.wait(('HL', layer, t, ks)))
        m0, m1 = mm(t, ks)
        k(m0)
        if mid: mid()
        w = lg.wait(('wr', step))
        if w: k(w)
        k(m1)
        wl_read(step + WPD)
        if post: post()
    SIG_J = int(os.environ.get('SIG_J', -1))
    def sig23():
        k(vm.wait(('H', layer, 3)))
        k('s_barrier')
        k('s_add_u32 s59, s33, 2')
        signal(k, line_sreg=59, n=2)
        lmark(k, 'g1 arrived', layer)
    if SIG_J < 0: sig23()
    for st in range(WPD): wl_read(st)
    srd(k, 16, P_WS, OFF_X1 if layer == 0 else OFF_X3, SZ_ACT)
    k(f'v_and_b32 v4, 31, v{V_LANE}')
    k(f'v_lshrrev_b32 v5, 5, v{V_LANE}')
    k(f's_and_b32 s13, s{S_WAVE}, 1')
    k(f's_lshr_b32 s12, s{S_WAVE}, 1')
    k(f's_lshl_b32 s14, s{S_CTP}, 12')
    k('s_lshl_b32 s15, s13, 11'); k('s_add_u32 s14, s14, s15')
    k('s_lshl_b32 s15, s12, 10'); k('s_add_u32 s14, s14, s15')
    k('v_lshlrev_b32 v7, 9, v5')
    k('v_lshl_add_u32 v7, v4, 4, v7')
    k('v_add_u32 v7, s14, v7')
    k('s_mul_i32 s34, s42, 28672'); k('s_mul_i32 s35, s43, 28672')
    k(f's_lshl_b32 s14, s{S_WAVE}, 11')
    k(f'v_add_u32 v8, s14, v{V_L16}')
    k(f's_lshl_b32 s14, s{S_WAVE}, 13')
    k(f'v_add_u32 v9, s14, v{V_L16}')
    if not final:
        srd(k, 36, P_WS, OFF_X2, SZ_ACT)
        k('v_mov_b32 v10, v7'); k('s_mov_b32 s40, s34'); k('s_mov_b32 s41, s35')
    else:
        srd(k, 36, P_OUT, 0, SZ_ACT)
        k(f's_lshl_b32 s14, s{S_CTP}, 7')
        k('s_lshl_b32 s13, s13, 6'); k('s_add_u32 s14, s14, s13')
        k('s_lshl_b32 s12, s12, 5'); k('s_add_u32 s14, s14, s12')
        k('v_mul_u32_u24 v10, 896, v4')
        k('v_lshl_add_u32 v10, v5, 4, v10')
        k('v_add_u32 v10, s14, v10')
        k('s_mul_i32 s40, s42, 32*896'); k('s_mul_i32 s41, s43, 32*896')
    for j in range(14):
        step_mm(0, j, post=lambda j=j: hload(0, 14 + j))
        if j == SIG_J: sig23()
    wait(k, 14, line_sreg=57)
    lmark(k, 'g2:B ready', layer)
    emit_vm(k, 'buffer_load_dwordx4 v[80:83], v7, s[16:19], s34 offen sc1', ('R', layer, 0))
    emit_vm(k, 'buffer_load_dwordx4 v[84:87], v7, s[16:19], s35 offen sc1', ('R', layer, 1))
    for j in range(14):
        step_mm(0, 14 + j, post=lambda j=j: hload(1, j))
    def xch_write(t):
        out = []
        for o in range(4):
            acc = ACC + 32 * t + 16 * (o & 1) + 8 * (o >> 1)
            for r in range(2):
                out.append(f'ds_write_b128 v8, v[{acc+4*r}:{acc+4*r+3}] offset:{G2_SCR + o*8192 + r*1024}')
        return out
    def xch_finish(t, R):
        out = []
        for sidx in range(4):
            for r in range(2):
                d = R + 8 * sidx + 4 * r
                out.append((f'ds_read_b128 v[{d}:{d+3}], v9 offset:{G2_SCR + sidx*2048 + r*1024}', ('xr', t, sidx, r)))
        out.append(('WAIT', ('xr', t, 1, 1)))
        for i in range(8): out.append(f'v_add_f32 v{R+i}, v{R+i}, v{R+8+i}')
        out.append(('WAIT', ('xr', t, 3, 1)))
        for i in range(8): out.append(f'v_add_f32 v{R+16+i}, v{R+16+i}, v{R+24+i}')
        for i in range(8): out.append(f'v_add_f32 v{R+i}, v{R+i}, v{R+16+i}')
        for j in range(4): out.append(f'v_permlane32_swap_b32 v{R+j}, v{R+4+j}')
        rs = 80 + 4 * t
        for i in range(4):
            out.append(f'v_lshlrev_b32 v{R+8}, 16, v{rs+i}')
            out.append(f'v_and_b32 v{R+9}, 0xffff0000, v{rs+i}')
            out.append(f'v_add_f32 v{R+2*i}, v{R+2*i}, v{R+8}')
            out.append(f'v_add_f32 v{R+2*i+1}, v{R+2*i+1}, v{R+9}')
        for i in range(4): out.append(f'v_cvt_pk_bf16_f32 v{R+12+i}, v{R+2*i}, v{R+2*i+1}')
        return out
    def emit_x(x):
        if isinstance(x, tuple):
            if x[0] == 'WAIT':
                w = lg.wait(x[1])
                if w: k(w)
            else: lds(x[0], x[1])
        else: k(x)
    wr = xch_write(0)
    fin = xch_finish(0, 16)
    nf = len(fin); st = {'fi': 0}
    def emit_fin(tgt):
        while st['fi'] < min(tgt, nf):
            emit_x(fin[st['fi']]); st['fi'] += 1
    for j in range(14):
        def mid(j=j):
            if 1 <= j <= 4: lds(wr[2 * (j - 1)], ('xw', 0, 2 * (j - 1)))
            if j >= 6: emit_fin((nf * (2 * (j - 6) + 1) + 15) // 16)
        def post(j=j):
            if 1 <= j <= 4: lds(wr[2 * (j - 1) + 1], ('xw', 0, 2 * (j - 1) + 1))
            if j >= 6: emit_fin((nf * (2 * (j - 6) + 2) + 15) // 16)
            if j == 5:
                w = lg.wait(('xw', 0, 7))
                if w: k(w)
                k('s_barrier')
            hload(1, 14 + j)
        step_mm(1, j, mid=mid, post=post)
    emit_fin(nf)
    OSC = '' if final else ' sc1'
    emit_vm(k, 'buffer_store_dwordx4 v[28:31], v10, s[36:39], s40 offen' + OSC, ('O', layer, 0))
    for j in range(14, 28):
        step_mm(1, j, post=(lambda: k('s_barrier')) if j == 20 else None)
    lmark(k, 'g2:main', layer)
    for i, x in enumerate(xch_write(1)): lds(x, ('xw', 1, i))
    if not final: k(vm.wait(('O', layer, 0)))
    k('s_waitcnt lgkmcnt(0)'); lg.l = []
    k('s_barrier')
    if not final:
        k(f's_add_u32 s59, s42, {L_X2}')
        signal(k, line_sreg=59)
    for x in xch_finish(1, 48): emit_x(x)
    emit_vm(k, 'buffer_store_dwordx4 v[60:63], v10, s[36:39], s41 offen' + OSC, ('O', layer, 1))

def build():
    MARKS.clear(); LOOPMARKS.clear(); vm.l.clear(); _lab[0] = 0
    k = Kern(KNAME, vgprs=256, agprs=256, sgprs=102)
    ph_init(k)
    ph_p0(k)
    Lc = label('noconv')
    Lw = label('s0skip')
    k('s_cmp_ge_u32 s2, 224')
    k(f's_cbranch_scc1 {Lw}')
    k('s_waitcnt vmcnt(0)')
    init_check(k)
    k('s_barrier')
    signal(k, line_sreg=62)
    ticket_issue(k)
    mark(k, 'S0 arrived')
    ph_p0_wdma(k)
    ph_conv_prep(k)
    mark(k, 'conv prep done')
    wait(k, 32, line_sreg=62)
    mark(k, 'S0 passed')
    ph_conv(k)
    k(f's_branch {Lc}')
    k(f'{Lw}:')
    ph_p0_wdma(k)
    ph_p0_wfinish(k)
    wait_init(k)
    k('s_waitcnt vmcnt(0)')
    k('s_barrier')
    gsignal(k, L_W)
    ticket_issue(k)
    k(f'{Lc}:')
    mark(k, 'conv done')
    k('s_waitcnt vmcnt(0)')
    ticket_resolve(k)
    k('s_waitcnt lgkmcnt(0)')
    k('s_barrier')
    gsignal(k, L_S1)
    role_compute(k)
    mark(k, 'S1 arrived')
    ph_ln1_pre(k)
    gwait(k, L_W)
    g1_wprefetch(k, 0, P0A)
    mark(k, 'ln1 pre done')
    gwait(k, L_S1)
    mark(k, 'S1 passed')
    w = ph_ln1(k)
    k('s_lshr_b32 s59, s2, 2')
    k(f's_add_u32 s59, s59, {L_XN0}')
    arrive(k, line_sreg=59, vmwait=w)
    mark(k, 'ln1 arrived')
    Lend2 = label('fin')
    for layer in range(2):
        Lskip = label('gskip')
        k(f's_cmp_ge_u32 s{S_I}, 28')
        k(f's_cbranch_scc1 {Lskip}')
        if layer == 0: g1_wprefetch(k, PB, PD_)
        k(f's_lshl_b32 s59, s{S_RB}, 2')
        k(f's_add_u32 s59, s59, {L_XN0 + L_DELTA * layer}')
        wait(k, 4, line_sreg=59, nlines=2)
        lmark(k, 'S(ln->g1) passed', layer)
        ph_g1(k, layer)
        ph_g2(k, layer)
        if layer == 0:
            k(f's_add_u32 s59, s43, {L_X2}')
            arrive(k, line_sreg=59, vmwait=vm.wait(('O', layer, 1)))
            mark(k, 'S4 arrived')
        k(f'{Lskip}:')
        if layer == 0:
            ph_ln2_pre(k)
            k('s_lshr_b32 s59, s2, 2')
            k(f's_add_u32 s59, s59, {L_X2}')
            wait(k, 7, line_sreg=59)
            mark(k, 'S4 passed')
            w = ph_ln2(k)
            k('s_lshr_b32 s59, s2, 2')
            k(f's_add_u32 s59, s59, {L_XN1}')
            arrive(k, line_sreg=59, vmwait=w)
            mark(k, 'ln2 arrived')
    if PROF:
        k('s_waitcnt vmcnt(0)')
        mark(k, 'end')
        k('s_memrealtime s[96:97]')
        k('s_waitcnt lgkmcnt(0)')
        k(f'v_writelane_b32 v{VPROF}, s96, 63')
        srd(k, 56, P_WS, OFF_PROF, 0x100000)
        k('s_lshl_b32 s60, s2, 2')
        k(f's_add_u32 s60, s60, s{S_WAVE}')
        k('s_lshl_b32 s60, s60, 8')
        k(f'v_lshlrev_b32 v4, 2, v{V_LANE}')
        k(f'buffer_store_dword v{VPROF}, v4, s[56:59], s60 offen')
    k('L_end:')
    k('s_endpgm')
    hdr = open('interleave_layers__ssm_conv_h3__swiglu_ffn__prompt.s.ref').read().split('; Override launch')[0]
    out = [hdr.rstrip('\n')]
    out.append(f'; @launch grid=({NWG},1,1) block=(256,1,1) lds={LDS_BYTES}')
    out.append('.amdgcn_target "amdgcn-amd-amdhsa--gfx950"')
    out.append('.text')
    out.append(k.emit())
    out.append('.section .rodata,"a"')
    out.append('.p2align 6')
    out.append(k.desc())
    return '\n'.join(out) + '\n'

if __name__ == '__main__':
    if '--prof' in sys.argv: PROF = True
    txt = build()
    dst = sys.argv[1]
    open(dst, 'w').write(txt)
    if PROF:
        import json
        assert len(MARKS) <= 62
        json.dump(MARKS, open(dst + '.marks', 'w'))
    print('wrote', dst, len(txt), 'bytes', len(MARKS), 'marks')
```

```python
import sys
from asmlib import *

S = 2048; D = 448; F = 1792
SZ_ACT = 2048 * 448 * 2
OFF_XR = 0x0;       SZ_XR = 448 * 4096
OFF_YT = 0x200000
OFF_YF = 0x400000
OFF_X1 = 0x600000
OFF_XN1 = 0x800000
OFF_X2 = 0xA00000
OFF_X3 = 0xC00000
OFF_XN2 = 0xE00000
OFF_WGU = 0x1000000; SZ_WGU = 56 * 28 * 2 * 1024
OFF_WD = 0x1400000;  SZ_WD = 14 * 112 * 1024
OFF_H1 = 0x1600000;  SZ_H = 64 * 112 * 1024
OFF_H2 = 0x1E00000
OFF_SYNC = 0x2600000; SZ_SYNC = 512 * 128
OFF_PROF = 0x2800000
KNAME = 'interleave_layers__ssm_conv_h3__swiglu_ffn__prompt_kernel'
NWG = 256
LDS_BYTES = 160 * 1024
PROF = False
YB16 = True
SPIN_MAX = 400000
L_S0 = 0
L_W, L_S1 = 352, 416
N_LINES = 480
L_TK, L_OV = 24, 7
L_XN0, L_H0, L_X2, L_XN1, L_H1 = 32, 96, 160, 224, 288
L_DELTA = L_XN1 - L_XN0
assert L_H1 - L_H0 == L_DELTA

P_Q, P_K, P_V, P_SH, P_SSK, P_SSD, P_BX, P_WG = 64, 66, 68, 70, 72, 74, 76, 78
P_WU, P_WD, P_OUT, P_DBG, P_WS = 80, 82, 84, 86, 88
SR_SYNC = 92
S_WAVE = 3
S_XCD, S_I = 90, 91
S_XD = 98
ROLE_LDS = 163832
S_CH, S_PAR, S_CHB = 50, 51, 52
S_RB, S_FS, S_RT, S_CTP, S_LNRB = 53, 54, 55, 49, 63
SR_WGU = 4
SR_WD = 8
S_WOFF = 47
S_DOFF = 46
S_LAYER = 58
S_R1_UNUSED = 0
VPROF = 255
V_LANE = 2
V_L16 = 3

import os
PF_A = int(os.environ.get('PF_A', 10)); PF_B = int(os.environ.get('PF_B', 18)); PF_A2 = int(os.environ.get('PF_A2', 10))
PF_A1 = PF_A
P0A = int(os.environ.get('P0A', 8)); P0B = int(os.environ.get('P0B', 11)); P1A = int(os.environ.get('P1A', 5)); P1B = int(os.environ.get('P1B', 8))
PB = int(os.environ.get('PB', 16)); PC = int(os.environ.get('PC', 19)); PD_ = int(os.environ.get('PD_', 24))
PF_XX = 0,0

class VM:
    def __init__(self): self.l = []
    def add(self, tag): self.l.append(tag)
    def wait(self, tag):
        idx = len(self.l) - 1 - self.l[::-1].index(tag)
        return f's_waitcnt vmcnt({min(len(self.l) - 1 - idx, 63)})'
vm = VM()

class LG:
    def __init__(self): self.l = []
    def add(self, tag): self.l.append(tag)
    def wait(self, tag):
        if tag not in self.l: return None
        idx = len(self.l) - 1 - self.l[::-1].index(tag)
        n = min(len(self.l) - 1 - idx, 15)
        self.l = self.l[len(self.l) - n:] if n else []
        return f's_waitcnt lgkmcnt({n})'

def srd(k, d, p, off, size):
    if off:
        k(f's_add_u32 s{d}, s{p}, {off:#x}')
        k(f's_addc_u32 s{d+1}, s{p+1}, 0')
    else:
        k(f's_mov_b32 s{d}, s{p}')
        k(f's_mov_b32 s{d+1}, s{p+1}')
    k(f's_mov_b32 s{d+2}, {size:#x}')
    k(f's_mov_b32 s{d+3}, 0x20000')

def srd_soff(k, d, p, off, soff, size):
    k(f's_add_u32 s{d}, s{p}, {off:#x}')
    k(f's_addc_u32 s{d+1}, s{p+1}, 0')
    k(f's_add_u32 s{d}, s{d}, s{soff}')
    k(f's_addc_u32 s{d+1}, s{d+1}, 0')
    k(f's_mov_b32 s{d+2}, {size:#x}')
    k(f's_mov_b32 s{d+3}, 0x20000')

def udiv(k, dst, src, d):
    m = (2**32 + d - 1) // d
    k(f's_mul_hi_u32 s{dst}, s{src}, {m:#x}')

MARKS = []
def mark(k, name):
    if not PROF: return
    i = len(MARKS); MARKS.append(name)
    k('s_memrealtime s[96:97]')
    k('s_waitcnt lgkmcnt(0)')
    k(f'v_writelane_b32 v{VPROF}, s96, {i}')

LOOPMARKS = []
def lmark(k, name):
    if not PROF: return
    i = len(LOOPMARKS); LOOPMARKS.append(name)
    assert i < 16
    k('s_memrealtime s[96:97]')
    k(f's_lshl_b32 s97, s{S_LAYER}, 4') if False else None
    k('s_waitcnt lgkmcnt(0)')
    k(f's_lshl_b32 s97, s{S_LAYER}, 4')
    k(f's_add_u32 m0, s97, {24 + i}')
    k('s_nop 0')
    k(f'v_writelane_b32 v{VPROF}, s96, m0')

_lab = [0]
def label(p):
    _lab[0] += 1
    return f'L_{p}_{_lab[0]}'

def signal(k, line_sreg=None, line=None, n=1):
    L = label('sig')
    k(f's_cmp_lg_u32 s{S_WAVE}, 0')
    k(f's_cbranch_scc1 {L}')
    k(f'v_lshlrev_b32 v250, 7, v{V_LANE}')
    if line_sreg is not None:
        k(f's_lshl_b32 s60, s{line_sreg}, 7')
        k('v_add_u32 v250, s60, v250')
    else:
        k(f'v_add_u32 v250, {line*128}, v250')
    k('v_mov_b32 v251, 1')
    k(f's_mov_b64 exec, {(1 << n) - 1}')
    k(f'buffer_atomic_add v251, v250, s[{SR_SYNC}:{SR_SYNC+3}], 0 offen sc1')
    k('s_mov_b64 exec, -1')
    k(f'{L}:')

def arrive(k, line_sreg=None, line=None, vmwait='s_waitcnt vmcnt(0)', n=1):
    k(vmwait)
    k('s_waitcnt lgkmcnt(0)')
    k('s_barrier')
    signal(k, line_sreg, line, n)

def wait(k, target, line_sreg=None, line=None, nlines=1, barrier=True):
    L = label('wt'); Lp = label('pl'); Ld = label('pd')
    k(f's_cmp_lg_u32 s{S_WAVE}, 0')
    k(f's_cbranch_scc1 {L}')
    k(f'v_lshlrev_b32 v250, 7, v{V_LANE}')
    if line_sreg is not None:
        k(f's_lshl_b32 s60, s{line_sreg}, 7')
        k('v_add_u32 v250, s60, v250')
    else:
        k(f'v_add_u32 v250, {line*128}, v250')
    k(f's_mov_b64 exec, {(1 << nlines) - 1}')
    k('s_mov_b32 s61, 0')
    k(f'{Lp}:')
    SL = int(os.environ.get('SLEEP', 6))
    k(f'buffer_load_dword v251, v250, s[{SR_SYNC}:{SR_SYNC+3}], 0 offen sc1')
    k('s_add_u32 s61, s61, 1')
    k('s_waitcnt vmcnt(0)')
    k(f'v_cmp_le_u32 vcc, {target}, v251')
    k('s_cmp_eq_u64 vcc, exec')
    k(f's_cbranch_scc1 {Ld}')
    if SL: k(f's_sleep {SL}')
    k(f's_cmp_lt_u32 s61, {SPIN_MAX}')
    k(f's_cbranch_scc1 {Lp}')
    k(f'{Ld}:')
    k('s_mov_b64 exec, -1')
    k(f'{L}:')
    if barrier: k('s_barrier')

def init_issue(k):
    L = label('ii')
    k(f's_cmp_lg_u32 s{S_WAVE}, 0')
    k(f's_cbranch_scc1 {L}')
    srd(k, 56, P_DBG, 0, 256)
    k('v_mov_b32 v248, 0')
    k('buffer_load_dword v249, v248, s[56:59], 0 offen sc1')
    k(f'{L}:')

def init_check(k):
    L = label('ic'); Lp = label('icp')
    k(f's_cmp_lg_u32 s{S_WAVE}, 0')
    k(f's_cbranch_scc1 {L}')
    k('v_readfirstlane_b32 s61, v249')
    k('s_cmp_lg_u32 s61, 0')
    k(f's_cbranch_scc1 {L}')
    wait_init(k)
    k(f'{L}:')

def gsignal(k, base):
    L = label('gs')
    k(f's_cmp_lg_u32 s{S_WAVE}, 0')
    k(f's_cbranch_scc1 {L}')
    k(f'v_lshlrev_b32 v250, 10, v{V_LANE}')
    k(f's_add_u32 s60, s{S_XCD}, {base}')
    k('s_lshl_b32 s60, s60, 7')
    k('v_add_u32 v250, s60, v250')
    k('v_mov_b32 v251, 1')
    k('s_mov_b64 exec, 0xff')
    k(f'buffer_atomic_add v251, v250, s[{SR_SYNC}:{SR_SYNC+3}], 0 offen sc1')
    k('s_mov_b64 exec, -1')
    k(f'{L}:')

def gwait(k, base):
    k(f's_lshl_b32 s59, s{S_XCD}, 3')
    k(f's_add_u32 s59, s59, {base}')
    wait(k, 32, line_sreg=59, nlines=8)

def poll_issue(k, line_sreg, nlines=1):
    L = label('pi')
    k(f's_cmp_lg_u32 s{S_WAVE}, 0')
    k(f's_cbranch_scc1 {L}')
    k(f'v_lshlrev_b32 v252, 7, v{V_LANE}')
    k(f's_lshl_b32 s60, s{line_sreg}, 7')
    k('v_add_u32 v252, s60, v252')
    k(f's_mov_b64 exec, {(1 << nlines) - 1}')
    k(f'buffer_load_dword v253, v252, s[{SR_SYNC}:{SR_SYNC+3}], 0 offen sc1')
    k('s_mov_b64 exec, -1')
    k(f'{L}:')
    return len(vm.l)

def poll_check(k, pos, target, line_sreg, nlines=1, barrier=True):
    L = label('pc')
    k(f's_cmp_lg_u32 s{S_WAVE}, 0')
    k(f's_cbranch_scc1 {L}')
    k(f's_waitcnt vmcnt({min(63, len(vm.l) - pos)})')
    k(f's_mov_b64 exec, {(1 << nlines) - 1}')
    k(f'v_cmp_le_u32 vcc, {target}, v253')
    k('s_cmp_eq_u64 vcc, exec')
    k('s_mov_b64 exec, -1')
    k(f's_cbranch_scc1 {L}')
    wait(k, target, line_sreg=line_sreg, nlines=nlines, barrier=False)
    k(f'{L}:')
    if barrier: k('s_barrier')

def wait_init(k):
    L = label('wi'); Lp = label('wip'); Ld = label('wid')
    k(f's_cmp_lg_u32 s{S_WAVE}, 0')
    k(f's_cbranch_scc1 {L}')
    srd(k, 56, P_DBG, 0, 256)
    k('v_mov_b32 v250, 0')
    k('s_mov_b64 exec, 1')
    k('s_mov_b32 s61, 0')
    k(f'{Lp}:')
    k('buffer_load_dword v251, v250, s[56:59], 0 offen sc1')
    k('s_add_u32 s61, s61, 1')
    k('s_waitcnt vmcnt(0)')
    k('v_cmp_ne_u32 vcc, 0, v251')
    k(f's_cmp_ge_u32 s61, {SPIN_MAX}')
    k(f's_cbranch_scc1 {Ld}')
    k('s_cmp_eq_u64 vcc, exec')
    k(f's_cbranch_scc0 {Lp}')
    k(f'{Ld}:')
    k('s_mov_b64 exec, -1')
    k(f'{L}:')

def tlb_warm(k):
    Lt = label('tlb')
    k(f's_cmp_lg_u32 s{S_WAVE}, 1')
    k(f's_cbranch_scc1 {Lt}')
    srd(k, 16, P_WS, 0, 0x2800000)
    srd(k, 20, P_OUT, 0, SZ_ACT)
    k(f'v_lshlrev_b32 v4, 21, v{V_LANE}')
    k('v_add_u32 v4, 0x1fff80, v4')
    k('v_mov_b32 v5, 0')
    k('s_mov_b64 exec, 0xfffff')
    k('buffer_load_dword v246, v4, s[16:19], 0 offen sc1')
    k('s_mov_b64 exec, 1')
    k('buffer_load_dword v247, v5, s[20:23], 0 offen sc1')
    k('s_mov_b64 exec, -1')
    k(f'{Lt}:')

def ph_init(k):
    k(f's_cmp_ge_u32 s2, {NWG}')
    k('s_cbranch_scc1 L_end')
    k('s_load_dwordx16 s[64:79], s[0:1], 0')
    k('s_load_dwordx8 s[80:87], s[0:1], 64')
    k('s_load_dwordx2 s[88:89], s[0:1], 96')
    k('v_lshrrev_b32 v1, 6, v0')
    k(f'v_and_b32 v{V_LANE}, 63, v0')
    k(f'v_readfirstlane_b32 s{S_WAVE}, v1')
    k(f'v_lshlrev_b32 v{V_L16}, 4, v{V_LANE}')
    k(f's_and_b32 s{S_XCD}, s2, 7')
    k(f's_lshr_b32 s{S_LNRB}, s2, 4')
    if PROF: k(f'v_mov_b32 v{VPROF}, 0')
    k('s_waitcnt lgkmcnt(0)')
    srd(k, SR_SYNC, P_WS, OFF_SYNC, SZ_SYNC)
    srd(k, SR_WGU, P_WS, OFF_WGU, SZ_WGU)
    srd(k, SR_WD, P_WS, OFF_WD, SZ_WD)
    mark(k, 'start')
    if PROF:
        k('s_memrealtime s[96:97]')
        k('s_waitcnt lgkmcnt(0)')
        k(f'v_writelane_b32 v{VPROF}, s96, 62')
    L = label('ini')
    k('s_cmp_lg_u32 s2, 255')
    k(f's_cbranch_scc1 {L}')
    for i in range(4): k(f'v_mov_b32 v{8+i}, 0')
    k(f's_mul_i32 s12, s{S_WAVE}, {N_LINES * 128 // 4}')
    for i in range(N_LINES * 128 // 4 // 1024):
        k(f'buffer_store_dwordx4 v[8:11], v{V_L16}, s[{SR_SYNC}:{SR_SYNC+3}], s12 offen sc1')
        k('s_add_u32 s12, s12, 1024')
    srd(k, 56, P_DBG, 0, 256)
    k('s_waitcnt vmcnt(0)')
    k('s_barrier')
    k(f's_cmp_lg_u32 s{S_WAVE}, 3')
    k(f's_cbranch_scc1 {L}')
    k('v_mov_b32 v4, 0')
    k('v_mov_b32 v5, 1')
    k('s_mov_b64 exec, 1')
    k('buffer_store_dword v5, v4, s[56:59], 0 offen sc1')
    k('s_mov_b64 exec, -1')
    k(f'{L}:')

def ticket_issue(k):
    L = label('tk')
    k(f's_cmp_lg_u32 s{S_WAVE}, 3')
    k(f's_cbranch_scc1 {L}')
    k(f's_getreg_b32 s{S_XD}, hwreg(HW_REG_XCC_ID, 0, 4)')
    k(f's_and_b32 s{S_XD}, s{S_XD}, 7')
    k(f's_add_u32 s12, s{S_XD}, {L_TK}')
    k('s_lshl_b32 s12, s12, 7')
    k('v_mov_b32 v244, s12')
    k('v_mov_b32 v245, 1')
    k('s_mov_b64 exec, 1')
    k(f'buffer_atomic_add v245, v244, s[{SR_SYNC}:{SR_SYNC+3}], 0 offen sc0 sc1')
    k('s_mov_b64 exec, -1')
    k(f'{L}:')

def ticket_resolve(k):
    L = label('tr'); Lok = label('trok'); Lp = label('trp'); Lw = label('trw'); Ln = label('trn'); Lt = label('trt')
    k(f's_cmp_lg_u32 s{S_WAVE}, 3')
    k(f's_cbranch_scc1 {L}')
    k('v_readfirstlane_b32 s12, v245')
    k('s_cmp_lt_u32 s12, 32')
    k(f's_cbranch_scc1 {Lok}')
    k(f'v_lshlrev_b32 v244, 7, v{V_LANE}')
    k(f'v_add_u32 v244, {L_TK*128}, v244')
    k('s_mov_b32 s15, 0')
    k(f'{Lp}:')
    k('s_mov_b64 exec, 0xff')
    k(f'buffer_load_dword v243, v244, s[{SR_SYNC}:{SR_SYNC+3}], 0 offen sc1')
    k('s_waitcnt vmcnt(0)')
    k('s_mov_b64 exec, -1')
    k('s_mov_b32 s13, 0')
    for x in range(8):
        k(f'v_readlane_b32 s14, v243, {x}')
        k('s_add_u32 s13, s13, s14')
    k('s_add_u32 s15, s15, 1')
    k(f's_cmp_ge_u32 s15, {SPIN_MAX}')
    k(f's_cbranch_scc1 {Lt}')
    k(f's_cmp_lt_u32 s13, {NWG}')
    k(f's_cbranch_scc1 {Lp}')
    k(f'{Lt}:')
    k(f'v_mov_b32 v244, {L_OV*128}')
    k('v_mov_b32 v245, 1')
    k('s_mov_b64 exec, 1')
    k(f'buffer_atomic_add v245, v244, s[{SR_SYNC}:{SR_SYNC+3}], 0 offen sc0 sc1')
    k('s_waitcnt vmcnt(0)')
    k('s_mov_b64 exec, -1')
    k('v_readfirstlane_b32 s13, v245')
    k(f's_mov_b32 s{S_XD}, 0')
    k('s_mov_b32 s12, 31')
    for x in range(8):
        Lx = label('trx')
        k(f'v_readlane_b32 s14, v243, {x}')
        k('s_min_u32 s14, s14, 32')
        k('s_sub_u32 s15, 32, s14')
        k('s_cmp_lt_u32 s13, s15')
        k(f's_cbranch_scc0 {Lx}')
        k(f's_mov_b32 s{S_XD}, {x}')
        k('s_add_u32 s12, s14, s13')
        k(f's_branch {Lok}')
        k(f'{Lx}:')
        k('s_sub_u32 s13, s13, s15')
    k(f'{Lok}:')
    k(f's_lshl_b32 s13, s{S_XD}, 5')
    k('s_add_u32 s13, s13, s12')
    k('v_mov_b32 v244, s13')
    k(f'v_mov_b32 v243, {ROLE_LDS}')
    k('ds_write_b32 v243, v244')
    k(f'{L}:')

def role_compute(k):
    k(f'v_mov_b32 v243, {ROLE_LDS}')
    k('ds_read_b32 v244, v243')
    k('s_waitcnt lgkmcnt(0)')
    k('v_readfirstlane_b32 s12, v244')
    k(f's_lshr_b32 s{S_XD}, s12, 5')
    k(f's_and_b32 s{S_I}, s12, 31')
    udiv(k, 15, S_I, 7)
    k('s_mul_i32 s28, s15, 7')
    k(f's_sub_u32 s{S_CTP}, s{S_I}, s28')
    k(f's_lshr_b32 s29, s{S_XD}, 1')
    k('s_lshl_b32 s29, s29, 2')
    k(f's_add_u32 s{S_RB}, s29, s15')
    k(f's_and_b32 s30, s{S_XD}, 1')
    k('s_mul_i32 s30, s30, 7')
    k(f's_add_u32 s{S_FS}, s30, s{S_CTP}')
    k(f's_lshl_b32 s29, s{S_XD}, 2')
    k(f's_add_u32 s{S_RT}, s29, s15')
    k(f's_lshl_b32 s31, s{S_FS}, 2')
    k(f's_add_u32 s31, s31, s{S_WAVE}')
    k(f's_mul_i32 s{S_WOFF}, s31, 57344')
    k(f's_mul_i32 s{S_DOFF}, s{S_CTP}, 224*1024')
    k(f's_mul_i32 s31, s{S_WAVE}, 28*1024')
    k(f's_add_u32 s{S_DOFF}, s{S_DOFF}, s31')


CH_STRIDE = 37888
XRL_OFF = 33280
CONV_SCR = 2 * CH_STRIDE
YB_SCR = 92160
WST_OFF = 100352

def p0_weight_dma(k, rnd):
    fl = 34 + rnd; ds = 40 + rnd
    if rnd < 3:
        if rnd: k(f's_add_u32 s12, s48, {1024*rnd}')
        else: k('s_mov_b32 s12, s48')
        kind = 'gu'
    elif rnd == 3:
        k('s_mov_b32 s12, s48'); kind = 'wd'
    Lskip = None
    if rnd == 4:
        Lgu = label('w4g'); Lskip = label('w4s'); Ldone = label('w4d')
        k(f's_mov_b32 s{fl}, 2')
        k('s_cmp_ge_u32 s48, 608')
        k(f's_cbranch_scc1 {Lskip}')
        k('s_cmp_ge_u32 s48, 544')
        k(f's_cbranch_scc1 {Lgu}')
        k('s_add_u32 s12, s48, 1024')
        _w_dma(k, 'wd', rnd, fl, ds)
        k(f's_branch {Ldone}')
        k(f'{Lgu}:')
        k('s_add_u32 s12, s48, 3072-544')
        _w_dma(k, 'gu', rnd, fl, ds)
        k(f's_branch {Ldone}')
        k(f'{Lskip}:')
        k(f's_mul_i32 s13, s{S_WAVE}, 5120')
        k(f's_add_u32 s13, s13, {WST_OFF + 1024*rnd}')
        k('s_mov_b32 m0, s13')
        srd(k, 16, P_WD, 0, 0)
        k('buffer_load_dwordx4 v61, s[16:19], 0 offen lds')
        k(f's_mov_b32 s{ds}, 0x7ff00000')
        k(f'{Ldone}:')
    else:
        _w_dma(k, kind, rnd, fl, ds)

def _w_dma(k, kind, rnd, fl, ds):
    k(f's_mul_i32 s13, s{S_WAVE}, 5120')
    k(f's_add_u32 s13, s13, {WST_OFF + 1024*rnd}')
    k('s_mov_b32 m0, s13')
    if kind == 'gu':
        udiv(k, 14, 12, 56)
        k('s_mul_i32 s15, s14, 56')
        k('s_sub_u32 s15, s12, s15')
        k('s_lshr_b32 s28, s15, 1')
        k('s_mul_i32 s28, s28, 16*3584')
        k('s_lshl_b32 s29, s14, 6')
        k('s_add_u32 s28, s28, s29')
        k('s_and_b32 s15, s15, 1')
        k('s_cmp_eq_u32 s15, 0')
        k(f's_cselect_b32 s16, s{P_WG}, s{P_WU}')
        k(f's_cselect_b32 s17, s{P_WG+1}, s{P_WU+1}')
        k(f's_mov_b32 s18, {448*1792*2:#x}')
        k('s_mov_b32 s19, 0x20000')
        k('buffer_load_dwordx4 v60, s[16:19], s28 offen lds')
        k(f's_lshl_b32 s{ds}, s12, 10')
        k(f's_mov_b32 s{fl}, 0')
    else:
        udiv(k, 14, 12, 112)
        k('s_mul_i32 s15, s14, 112')
        k('s_sub_u32 s15, s12, s15')
        k('s_mul_i32 s28, s15, 16*896')
        k('s_lshl_b32 s29, s14, 6')
        k('s_add_u32 s28, s28, s29')
        srd(k, 16, P_WD, 0, 1792 * 448 * 2)
        k('buffer_load_dwordx4 v61, s[16:19], s28 offen lds')
        k(f's_lshl_b32 s{ds}, s12, 10')
        k(f's_mov_b32 s{fl}, 1')

def ph_p0(k):
    k('s_lshl_b32 s48, s2, 2')
    k(f's_add_u32 s48, s48, s{S_WAVE}')
    Lnokv = label('nokv')
    ln_addr(k)
    srd(k, 28, P_Q, 0, SZ_ACT)
    k('s_mul_i32 s15, s2, 8*896')
    k('v_mul_u32_u24 v9, 896, v33')
    k('v_lshl_add_u32 v9, v5, 4, v9')
    k('v_add_u32 v9, s15, v9')
    k('v_add_u32 v10, 128, v9')
    k('v_cndmask_b32 v10, v8, v10, s[38:39]')
    k('s_cmp_ge_u32 s2, 224')
    k(f's_cbranch_scc1 {Lnokv}')
    udiv(k, 12, 2, 7)
    k('s_mul_i32 s13, s12, 7')
    k('s_sub_u32 s13, s2, s13')
    k('s_mov_b32 s62, s13')
    k(f'v_and_b32 v40, 7, v{V_LANE}')
    k(f'v_lshrrev_b32 v1, 3, v{V_LANE}')
    k(f's_lshl_b32 s14, s{S_WAVE}, 5')
    k('s_lshl_b32 s15, s13, 7')
    k('s_add_u32 s14, s14, s15')
    k('v_lshl_add_u32 v41, v1, 2, s14')
    k('s_mul_i32 s15, s12, 64*896')
    k('v_mul_u32_u24 v42, 8*896, v40')
    k('v_add3_u32 v42, v42, v41, s15')
    k('v_add_u32 v43, 5*896, v42')
    k('v_subrev_u32 v44, 3*896, v42')
    k('v_lshlrev_b32 v45, 2, v41')
    srd(k, 16, P_K, 0, SZ_ACT); srd(k, 20, P_V, 0, SZ_ACT); srd(k, 24, P_SH, 0, 448 * 8)
    K0 = 16; V0 = 48
    for j in range(3): k(f'buffer_load_dword v{K0+j}, v44, s[16:19], 0 offen offset:{896*j}')
    for j in range(5): k(f'buffer_load_dword v{K0+3+j}, v42, s[16:19], 0 offen offset:{896*j}')
    for j in range(3): k(f'buffer_load_dword v{K0+8+j}, v43, s[16:19], 0 offen offset:{896*j}')
    for j in range(5): k(f'buffer_load_dword v{V0+j}, v42, s[20:23], 0 offen offset:{896*j}')
    for j in range(3): k(f'buffer_load_dword v{V0+5+j}, v43, s[20:23], 0 offen offset:{896*j}')
    k('buffer_load_dwordx4 v[36:39], v45, s[24:27], 0 offen')
    k('s_lshl_b32 s13, s13, 6')
    k('s_lshl_b32 s14, s12, 1')
    k('s_add_u32 s13, s13, s14')
    k(f's_lshr_b32 s14, s{S_WAVE}, 1')
    k(f's_and_b32 s{S_PAR}, s{S_WAVE}, 1')
    k(f's_add_u32 s{S_CH}, s13, s14')
    k(f's_mul_i32 s{S_CHB}, s14, {CH_STRIDE}')
    k(f's_lshl_b32 s16, s{S_CH}, 12')
    srd_soff(k, 20, P_SSK, 0, 16, 4096)
    k(f's_lshl_b32 s17, s{S_PAR}, 11')
    k(f'v_add_u32 v92, s17, v{V_L16}')
    k('v_subrev_u32 v93, 16, v92')
    for r in range(2):
        k(f'buffer_load_dwordx4 v[{96+8*r}:{99+8*r}], v93, s[20:23], 0 offen offset:{1024*r}')
        k(f'buffer_load_dwordx4 v[{100+8*r}:{103+8*r}], v92, s[20:23], 0 offen offset:{1024*r}')
    k('buffer_load_dwordx4 v[232:235], v9, s[28:31], 0 offen')
    k('buffer_load_dwordx4 v[236:239], v10, s[28:31], 0 offen')
    k('v_lshlrev_b32 v46, 11, v41')
    k('s_lshl_b32 s32, s12, 7')
    k('v_lshlrev_b32 v47, 4, v40')
    k('v_add_u32 v47, s32, v47')
    k('v_sub_u32 v47, 4080, v47')
    k('v_add_u32 v47, v46, v47')
    srd(k, 28, P_WS, OFF_XR, SZ_XR)
    k('s_movk_i32 s33, 4096')
    mark(k, 'p0 issued')
    k('s_waitcnt vmcnt(6)')
    SK = 56
    for c in range(2):
        k(f'v_lshlrev_b32 v{SK+4*c+0}, 16, v{36+2*c}')
        k(f'v_and_b32 v{SK+4*c+1}, 0xffff0000, v{36+2*c}')
        k(f'v_lshlrev_b32 v{SK+4*c+2}, 16, v{37+2*c}')
        k(f'v_and_b32 v{SK+4*c+3}, 0xffff0000, v{37+2*c}')
    KF = 64
    for c in range(2):
        for j in range(11):
            if c == 0: k(f'v_lshlrev_b32 v{KF+j}, 16, v{K0+j}')
            else: k(f'v_and_b32 v{KF+j}, 0xffff0000, v{K0+j}')
        for t in range(8):
            if c == 0: k(f'v_lshlrev_b32 v{112+t}, 16, v{V0+t}')
            else: k(f'v_and_b32 v{112+t}, 0xffff0000, v{V0+t}')
        for t in range(8): k(f'v_mul_f32 v{76+t}, v{SK+4*c+3}, v{KF+t}')
        for t in range(8): k(f'v_fmac_f32 v{76+t}, v{SK+4*c+2}, v{KF+t+1}')
        for t in range(8): k(f'v_fmac_f32 v{76+t}, v{SK+4*c+1}, v{KF+t+2}')
        for t in range(8): k(f'v_fmac_f32 v{76+t}, v{SK+4*c+0}, v{KF+t+3}')
        for t in range(8): k(f'v_mul_f32 v{76+t}, v{76+t}, v{112+t}')
        o = 84 + 4 * c
        for i in range(4):
            k(f'v_cvt_pk_bf16_f32 v{o+i}, v{76+7-2*i}, v{76+6-2*i}')
        if c == 0: k(f'buffer_store_dwordx4 v[{o}:{o+3}], v47, s[28:31], 0 offen sc1')
        else: k(f'buffer_store_dwordx4 v[{o}:{o+3}], v47, s[28:31], s33 offen sc1')
    mark(k, 'kv stored')
    init_issue(k)
    Lj = label('p0j')
    k(f's_branch {Lj}')
    k(f'{Lnokv}:')
    k('buffer_load_dwordx4 v[232:235], v9, s[28:31], 0 offen')
    k('buffer_load_dwordx4 v[236:239], v10, s[28:31], 0 offen')
    k(f'{Lj}:')

def ph_p0_wdma(k):
    k(f'v_lshrrev_b32 v62, 2, v{V_LANE}')
    k(f'v_and_b32 v63, 3, v{V_LANE}')
    k('v_lshlrev_b32 v63, 4, v63')
    k('v_mul_u32_u24 v60, 3584, v62')
    k('v_add_u32 v60, v60, v63')
    k('v_mul_u32_u24 v61, 896, v62')
    k('v_add_u32 v61, v61, v63')
    for rnd in range(5): p0_weight_dma(k, rnd)
    mark(k, 'p0 dma issued')

def ph_p0_wfinish(k, younger=0):
    k(f's_waitcnt vmcnt({younger})')
    k(f'v_and_b32 v62, 15, v{V_LANE}')
    k(f'v_lshrrev_b32 v63, 4, v{V_LANE}')
    k('v_lshrrev_b32 v64, 2, v62')
    k('v_and_b32 v65, 3, v62')
    k('v_lshlrev_b32 v65, 3, v65')
    k('v_and_b32 v66, 1, v63')
    k('v_lshl_add_u32 v65, v66, 5, v65')
    k('v_lshl_add_u32 v65, v64, 6, v65')
    k('v_lshrrev_b32 v63, 1, v63')
    k(f's_mul_i32 s13, s{S_WAVE}, 5120')
    k(f's_add_u32 s13, s13, {WST_OFF}')
    k('v_add_u32 v65, s13, v65')
    k('v_lshl_add_u32 v66, v63, 9, v65')
    k('v_lshl_add_u32 v67, v63, 8, v65')
    for rnd in range(5):
        fl = 34 + rnd
        o = 112 + 4 * rnd
        Lwd = label('trw'); Le = label('tre')
        if rnd < 3:
            k(f'ds_read_b64_tr_b16 v[{o}:{o+1}], v66 offset:{1024*rnd}')
            k(f'ds_read_b64_tr_b16 v[{o+2}:{o+3}], v66 offset:{1024*rnd + 256}')
        elif rnd == 3:
            k(f'ds_read_b64_tr_b16 v[{o}:{o+1}], v67 offset:{1024*rnd}')
            k(f'ds_read_b64_tr_b16 v[{o+2}:{o+3}], v67 offset:{1024*rnd + 512}')
        else:
            k(f's_cmp_eq_u32 s{fl}, 1')
            k(f's_cbranch_scc1 {Lwd}')
            k(f'ds_read_b64_tr_b16 v[{o}:{o+1}], v66 offset:{1024*rnd}')
            k(f'ds_read_b64_tr_b16 v[{o+2}:{o+3}], v66 offset:{1024*rnd + 256}')
            k(f's_branch {Le}')
            k(f'{Lwd}:')
            k(f'ds_read_b64_tr_b16 v[{o}:{o+1}], v67 offset:{1024*rnd}')
            k(f'ds_read_b64_tr_b16 v[{o+2}:{o+3}], v67 offset:{1024*rnd + 512}')
            k(f'{Le}:')
    k('s_waitcnt lgkmcnt(0)')
    for rnd in range(4):
        o = 112 + 4 * rnd
        sr = SR_WGU if rnd < 3 else SR_WD
        k(f'buffer_store_dwordx4 v[{o}:{o+3}], v{V_L16}, s[{sr}:{sr+3}], s{40+rnd} offen sc1')
    Lwd = label('stw'); Le = label('ste')
    k('s_cmp_eq_u32 s38, 1')
    k(f's_cbranch_scc1 {Lwd}')
    k(f'buffer_store_dwordx4 v[128:131], v{V_L16}, s[{SR_WGU}:{SR_WGU+3}], s44 offen sc1')
    k(f's_branch {Le}')
    k(f'{Lwd}:')
    k(f'buffer_store_dwordx4 v[128:131], v{V_L16}, s[{SR_WD}:{SR_WD+3}], s44 offen sc1')
    k(f'{Le}:')
    mark(k, 'w stored')

def ph_conv_prep(k):
    k(f'v_add_u32 v6, s{S_CHB}, v92')
    k('v_add_u32 v6, 16, v6')
    for i in range(4): k(f'v_mov_b32 v{8+i}, 0')
    La = label('cz'); Lb = label('cz')
    k(f's_cmp_eq_u32 s{S_PAR}, 0')
    k(f's_cbranch_scc0 {La}')
    k(f'v_mul_u32_u24 v7, 4160, v{V_LANE}')
    k(f'v_add_u32 v7, s{S_CHB}, v7')
    k(f'v_cmp_gt_u32 vcc, 8, v{V_LANE}')
    k('s_and_saveexec_b64 s[30:31], vcc')
    k('ds_write_b128 v7, v[8:11]')
    k('s_mov_b64 exec, s[30:31]')
    k(f's_branch {Lb}')
    k(f'{La}:')
    k(f'v_add_u32 v7, s{S_CHB}, v{V_L16}')
    k(f'v_add_u32 v7, {XRL_OFF + 4096}, v7')
    k(f'v_cmp_gt_u32 vcc, 30, v{V_LANE}')
    k('s_and_saveexec_b64 s[30:31], vcc')
    k('ds_write_b128 v7, v[8:11]')
    k('s_mov_b64 exec, s[30:31]')
    k(f'{Lb}:')
    for r in range(2):
        W = 96 + 8 * r
        for c in range(8):
            s = c + 1
            T = 16 + 4 * (c % 4) + 16 * r
            if s % 2 == 1:
                kk = (s - 1) // 2
                for i in range(4): k(f'v_alignbit_b32 v{T+i}, v{W+kk+i+1}, v{W+kk+i}, 16')
                src = T
            else:
                kk = s // 2
                if kk % 2 == 0: src = W + kk
                else:
                    for i in range(4): k(f'v_mov_b32 v{T+i}, v{W+kk+i}')
                    src = T
            k(f'ds_write_b128 v6, v[{src}:{src+3}] offset:{c*4160 + 1024*r}')

def g1_wload(k, ks):
    out = []
    if ks % 2 == 0: out.append(f's_add_u32 s45, s{S_WOFF}, {ks*2048}')
    o = (ks % 2) * 2048
    out.append(f'buffer_load_dwordx4 a[{8*ks}:{8*ks+3}], v{V_L16}, s[{SR_WGU}:{SR_WGU+3}], s45 offen offset:{o} sc1')
    out.append(f'buffer_load_dwordx4 a[{8*ks+4}:{8*ks+7}], v{V_L16}, s[{SR_WGU}:{SR_WGU+3}], s45 offen offset:{o+1024} sc1')
    return out

class Cap:
    def __init__(self): self.L = []
    def __call__(self, x): self.L.append(x)

def sprinkle(k, lines, fillers, tagf, skip_head=0, skip_tail=0):
    n = len(lines) - skip_head - skip_tail
    fi = 0; nf = len(fillers)
    masked = False
    for i, ln in enumerate(lines):
        if isinstance(ln, tuple): emit_vm(k, ln[0], ln[1])
        else:
            k(ln)
            if 'saveexec' in ln: masked = True
            if ln.startswith('s_mov_b64 exec'): masked = False
        j = i - skip_head + 1
        if j > 0 and n > 0 and not masked:
            tgt = min(nf, (nf * j + n - 1) // n)
            while fi < tgt:
                for ins in fillers[fi][0]: emit_vm(k, ins, fillers[fi][1])
                fi += 1
    while fi < nf:
        for ins in fillers[fi][0]: emit_vm(k, ins, fillers[fi][1])
        fi += 1

def g1_pf_groups(ks0, ks1):
    out = []
    for ks in range(ks0, ks1):
        base = ks - (ks % 2); o = (ks % 2) * 2048
        pre = [f's_add_u32 s45, s{S_WOFF}, {base*2048}'] if (ks % 2 == 0 or ks == ks0) else []
        out.append((pre + [f'buffer_load_dwordx4 a[{8*ks}:{8*ks+3}], v{V_L16}, s[{SR_WGU}:{SR_WGU+3}], s45 offen offset:{o} sc1'], ('W', ks)))
        out.append(([f'buffer_load_dwordx4 a[{8*ks+4}:{8*ks+7}], v{V_L16}, s[{SR_WGU}:{SR_WGU+3}], s45 offen offset:{o+1024} sc1'], ('W', ks)))
    return out

def emit_vm(k, ins, tag):
    k(ins)
    if ins.startswith('buffer_'): vm.add(tag)

def g1_wprefetch(k, ks0, ks1):
    for grp, tag in g1_pf_groups(ks0, ks1):
        for ins in grp: emit_vm(k, ins, tag)

def l2_warm(k, sr, nbytes_half, whole=False):
    per = nbytes_half // 16
    assert per % 1024 == 0
    n = per // 1024
    k(f's_sub_u32 s12, s{S_I}, 28')
    k('s_lshl_b32 s12, s12, 2')
    k(f's_add_u32 s12, s12, s{S_WAVE}')
    k(f's_mul_i32 s12, s12, {per}')
    if not whole:
        k(f's_and_b32 s13, s{S_XCD}, 1')
        k(f's_mul_i32 s13, s13, {nbytes_half}')
        k('s_add_u32 s12, s12, s13')
    Ll = label('warm')
    k(f's_mov_b32 s13, {n // 4}')
    k(f'{Ll}:')
    for j in range(4):
        k(f'buffer_load_dwordx4 v[{16+4*j}:{19+4*j}], v{V_L16}, s[{sr}:{sr+3}], s12 offen offset:{1024*j} sc1')
    k('s_add_u32 s12, s12, 4096')
    k('s_sub_u32 s13, s13, 1')
    k('s_cmp_lg_u32 s13, 0')
    k('s_waitcnt vmcnt(24)')
    k(f's_cbranch_scc1 {Ll}')
    for j in range(n % 4):
        k(f'buffer_load_dwordx4 v[{16+4*j}:{19+4*j}], v{V_L16}, s[{sr}:{sr+3}], s12 offen offset:{1024*j} sc1')

def ph_conv(k):
    srd(k, 16, P_WS, OFF_XR, SZ_XR)
    srd(k, 24, P_WS, OFF_YT, SZ_ACT)
    k(f's_lshl_b32 s20, s{S_CH}, 12')
    k(f's_lshl_b32 s21, s{S_PAR}, 11')
    k('s_add_u32 s20, s20, s21')
    k(f'buffer_load_dwordx4 v[16:19], v{V_L16}, s[16:19], s20 offen sc1')
    k(f'buffer_load_dwordx4 v[20:23], v{V_L16}, s[16:19], s20 offen offset:1024 sc1')
    k(f's_and_b32 s28, s{S_CH}, 0xfffffffe')
    k('s_lshl_b32 s28, s28, 1')
    k(f's_load_dword s29, s[{P_SSD}:{P_SSD+1}], s28')
    k(f's_add_u32 s21, s21, s{S_CHB}')
    k(f's_add_u32 s21, s21, {XRL_OFF}')
    k(f'v_add_u32 v4, s21, v{V_L16}')
    k(f'v_and_b32 v5, 15, v{V_LANE}')
    k(f'v_lshrrev_b32 v6, 4, v{V_LANE}')
    k('v_lshlrev_b32 v7, 4, v6')
    k('v_lshlrev_b32 v8, 5, v5')
    k('v_sub_u32 v7, v7, v8')
    k(f's_lshl_b32 s22, s{S_PAR}, 6')
    k(f's_add_u32 s22, s22, s{S_CHB}')
    k(f's_add_u32 s22, s22, {XRL_OFF + 544 - 64}')
    k('v_add_u32 v7, s22, v7')
    k('v_and_b32 v12, 7, v5')
    k('v_mul_u32_u24 v12, 4160, v12')
    k('v_lshrrev_b32 v13, 3, v5')
    k('v_add_u32 v13, v6, v13')
    k('v_lshlrev_b32 v13, 4, v13')
    k('v_add_u32 v12, v12, v13')
    k(f's_lshl_b32 s22, s{S_PAR}, 6')
    k(f's_add_u32 s22, s22, s{S_CHB}')
    k('v_add_u32 v12, s22, v12')
    ph_p0_wfinish(k, younger=2)
    k('s_waitcnt vmcnt(5)')
    k('ds_write_b128 v4, v[16:19]')
    k('ds_write_b128 v4, v[20:23] offset:1024')
    k('s_waitcnt lgkmcnt(0)')
    k('s_barrier')
    mark(k, 'conv:x in lds')
    ACC = 16; FR = 48; AR = 176; NA = 8
    order = list(range(31, -1, -1))
    def frags(jj): return [(at, 4 * at - jj + 3) for at in range(jj // 4, 8)]
    pend = []
    def issue(tag, txt): k(txt); pend.append(tag)
    def wait_for(tags):
        idx = [pend.index(t) for t in tags if t in pend]
        if idx:
            n = min(len(pend) - 1 - max(idx), 15)
            k(f's_waitcnt lgkmcnt({n})')
            pend[:] = pend[len(pend) - n:] if n > 0 else []
    loadedF = set()
    def issueA(idx):
        jj = order[idx]; r = AR + 4 * (idx % NA)
        issue(('A', jj), f'ds_read_b128 v[{r}:{r+3}], v12 offset:{128*jj}')
    def issueF(idx):
        for at, n in frags(order[idx]):
            if n not in loadedF:
                loadedF.add(n)
                issue(('F', n), f'ds_read_b128 v[{FR+4*n}:{FR+4*n+3}], v7 offset:{128*(31-n)}')
    LA = 4
    for idx in range(LA): issueA(idx); issueF(idx)
    first = set()
    nm = 0
    for idx, jj in enumerate(order):
        if idx + LA < 32: issueA(idx + LA); issueF(idx + LA)
        wait_for([('A', jj)] + [('F', n) for _, n in frags(jj)])
        r = AR + 4 * (idx % NA)
        for at, n in frags(jj):
            c = f'v[{ACC+4*at}:{ACC+4*at+3}]' if at in first else '0'
            first.add(at)
            k(f'v_mfma_f32_16x16x32_bf16 v[{ACC+4*at}:{ACC+4*at+3}], v[{r}:{r+3}], v[{FR+4*n}:{FR+4*n+3}], {c}')
    mark(k, 'conv:mfma done')
    k(f's_lshl_b32 s41, s{S_WAVE}, 12')
    k(f's_add_u32 s41, s41, {CONV_SCR}')
    k(f'v_add_u32 v8, s41, v{V_L16}')
    k(f's_xor_b32 s42, s{S_WAVE}, 1')
    k('s_lshl_b32 s42, s42, 12')
    k(f's_add_u32 s42, s42, {CONV_SCR}')
    k(f'v_add_u32 v9, s42, v{V_L16}')
    k('v_lshlrev_b32 v10, 5, v5')
    k('v_lshl_add_u32 v10, v6, 3, v10')
    k(f's_lshl_b32 s43, s{S_PAR}, 11')
    k(f's_sub_u32 s43, s{S_CHB}, s43')
    k(f's_add_u32 s43, s43, {XRL_OFF + 4088 - 512*3}')
    k('v_sub_u32 v11, s43, v10')
    k('v_and_b32 v13, 1, v6')
    k('v_lshlrev_b32 v13, 4, v13')
    k('v_add_u32 v13, v13, v5')
    k(f's_lshl_b32 s44, s{S_PAR}, 6')
    k('v_add_u32 v13, s44, v13')
    k('v_lshlrev_b32 v13, 6, v13')
    k('v_lshrrev_b32 v14, 1, v6')
    k('v_lshl_add_u32 v13, v14, 4, v13')
    k(f's_lshr_b32 s44, s{S_WAVE}, 1')
    k('s_lshl_b32 s44, s44, 5')
    k(f's_add_u32 s44, s44, {YB_SCR}')
    k('v_add_u32 v13, s44, v13')
    k(f's_lshl_b32 s44, s{S_WAVE}, 11')
    k(f's_add_u32 s44, s44, {YB_SCR}')
    k(f'v_add_u32 v14, s44, v{V_L16}')
    k(f'v_lshrrev_b32 v10, 2, v{V_LANE}')
    k('v_mul_u32_u24 v10, 14336, v10')
    k(f'v_and_b32 v15, 3, v{V_LANE}')
    k('v_lshl_add_u32 v10, v15, 4, v10')
    k(f's_and_b32 s44, s{S_CH}, 0xfffffffe')
    k('s_lshl_b32 s44, s44, 5')
    k(f's_mul_i32 s45, s{S_WAVE}, 32*14336')
    k('s_add_u32 s44, s44, s45')
    k('v_add_u32 v10, s44, v10')
    La = label('cp'); Lb = label('cp')
    k(f's_cmp_eq_u32 s{S_PAR}, 0')
    k(f's_cbranch_scc0 {La}')
    for i in range(4): k(f'ds_write_b128 v8, v[{ACC+16+4*i}:{ACC+16+4*i+3}] offset:{1024*i}')
    k(f's_branch {Lb}')
    k(f'{La}:')
    k('s_nop 7')
    for i in range(4): k(f'ds_write_b128 v8, v[{ACC+4*i}:{ACC+4*i+3}] offset:{1024*i}')
    for i in range(16): k(f'v_mov_b32 v{ACC+i}, v{ACC+16+i}')
    k(f'{Lb}:')
    k('s_waitcnt lgkmcnt(0)')
    k('s_lshl_b32 s36, s29, 16')
    k('s_and_b32 s37, s29, 0xffff0000')
    k(f's_and_b32 s34, s{S_CH}, 1')
    k('s_cmp_eq_u32 s34, 0')
    k('s_cselect_b32 s36, s36, s37')
    k('s_waitcnt vmcnt(0)')
    k('s_barrier')
    gsignal(k, L_W)
    for i in range(4): k(f'ds_read_b128 v[{48+4*i}:{51+4*i}], v9 offset:{1024*i}')
    for i in range(4): k(f'ds_read_b64 v[{64+2*i}:{65+2*i}], v11 offset:{512*(3-i)}')
    k('s_waitcnt lgkmcnt(0)')
    for i in range(4):
        a = ACC + 4 * i
        for r in range(4): k(f'v_add_f32 v{a+r}, v{a+r}, v{48+4*i+r}')
        x0, x1 = 64 + 2 * i, 65 + 2 * i
        k(f'v_and_b32 v72, 0xffff0000, v{x1}')
        k(f'v_lshlrev_b32 v73, 16, v{x1}')
        k(f'v_and_b32 v74, 0xffff0000, v{x0}')
        k(f'v_lshlrev_b32 v75, 16, v{x0}')
        for r in range(4): k(f'v_fmac_f32 v{a+r}, s36, v{72+r}')
        k(f'v_cvt_pk_bf16_f32 v{76+2*i}, v{a}, v{a+1}')
        k(f'v_cvt_pk_bf16_f32 v{77+2*i}, v{a+2}, v{a+3}')
    for p in range(2):
        o = 76 + 4 * p
        k(f'v_permlane16_swap_b32 v{o}, v{o+2}')
        k(f'v_permlane16_swap_b32 v{o+1}, v{o+3}')
        k(f'ds_write_b128 v13, v[{o}:{o+3}] offset:{2048*p}')
    k('s_waitcnt lgkmcnt(0)')
    k('s_barrier')
    k('ds_read_b128 v[84:87], v14')
    k('ds_read_b128 v[88:91], v14 offset:1024')
    k('s_waitcnt lgkmcnt(1)')
    emit_vm(k, 'buffer_store_dwordx4 v[84:87], v10, s[24:27], 0 offen sc1', ('YT', 0))
    k('s_mov_b32 s45, 16*14336')
    k('s_waitcnt lgkmcnt(0)')
    emit_vm(k, 'buffer_store_dwordx4 v[88:91], v10, s[24:27], s45 offen sc1', ('YT', 1))

def wave_reduce8(k, regs, tmp):
    for r in regs: k(f'v_add_f32_dpp v{r}, v{r}, v{r} row_ror:8 row_mask:0xf bank_mask:0xf')
    for r, t in zip(regs, tmp): k(f'v_mov_b32 v{t}, v{r}')
    for r, t in zip(regs, tmp): k(f'v_permlane16_swap_b32 v{r}, v{t}')
    for r, t in zip(regs, tmp): k(f'v_add_f32 v{r}, v{r}, v{t}')
    for r, t in zip(regs, tmp): k(f'v_mov_b32 v{t}, v{r}')
    for r, t in zip(regs, tmp): k(f'v_permlane32_swap_b32 v{r}, v{t}')
    for r, t in zip(regs, tmp): k(f'v_add_f32 v{r}, v{r}, v{t}')

LN_BASE = 0
LN_PART = LN_BASE + 56 * 144
X_ = 16; Y_ = 24; XF = 36; YF = 52; T_ = 68

def ln_unpack(k, dst, src, n):
    for i in range(n):
        k(f'v_lshlrev_b32 v{dst+2*i}, 16, v{src+i}')
        k(f'v_and_b32 v{dst+2*i+1}, 0xffff0000, v{src+i}')

def ln_stats(k, buf):
    k(f'v_add_f32 v84, v{XF}, v{XF+1}')
    k(f'v_mul_f32 v85, v{XF}, v{XF}')
    k(f'v_add_f32 v86, v{XF+2}, v{XF+3}')
    k(f'v_mul_f32 v87, v{XF+1}, v{XF+1}')
    k(f'v_fmac_f32 v85, v{XF+2}, v{XF+2}')
    k(f'v_fmac_f32 v87, v{XF+3}, v{XF+3}')
    for i in range(4, 16, 2):
        k(f'v_add_f32 v84, v84, v{XF+i}')
        k(f'v_add_f32 v86, v86, v{XF+i+1}')
        k(f'v_fmac_f32 v85, v{XF+i}, v{XF+i}')
        k(f'v_fmac_f32 v87, v{XF+i+1}, v{XF+i+1}')
    k('v_add_f32 v84, v84, v86')
    k('v_add_f32 v85, v85, v87')
    wave_reduce8(k, [84, 85], [86, 87])
    k(f'v_cmp_gt_u32 vcc, 8, v{V_LANE}')
    k('s_and_saveexec_b64 s[40:41], vcc')
    k(f'ds_write_b64 v32, v[84:85] offset:{256*buf}')
    k('s_mov_b64 exec, s[40:41]')
    k('s_waitcnt lgkmcnt(0)')
    k('s_barrier')
    for w in range(4): k(f'ds_read_b64 v[{88+2*w}:{89+2*w}], v15 offset:{256*buf + 64*w}')

def ln_finish(k):
    k('v_add_f32 v88, v88, v90'); k('v_add_f32 v89, v89, v91')
    k('v_add_f32 v92, v92, v94'); k('v_add_f32 v93, v93, v95')
    k('v_add_f32 v88, v88, v92'); k('v_add_f32 v89, v89, v93')
    k('v_mul_f32 v84, 0x3b124925, v88')
    k('v_mul_f32 v85, 0x3b124925, v89')
    k('v_fma_f32 v85, -v84, v84, v85')
    k('v_max_f32 v85, 0, v85')
    k('v_add_f32 v85, 0x3727c5ac, v85')
    k('v_rsq_f32 v85, v85')
    k('v_mul_f32 v86, v84, v85')

def ln_addr(k):
    k(f'v_and_b32 v33, 7, v{V_LANE}')
    k(f'v_lshrrev_b32 v4, 3, v{V_LANE}')
    k(f's_mul_i32 s12, s{S_WAVE}, 14')
    k('v_add_u32 v5, s12, v4')
    k('s_lshr_b32 s13, s2, 2')
    k('s_mul_i32 s13, s13, 28672')
    k('s_and_b32 s14, s2, 3')
    k('s_lshl_b32 s14, s14, 7')
    k('s_add_u32 s13, s13, s14')
    k('v_lshlrev_b32 v6, 9, v5')
    k('v_lshl_add_u32 v6, v33, 4, v6')
    k('v_add_u32 v6, s13, v6')
    k('v_add_u32 v7, 4096, v6')
    k('v_mov_b32 v8, 0x80000000')
    k('v_cmp_gt_u32 vcc, 6, v4')
    k('v_cmp_gt_u32 s[38:39], 6, v4')
    k('v_cndmask_b32 v7, v8, v7, vcc')
    k('v_lshlrev_b32 v15, 3, v33')
    k(f'v_add_u32 v15, {LN_PART}, v15')
    k(f's_lshl_b32 s37, s{S_WAVE}, 6')
    k('v_add_u32 v32, s37, v15')

def ph_ln1_pre(k):
    ln_addr(k)
    k('v_lshlrev_b32 v11, 5, v0')
    k('v_add_u32 v12, 8192, v11')
    k('v_cmp_gt_u32 vcc, 192, v0')
    k('v_cndmask_b32 v12, v8, v12, vcc')
    k('v_lshrrev_b32 v13, 3, v0')
    k('v_add_u32 v13, v13, v0')
    k('v_lshlrev_b32 v13, 4, v13')
    k(f'v_add_u32 v13, {LN_BASE}, v13')
    k('v_mul_u32_u24 v14, 144, v5')
    k('v_lshl_add_u32 v14, v33, 1, v14')
    k(f'v_add_u32 v14, {LN_BASE}, v14')
    ln_unpack(k, XF, 232, 8)
    ln_stats(k, 0)
    k('s_waitcnt lgkmcnt(0)')
    ln_finish(k)
    for j in range(16): k(f'v_fma_f32 v{T_+j}, v{XF+j}, v85, -v86')

def ln_tail(k, sr_x, sr_xn, pf_range, tagp):
    for j in range(16): k(f'v_fmac_f32 v{XF+j}, v{T_+j}, v{YF+j}')
    for i in range(8): k(f'v_cvt_pk_bf16_f32 v{X_+i}, v{XF+2*i}, v{XF+2*i+1}')
    ln_unpack(k, XF, X_, 8)
    emit_vm(k, f'buffer_store_dwordx4 v[{X_}:{X_+3}], v6, s[{sr_x}:{sr_x+3}], 0 offen sc1', (tagp, 'x0'))
    emit_vm(k, f'buffer_store_dwordx4 v[{X_+4}:{X_+7}], v7, s[{sr_x}:{sr_x+3}], 0 offen sc1', (tagp, 'x1'))
    ln_stats(k, 1)
    k('s_waitcnt lgkmcnt(0)')
    ln_finish(k)
    for j in range(16): k(f'v_fma_f32 v{T_+j}, v{XF+j}, v85, -v86')
    for i in range(8): k(f'v_cvt_pk_bf16_f32 v{YF+i}, v{T_+2*i}, v{T_+2*i+1}')
    emit_vm(k, f'buffer_store_dwordx4 v[{YF}:{YF+3}], v6, s[{sr_xn}:{sr_xn+3}], 0 offen sc1', (tagp, 'n0'))
    emit_vm(k, f'buffer_store_dwordx4 v[{YF+4}:{YF+7}], v7, s[{sr_xn}:{sr_xn+3}], 0 offen sc1', (tagp, 'n1'))
    g1_wprefetch(k, *pf_range)
    return vm.wait((tagp, 'n1'))

def ph_ln1(k):
    srd(k, 32, P_WS, OFF_YT, SZ_ACT)
    k('s_lshr_b32 s36, s2, 1')
    k('s_mul_i32 s36, s36, 14336')
    k('s_and_b32 s37, s2, 1')
    k('s_lshl_b32 s37, s37, 4')
    k('s_add_u32 s36, s36, s37')
    emit_vm(k, 'buffer_load_dwordx4 v[24:27], v11, s[32:35], s36 offen sc1', ('ln1', 'yl0'))
    emit_vm(k, 'buffer_load_dwordx4 v[28:31], v12, s[32:35], s36 offen sc1', ('ln1', 'yl1'))
    srd(k, 16, P_WS, OFF_XN1, SZ_ACT); srd(k, 20, P_WS, OFF_X1, SZ_ACT); srd(k, 24, P_WS, OFF_YF, SZ_ACT)
    g1_wprefetch(k, P0A, P0B)
    k(vm.wait(('ln1', 'yl1')))
    k('ds_write_b128 v13, v[24:27]')
    k('v_cmp_gt_u32 vcc, 192, v0')
    k('s_and_saveexec_b64 s[40:41], vcc')
    k('ds_write_b128 v13, v[28:31] offset:4608')
    k('s_mov_b64 exec, s[40:41]')
    k('s_waitcnt lgkmcnt(0)')
    k('s_barrier')
    mark(k, 'ln1:y in lds')
    for j in range(8): k(f'ds_read_u16 v{YF+j}, v14 offset:{16*j}')
    for j in range(8): k(f'ds_read_u16 v{YF+8+j}, v14 offset:{8*144 + 16*j}')
    k('s_waitcnt lgkmcnt(0)')
    for i in range(8): k(f'v_lshl_or_b32 v{Y_+i}, v{YF+2*i+1}, 16, v{YF+2*i}')
    for j in range(16): k(f'v_lshlrev_b32 v{YF+j}, 16, v{YF+j}')
    for j in range(8, 16): k(f'v_cndmask_b32 v{YF+j}, 0, v{YF+j}, s[38:39]')
    emit_vm(k, f'buffer_store_dwordx4 v[{Y_}:{Y_+3}], v6, s[24:27], 0 offen sc1', ('ln1', 'y0'))
    emit_vm(k, f'buffer_store_dwordx4 v[{Y_+4}:{Y_+7}], v7, s[24:27], 0 offen sc1', ('ln1', 'y1'))
    return ln_tail(k, 20, 16, (P0B, PB), 'ln1')

def ph_ln2_pre(k):
    ln_addr(k)
    srd(k, 24, P_WS, OFF_YF, SZ_ACT)
    k(f'buffer_load_dwordx4 v[{Y_}:{Y_+3}], v6, s[24:27], 0 offen sc1')
    k(f'buffer_load_dwordx4 v[{Y_+4}:{Y_+7}], v7, s[24:27], 0 offen sc1')
    srd(k, 16, P_WS, OFF_XN2, SZ_ACT); srd(k, 20, P_WS, OFF_X3, SZ_ACT); srd(k, 28, P_WS, OFF_X2, SZ_ACT)

def ph_ln2(k):
    emit_vm(k, f'buffer_load_dwordx4 v[{X_}:{X_+3}], v6, s[28:31], 0 offen sc1', ('ln2', 'xl0'))
    emit_vm(k, f'buffer_load_dwordx4 v[{X_+4}:{X_+7}], v7, s[28:31], 0 offen sc1', ('ln2', 'xl1'))
    k(vm.wait(('ln2', 'xl1')))
    mark(k, 'ln2:loaded')
    ln_unpack(k, YF, Y_, 8)
    ln_unpack(k, XF, X_, 8)
    ln_stats(k, 0)
    k('s_waitcnt lgkmcnt(0)')
    ln_finish(k)
    for j in range(16): k(f'v_fma_f32 v{T_+j}, v{XF+j}, v85, -v86')
    return ln_tail(k, 20, 16, (0, 0), 'ln2')

WDL_BASE = 57344
def rr(loc, n=4): return f'{loc[0]}[{loc[1]}:{loc[1]+n-1}]'
def wdr_loc(ks, ct):
    if ct == 0: return ('a', 224 + 4 * ks) if ks < 8 else ('v', 168 + 4 * (ks - 8))
    assert ks >= 26
    return ('v', 104 + 4 * (ks - 26))
def wd_gload(ks, ct, dst):
    sr = SR_WD if ct == 0 else 28
    return [f's_add_u32 s20, s{S_DOFF}, {(ks//4)*4096}',
            f'buffer_load_dwordx4 {rr(dst)}, v{V_L16}, s[{sr}:{sr+3}], s20 offen offset:{(ks%4)*1024} sc1']

def hreg(t, ks): return 112 + 4 * ((28 * t + ks) % 14)
def hload_ins(t, ks):
    cur = 22 if t == 0 else 23
    pre = [f's_add_u32 s{cur}, s{cur}, 4096'] if (ks % 4 == 0 and ks > 0) else []
    r = hreg(t, ks)
    return pre + [f'buffer_load_dwordx4 v[{r}:{r+3}], v{V_L16}, s[24:27], s{cur} offen offset:{(ks%4)*1024} sc1']

def lmark(k, name, layer=None):
    mark(k, f'L{layer} {name}')

EP = int(os.environ.get('EP', 50))
def ph_g1(k, layer):
    srd(k, 16, P_WS, OFF_XN1 if layer == 0 else OFF_XN2, SZ_ACT)
    k(f's_lshl_b32 s32, s{S_RB}, 2')
    k('s_mul_i32 s34, s32, 28672')
    k(f's_mul_i32 s36, s{S_WAVE}, 7168')
    k('s_add_u32 s34, s34, s36')
    ST = 112; ACC = 16; TF = 80; TM = 96; NR = 4; PD = 3
    lg = LG()
    def lds(ins, tag): k(ins); lg.add(tag)
    def tok_load_one(tt, j):
        r = ST + 28 * (tt % 2) + 4 * j
        if j % 4 == 0: k(f's_add_u32 s37, s34, {tt*28672 + (j//4)*4096}')
        emit_vm(k, f'buffer_load_dwordx4 v[{r}:{r+3}], v{V_L16}, s[16:19], s37 offen offset:{(j%4)*1024} sc1', ('T', layer, tt, j))
    for j in range(7): tok_load_one(0, j)
    srd(k, 24, P_WS, OFF_H1 if layer == 0 else OFF_H2, SZ_H)
    k(f'v_add_u32 v4, s36, v{V_L16}')
    k(f's_lshl_b32 s31, s{S_FS}, 2')
    k(f's_add_u32 s31, s31, s{S_WAVE}')
    k('s_lshl_b32 s40, s31, 11')
    dl = L_DELTA * layer
    k(f's_add_u32 s21, s32, {L_XN0 + dl + 2}')
    k(f's_add_u32 s33, s32, {L_H0 + dl}')
    k(f's_lshr_b32 s12, s{S_RT}, 1')
    k(f's_and_b32 s13, s{S_RT}, 1')
    k('s_lshl_b32 s14, s12, 2')
    k('s_add_u32 s42, s14, s13')
    k('s_sub_u32 s43, 3, s13')
    k('s_add_u32 s43, s43, s14')
    k(f's_add_u32 s56, s42, {L_H0 + dl}')
    k(f's_add_u32 s57, s43, {L_H0 + dl}')
    k(f's_mul_i32 s12, s{S_WAVE}, 28*1024')
    k('s_mul_i32 s22, s42, 112*1024'); k('s_add_u32 s22, s22, s12')
    k('s_mul_i32 s23, s43, 112*1024'); k('s_add_u32 s23, s23, s12')
    k(f's_mul_i32 s12, s{S_WAVE}, 26624')
    k(f's_add_u32 s12, s12, {WDL_BASE}')
    k(f'v_add_u32 v6, s12, v{V_L16}')
    if layer == 0: srd(k, 28, P_WS, OFF_WD + 112 * 1024, SZ_WD - 112 * 1024)
    def tok_write_one(tt, j):
        r = ST + 28 * (tt % 2) + 4 * j
        lds(f'ds_write_b128 v4, v[{r}:{r+3}] offset:{(tt%2)*28672 + j*1024}', ('w', tt, j))
    def tok_read(step):
        tt, ks = divmod(step, 28)
        r = TF + 4 * (step % NR)
        lds(f'ds_read_b128 v[{r}:{r+3}], v{V_L16} offset:{(tt%2)*28672 + ks*1024}', ('r', step))
    def epilogue(tt):
        g = ACC + 32 * (tt % 2); u = g + 16; T = TM
        out = [f's_add_u32 s41, s32, {tt}', 's_mul_i32 s41, s41, 112*1024', 's_add_u32 s41, s41, s40']
        for s in range(2):
            b = 8 * s
            for i in range(8): out.append(f'v_mul_f32 v{T+i}, 0xbfb8aa3b, v{g+b+i}')
            for i in range(8): out.append(f'v_exp_f32 v{T+i}, v{T+i}')
            for i in range(8): out.append(f'v_mul_f32 v{u+b+i}, v{g+b+i}, v{u+b+i}')
            for i in range(8): out.append(f'v_add_f32 v{T+i}, 1.0, v{T+i}')
            for i in range(8): out.append(f'v_rcp_f32 v{T+i}, v{T+i}')
            for i in range(8): out.append(f'v_mul_f32 v{u+b+i}, v{u+b+i}, v{T+i}')
            o = g + b
            for q in range(4): out.append(f'v_cvt_pk_bf16_f32 v{o+q}, v{u+b+2*q}, v{u+b+2*q+1}')
            out.append(f'buffer_store_dwordx4 v[{o}:{o+3}], v{V_L16}, s[24:27], s41 offen offset:{1024*s} sc1')
        return out
    k(vm.wait(('T', layer, 0, 6)))
    for j in range(7): tok_write_one(0, j)
    k(lg.wait(('w', 0, 6)))
    k('s_barrier')
    lmark(k, 'g1:tok0', layer)
    act = {st: [] for st in range(112)}
    pos = {}
    for j in range(7):
        act[j].append(lambda j=j: tok_load_one(1, j))
        act[21 + j].append(lambda j=j: tok_load_one(2, j))
        act[28 + j].append(lambda j=j: tok_load_one(3, j))
    def twrite(tt, j):
        if j == 0: k(vm.wait(('T', layer, tt, 6)))
        tok_write_one(tt, j)
    def lbar(tt):
        w = lg.wait(('w', tt, 6))
        if w: k(w)
        k('s_barrier')
    for j in range(7):
        act[11 + j].append(lambda j=j: twrite(1, j))
        act[36 + j].append(lambda j=j: twrite(2, j))
        act[64 + j].append(lambda j=j: twrite(3, j))
    act[19].append(lambda: lbar(1))
    act[35].append(lambda: k('s_barrier'))
    act[44].append(lambda: lbar(2))
    act[63].append(lambda: k('s_barrier'))
    def sig(tt, tl=None):
        if tl is not None:
            w = lg.wait(('w', tl, 6))
            if w: k(w)
        k(vm.wait(('H', layer, tt)))
        k('s_barrier')
        k(f's_add_u32 s62, s33, {tt}')
        signal(k, line_sreg=62)
    act[72].append(lambda: sig(0, 3))
    act[100].append(lambda: sig(1))
    act[12].append(lambda: pos.__setitem__('p0', poll_issue(k, 21, 2)))
    act[20].append(lambda: poll_check(k, pos['p0'], 4, 21, 2))
    act[103].append(lambda: pos.__setitem__('p3', poll_issue(k, 56)))
    act[111].append(lambda: poll_check(k, pos['p3'], 14, 56, barrier=False))
    if layer == 0:
        grp = g1_pf_groups(PD_, 28)
        for i, (ins, tag) in enumerate(grp):
            act[7 + i].append(lambda ins=ins, tag=tag: [emit_vm(k, x, tag) for x in ins])
        rsteps = [17, 18, 19, 20] + list(range(35, 44)) + list(range(51, 63)) + [70, 71, 79, 80, 81]
        if os.environ.get('REBAL'): rsteps = [17, 18, 19, 20] + list(range(35, 44)) + [51, 52, 53, 54, 55] + [90, 91, 92, 93, 94, 95, 96, 97, 104, 105, 106, 107]
        rl = [(ks, 0) for ks in range(28)] + [(26, 1), (27, 1)]
        for st, (ks, ct) in zip(rsteps, rl):
            act[st].append(lambda ks=ks, ct=ct: [emit_vm(k, x, ('D', ks, ct)) for x in wd_gload(ks, ct, wdr_loc(ks, ct))])
        groups = [(range(0, 7), 112, 44, 56), (range(7, 14), 112, 63, 78), (range(14, 21), 140, 72, 86), (range(21, 26), 112, 85, 98)]
        for (rng, reg0, ld0, wr0) in groups:
            for j, ks in enumerate(rng):
                r = reg0 + 4 * j
                act[ld0 + j].append(lambda ks=ks, r=r: [emit_vm(k, x, ('DL', ks)) for x in wd_gload(ks, 1, ('v', r))])
                def wrl(ks=ks, r=r):
                    k(vm.wait(('DL', ks)))
                    lds(f'ds_write_b128 v6, v[{r}:{r+3}] offset:{ks*1024}', ('wl', ks))
                act[wr0 + j].append(wrl)
    for st in range(PD): tok_read(st)
    for tt in range(4):
        g = ACC + 32 * (tt % 2); u = g + 16
        fill = epilogue(tt - 1) if tt > 0 else []
        nf = len(fill); fi = 0
        for ks in range(28):
            step = 28 * tt + ks
            if layer == 0 and tt == 0 and ks >= PB:
                k(vm.wait(('W', ks)))
            w = lg.wait(('r', step))
            if w: k(w)
            b = TF + 4 * (step % NR)
            cg = f'v[{g}:{g+15}]' if ks else '0'
            cu = f'v[{u}:{u+15}]' if ks else '0'
            k(f'v_mfma_f32_32x32x16_bf16 v[{g}:{g+15}], a[{8*ks}:{8*ks+3}], v[{b}:{b+3}], {cg}')
            if step + PD < 112: tok_read(step + PD)
            tgt = (nf * (2 * ks) + EP - 1) // EP if ks >= 1 else 0
            while fi < min(tgt, nf):
                emit_vm(k, fill[fi], ('H', layer, tt - 1)); fi += 1
            k(f'v_mfma_f32_32x32x16_bf16 v[{u}:{u+15}], a[{8*ks+4}:{8*ks+7}], v[{b}:{b+3}], {cu}')
            tgt = (nf * (2 * ks + 1) + EP - 1) // EP if ks >= 1 else 0
            while fi < min(tgt, nf):
                emit_vm(k, fill[fi], ('H', layer, tt - 1)); fi += 1
            for f in act[step]: f()
        while fi < nf:
            emit_vm(k, fill[fi], ('H', layer, tt - 1)); fi += 1
        lmark(k, f'g1:pass{tt}', layer)
    k('s_waitcnt lgkmcnt(0)')
    k('s_barrier')
    pf = [(hload_ins(0, ks), ('HL', layer, 0, ks)) for ks in range(14)]
    lines = [(x, ('H', layer, 3)) if x.startswith('buffer_') else x for x in epilogue(3)]
    if os.environ.get('EPI_SPRINKLE'):
        sprinkle(k, lines, pf, None, skip_head=4)
    else:
        sprinkle(k, lines, [], None)
        for grp, tag in pf:
            for ins in grp: emit_vm(k, ins, tag)
    lmark(k, 'g1:epi3', layer)

G2_SCR = 0
def ph_g2(k, layer):
    final = layer == 1
    ACC = 16; WR = 88; NWR = 4; WPD = 3
    lg = LG()
    def lds(ins, tag): k(ins); lg.add(tag)
    def hload(t, ks):
        for ins in hload_ins(t, ks): emit_vm(k, ins, ('HL', layer, t, ks))
    def wl_read(step):
        t, ks = divmod(step, 28)
        if step < 56 and ks < 26:
            r = WR + 4 * (step % NWR)
            lds(f'ds_read_b128 v[{r}:{r+3}], v6 offset:{ks*1024}', ('wr', step))
    def mm(t, ks):
        step = 28 * t + ks
        r = hreg(t, ks)
        a0 = ACC + 32 * t; a1 = a0 + 16
        c0 = f'v[{a0}:{a0+15}]' if ks else '0'
        c1 = f'v[{a1}:{a1+15}]' if ks else '0'
        w1 = rr(wdr_loc(ks, 1)) if ks >= 26 else f'v[{WR + 4*(step % NWR)}:{WR + 4*(step % NWR) + 3}]'
        m0 = f'v_mfma_f32_32x32x16_bf16 v[{a0}:{a0+15}], {rr(wdr_loc(ks, 0))}, v[{r}:{r+3}], {c0}'
        m1 = f'v_mfma_f32_32x32x16_bf16 v[{a1}:{a1+15}], {w1}, v[{r}:{r+3}], {c1}'
        return m0, m1
    def step_mm(t, ks, mid=None, post=None):
        step = 28 * t + ks
        k(vm.wait(('HL', layer, t, ks)))
        m0, m1 = mm(t, ks)
        k(m0)
        if mid: mid()
        w = lg.wait(('wr', step))
        if w: k(w)
        k(m1)
        wl_read(step + WPD)
        if post: post()
    SIG_J = int(os.environ.get('SIG_J', -1))
    def sig23():
        k(vm.wait(('H', layer, 3)))
        k('s_barrier')
        k('s_add_u32 s59, s33, 2')
        signal(k, line_sreg=59, n=2)
        lmark(k, 'g1 arrived', layer)
    if SIG_J < 0: sig23()
    for st in range(WPD): wl_read(st)
    srd(k, 16, P_WS, OFF_X1 if layer == 0 else OFF_X3, SZ_ACT)
    k(f'v_and_b32 v4, 31, v{V_LANE}')
    k(f'v_lshrrev_b32 v5, 5, v{V_LANE}')
    k(f's_and_b32 s13, s{S_WAVE}, 1')
    k(f's_lshr_b32 s12, s{S_WAVE}, 1')
    k(f's_lshl_b32 s14, s{S_CTP}, 12')
    k('s_lshl_b32 s15, s13, 11'); k('s_add_u32 s14, s14, s15')
    k('s_lshl_b32 s15, s12, 10'); k('s_add_u32 s14, s14, s15')
    k('v_lshlrev_b32 v7, 9, v5')
    k('v_lshl_add_u32 v7, v4, 4, v7')
    k('v_add_u32 v7, s14, v7')
    k('s_mul_i32 s34, s42, 28672'); k('s_mul_i32 s35, s43, 28672')
    k(f's_lshl_b32 s14, s{S_WAVE}, 11')
    k(f'v_add_u32 v8, s14, v{V_L16}')
    k(f's_lshl_b32 s14, s{S_WAVE}, 13')
    k(f'v_add_u32 v9, s14, v{V_L16}')
    if not final:
        srd(k, 36, P_WS, OFF_X2, SZ_ACT)
        k('v_mov_b32 v10, v7'); k('s_mov_b32 s40, s34'); k('s_mov_b32 s41, s35')
    else:
        srd(k, 36, P_OUT, 0, SZ_ACT)
        k(f's_lshl_b32 s14, s{S_CTP}, 7')
        k('s_lshl_b32 s13, s13, 6'); k('s_add_u32 s14, s14, s13')
        k('s_lshl_b32 s12, s12, 5'); k('s_add_u32 s14, s14, s12')
        k('v_mul_u32_u24 v10, 896, v4')
        k('v_lshl_add_u32 v10, v5, 4, v10')
        k('v_add_u32 v10, s14, v10')
        k('s_mul_i32 s40, s42, 32*896'); k('s_mul_i32 s41, s43, 32*896')
    for j in range(14):
        step_mm(0, j, post=lambda j=j: hload(0, 14 + j))
        if j == SIG_J: sig23()
    wait(k, 14, line_sreg=57)
    lmark(k, 'g2:B ready', layer)
    emit_vm(k, 'buffer_load_dwordx4 v[80:83], v7, s[16:19], s34 offen sc1', ('R', layer, 0))
    emit_vm(k, 'buffer_load_dwordx4 v[84:87], v7, s[16:19], s35 offen sc1', ('R', layer, 1))
    for j in range(14):
        step_mm(0, 14 + j, post=lambda j=j: hload(1, j))
    def xch_write(t):
        out = []
        for o in range(4):
            acc = ACC + 32 * t + 16 * (o & 1) + 8 * (o >> 1)
            for r in range(2):
                out.append(f'ds_write_b128 v8, v[{acc+4*r}:{acc+4*r+3}] offset:{G2_SCR + o*8192 + r*1024}')
        return out
    def xch_finish(t, R):
        out = []
        for sidx in range(4):
            for r in range(2):
                d = R + 8 * sidx + 4 * r
                out.append((f'ds_read_b128 v[{d}:{d+3}], v9 offset:{G2_SCR + sidx*2048 + r*1024}', ('xr', t, sidx, r)))
        out.append(('WAIT', ('xr', t, 1, 1)))
        for i in range(8): out.append(f'v_add_f32 v{R+i}, v{R+i}, v{R+8+i}')
        out.append(('WAIT', ('xr', t, 3, 1)))
        for i in range(8): out.append(f'v_add_f32 v{R+16+i}, v{R+16+i}, v{R+24+i}')
        for i in range(8): out.append(f'v_add_f32 v{R+i}, v{R+i}, v{R+16+i}')
        for j in range(4): out.append(f'v_permlane32_swap_b32 v{R+j}, v{R+4+j}')
        rs = 80 + 4 * t
        for i in range(4):
            out.append(f'v_lshlrev_b32 v{R+8}, 16, v{rs+i}')
            out.append(f'v_and_b32 v{R+9}, 0xffff0000, v{rs+i}')
            out.append(f'v_add_f32 v{R+2*i}, v{R+2*i}, v{R+8}')
            out.append(f'v_add_f32 v{R+2*i+1}, v{R+2*i+1}, v{R+9}')
        for i in range(4): out.append(f'v_cvt_pk_bf16_f32 v{R+12+i}, v{R+2*i}, v{R+2*i+1}')
        return out
    def emit_x(x):
        if isinstance(x, tuple):
            if x[0] == 'WAIT':
                w = lg.wait(x[1])
                if w: k(w)
            else: lds(x[0], x[1])
        else: k(x)
    wr = xch_write(0)
    fin = xch_finish(0, 16)
    nf = len(fin); st = {'fi': 0}
    def emit_fin(tgt):
        while st['fi'] < min(tgt, nf):
            emit_x(fin[st['fi']]); st['fi'] += 1
    for j in range(14):
        def mid(j=j):
            if 1 <= j <= 4: lds(wr[2 * (j - 1)], ('xw', 0, 2 * (j - 1)))
            if j >= 6: emit_fin((nf * (2 * (j - 6) + 1) + 15) // 16)
        def post(j=j):
            if 1 <= j <= 4: lds(wr[2 * (j - 1) + 1], ('xw', 0, 2 * (j - 1) + 1))
            if j >= 6: emit_fin((nf * (2 * (j - 6) + 2) + 15) // 16)
            if j == 5:
                w = lg.wait(('xw', 0, 7))
                if w: k(w)
                k('s_barrier')
            hload(1, 14 + j)
        step_mm(1, j, mid=mid, post=post)
    emit_fin(nf)
    OSC = '' if final else ' sc1'
    emit_vm(k, 'buffer_store_dwordx4 v[28:31], v10, s[36:39], s40 offen' + OSC, ('O', layer, 0))
    for j in range(14, 28):
        step_mm(1, j, post=(lambda: k('s_barrier')) if j == 20 else None)
    lmark(k, 'g2:main', layer)
    for i, x in enumerate(xch_write(1)): lds(x, ('xw', 1, i))
    if not final: k(vm.wait(('O', layer, 0)))
    k('s_waitcnt lgkmcnt(0)'); lg.l = []
    k('s_barrier')
    if not final:
        k(f's_add_u32 s59, s42, {L_X2}')
        signal(k, line_sreg=59)
    for x in xch_finish(1, 48): emit_x(x)
    emit_vm(k, 'buffer_store_dwordx4 v[60:63], v10, s[36:39], s41 offen' + OSC, ('O', layer, 1))

def build():
    MARKS.clear(); LOOPMARKS.clear(); vm.l.clear(); _lab[0] = 0
    k = Kern(KNAME, vgprs=256, agprs=256, sgprs=102)
    ph_init(k)
    ph_p0(k)
    Lc = label('noconv')
    Lw = label('s0skip')
    k('s_cmp_ge_u32 s2, 224')
    k(f's_cbranch_scc1 {Lw}')
    k('s_waitcnt vmcnt(0)')
    init_check(k)
    k('s_barrier')
    signal(k, line_sreg=62)
    ticket_issue(k)
    mark(k, 'S0 arrived')
    ph_p0_wdma(k)
    ph_conv_prep(k)
    mark(k, 'conv prep done')
    wait(k, 32, line_sreg=62)
    mark(k, 'S0 passed')
    ph_conv(k)
    k(f's_branch {Lc}')
    k(f'{Lw}:')
    ph_p0_wdma(k)
    ph_p0_wfinish(k)
    wait_init(k)
    k('s_waitcnt vmcnt(0)')
    k('s_barrier')
    gsignal(k, L_W)
    ticket_issue(k)
    k(f'{Lc}:')
    mark(k, 'conv done')
    k('s_waitcnt vmcnt(0)')
    ticket_resolve(k)
    k('s_waitcnt lgkmcnt(0)')
    k('s_barrier')
    gsignal(k, L_S1)
    role_compute(k)
    mark(k, 'S1 arrived')
    ph_ln1_pre(k)
    gwait(k, L_W)
    g1_wprefetch(k, 0, P0A)
    mark(k, 'ln1 pre done')
    gwait(k, L_S1)
    mark(k, 'S1 passed')
    w = ph_ln1(k)
    k('s_lshr_b32 s59, s2, 2')
    k(f's_add_u32 s59, s59, {L_XN0}')
    arrive(k, line_sreg=59, vmwait=w)
    mark(k, 'ln1 arrived')
    Lend2 = label('fin')
    for layer in range(2):
        Lskip = label('gskip')
        k(f's_cmp_ge_u32 s{S_I}, 28')
        k(f's_cbranch_scc1 {Lskip}')
        if layer == 0: g1_wprefetch(k, PB, PD_)
        k(f's_lshl_b32 s59, s{S_RB}, 2')
        k(f's_add_u32 s59, s59, {L_XN0 + L_DELTA * layer}')
        wait(k, 4, line_sreg=59, nlines=2)
        lmark(k, 'S(ln->g1) passed', layer)
        ph_g1(k, layer)
        ph_g2(k, layer)
        if layer == 0:
            k(f's_add_u32 s59, s43, {L_X2}')
            arrive(k, line_sreg=59, vmwait=vm.wait(('O', layer, 1)))
            mark(k, 'S4 arrived')
        k(f'{Lskip}:')
        if layer == 0:
            ph_ln2_pre(k)
            k('s_lshr_b32 s59, s2, 2')
            k(f's_add_u32 s59, s59, {L_X2}')
            wait(k, 7, line_sreg=59)
            mark(k, 'S4 passed')
            w = ph_ln2(k)
            k('s_lshr_b32 s59, s2, 2')
            k(f's_add_u32 s59, s59, {L_XN1}')
            arrive(k, line_sreg=59, vmwait=w)
            mark(k, 'ln2 arrived')
    if PROF:
        k('s_waitcnt vmcnt(0)')
        mark(k, 'end')
        k('s_memrealtime s[96:97]')
        k('s_waitcnt lgkmcnt(0)')
        k(f'v_writelane_b32 v{VPROF}, s96, 63')
        srd(k, 56, P_WS, OFF_PROF, 0x100000)
        k('s_lshl_b32 s60, s2, 2')
        k(f's_add_u32 s60, s60, s{S_WAVE}')
        k('s_lshl_b32 s60, s60, 8')
        k(f'v_lshlrev_b32 v4, 2, v{V_LANE}')
        k(f'buffer_store_dword v{VPROF}, v4, s[56:59], s60 offen')
    k('L_end:')
    k('s_endpgm')
    hdr = open('interleave_layers__ssm_conv_h3__swiglu_ffn__prompt.s.ref').read().split('; Override launch')[0]
    out = [hdr.rstrip('\n')]
    out.append(f'; @launch grid=({NWG},1,1) block=(256,1,1) lds={LDS_BYTES}')
    out.append('.amdgcn_target "amdgcn-amd-amdhsa--gfx950"')
    out.append('.text')
    out.append(k.emit())
    out.append('.section .rodata,"a"')
    out.append('.p2align 6')
    out.append(k.desc())
    return '\n'.join(out) + '\n'

if __name__ == '__main__':
    if '--prof' in sys.argv: PROF = True
    txt = build()
    dst = sys.argv[1]
    open(dst, 'w').write(txt)
    if PROF:
        import json
        assert len(MARKS) <= 62
        json.dump(MARKS, open(dst + '.marks', 'w'))
    print('wrote', dst, len(txt), 'bytes', len(MARKS), 'marks')
```
